```python
import torch

def _softmax(x, axis=-1):
    return torch.softmax(x, dim=axis)
def _gelu(x):
    return torch.nn.functional.gelu(x, approximate="tanh")
def _silu(x):
    return torch.nn.functional.silu(x)
def _sigmoid(x):
    return torch.sigmoid(x)
def _layernorm(x, axis=-1, eps=1e-5):
    m = x.mean(dim=axis, keepdim=True)
    v = x.var(dim=axis, keepdim=True, unbiased=False)
    return (x - m) / torch.sqrt(v + eps)
def _scatter_add(tgt, idx, src, axis=0):
    return tgt.clone().index_add_(axis, idx, src)
def _segment_sum(src, seg, n):
    out = torch.zeros((n,) + src.shape[1:], dtype=src.dtype)
    return out.index_add_(0, seg, src)
def _pad(x, pw):
    flat = tuple(v for pair in reversed(pw) for v in pair)
    return torch.nn.functional.pad(x, flat)

kernel_name = 'standalone__mha_block_cached__near_ridge'

def setup_inputs():

    _w = (lambda a: (lambda t: t.to(torch.bfloat16) if t.is_floating_point() else t)(torch.as_tensor(a)))
    B, Sq, D = 8, 240, 576
    H, Sk, Dh = 32, 1024, 128
    return {
        "x": _w((lambda *s: torch.randn(*s, dtype=torch.bfloat16) * 0.8)(B, Sq, D)),
        "k_cache": _w((lambda *s: torch.randn(*s, dtype=torch.bfloat16) * 0.8)(B, H, Sk, Dh)),
        "v_cache": _w((lambda *s: torch.randn(*s, dtype=torch.bfloat16) * 0.05)(B, H, Sk, Dh)),
        "wq": _w((lambda *s: torch.randn(*s, dtype=torch.bfloat16) * 0.8)(D, H * Dh) * (D ** -0.5)),
        "wo": _w((lambda *s: torch.randn(*s, dtype=torch.bfloat16) * 0.05)(H * Dh, D) * ((H * Dh) ** -0.5)),
    }

def reference(x, k_cache, v_cache, wq, wo):
    B, Sq, D = x.shape
    H, Dh = 32, 128
    q = (lambda x, *d: x.permute(*d))((x @ wq).reshape(B, Sq, H, Dh), 0, 2, 1, 3)
    scores = torch.einsum("bhqd,bhkd->bhqk", q, k_cache) * (Dh ** -0.5)
    p = _softmax(scores, axis=-1)
    o = torch.einsum("bhqk,bhkd->bhqd", p, v_cache)
    return (lambda x, *d: x.permute(*d))(o, 0, 2, 1, 3).reshape(B, Sq, H * Dh) @ wo
```

```python
class Asm:
    def __init__(self):
        self.lines = []
        self.lds = []
        self.vm = []
    def e(self, s):
        self.lines.append("    " + s)
    def label(self, s):
        self.lines.append(s + ":")
    def raw(self, s):
        self.lines.append(s)
    def c(self, s):
        self.lines.append("    ; " + s)
    def ds(self, s, tag=None):
        self.e(s); self.lds.append(tag)
    def vmem(self, s, tag=None):
        self.e(s); self.vm.append(tag)
    def n_after(self, q, tag):
        idx = [i for i, t in enumerate(q) if t == tag]
        assert idx, f"tag {tag} never issued"
        return len(q) - 1 - idx[-1]
    def wait_lds(self, tag):
        n = self.n_after(self.lds, tag)
        self.e(f"s_waitcnt lgkmcnt({min(n, 15)})")
    def wait_vm(self, tag):
        n = self.n_after(self.vm, tag)
        self.e(f"s_waitcnt vmcnt({min(n, 63)})")
    def text(self):
        return "\n".join(self.lines) + "\n"

def v(n, k=1): return f"v{n}" if k == 1 else f"v[{n}:{n+k-1}]"
def a(n, k=1): return f"a{n}" if k == 1 else f"a[{n}:{n+k-1}]"
def s(n, k=1): return f"s{n}" if k == 1 else f"s[{n}:{n+k-1}]"
def mfma(d, x, y, c): return f"v_mfma_f32_16x16x32_bf16 {d}, {x}, {y}, {c}"

def descriptor(name, vgpr=512, accum=256, sgpr=102):
    return f""".p2align 6
.amdhsa_kernel {name}
  .amdhsa_next_free_vgpr {vgpr}
  .amdhsa_next_free_sgpr {sgpr}
  .amdhsa_accum_offset {accum}
  .amdhsa_group_segment_fixed_size 0
  .amdhsa_kernarg_size 64
  .amdhsa_user_sgpr_count 2
  .amdhsa_user_sgpr_kernarg_segment_ptr 1
  .amdhsa_system_sgpr_workgroup_id_x 1
  .amdhsa_float_denorm_mode_32 3
.end_amdhsa_kernel
"""
```

```python
import sys, struct, math
from asmlib import *

CFG = dict(nt_kv=" nt", nt_x=" nt", stamps=False, qkorder="A", touch=True)
for arg in sys.argv[2:]:
    k, val = arg.split("=")
    CFG[k] = {"True": True, "False": False}.get(val, val)
    if k.startswith("nt_"): CFG[k] = (" " + val) if val not in ("", "none") else ""

def f32hex(x): return "0x%08x" % struct.unpack("<I", struct.pack("<f", x))[0]
SCALE = math.log2(math.e) / math.sqrt(128.0)

SLOT = 16384
KRING = 0
VRING = 5 * SLOT
WS0 = 2 * SLOT
XS0 = VRING + SLOT
def XS(kc): return XS0 + 32768 * ((kc + 1) % 2)
def WS(kc): return WS0 + SLOT * (kc % 3)
WS_O = 0
WS_WO = 120 * 131072
WS_STAMP = 32 << 20
sX, sWQ, sK, sV, sO, sWO, sWP = 4, 8, 12, 16, 20, 24, 28
sW, sB, sH = 32, 33, 34
sT0, sT1, sT2, sT3 = 35, 36, 37, 38
sXO, sWO_OFF = 39, 40
sKSO, sVSO = 41, 42
sKOFF, sPREV, sNEXT, sVD = 43, 44, 45, 46
sDK, sDV = 47, 48
sCNT = 49
sW4K = 50
sSECOND = 51
sXB, sXE, sWB = 52, 53, 54
sSC = 56
sST = 60
vLANE = 1
vKA = 2
vVA = 6
vKD = 14
vVD = 18
vOO = 20
vT = 21
vWA = 28
vXA = 36
vWG = 40
vXD = 192
vWD = 202
vS = 64; vP = 128; vC = 160; vONE = 176; vQ = 192; vACC = 64
aO = 0; aK = 128; aV = 160; aL = 192
aQA = 0; aQB = 64; aWG = 208

class Slot:
    def __init__(self, m=None):
        self.m = m; self.sal = []; self.mem = []; self.valu = []
def emit_slots(A, slots):
    for sl in slots:
        if sl.m: A.e(sl.m)
        for f in sl.sal + sl.mem + sl.valu:
            if isinstance(f, str): A.e(f)
            else: f(A)

nstamp = [0]
def stamp(A, name):
    if not CFG["stamps"]: return
    i = STAMPS.index(name)
    A.e(f"s_memrealtime {s(64 + 2 * i, 2)}")
STAMPS = ["start", "bm1", "qdone", "qconv", "loop", "loopend", "pvdone", "end"]

def dma(A, voff, srd, soff, imm, tag, flag):
    A.vmem(f"buffer_load_dwordx4 {v(voff)}, {s(srd,4)}, {soff} offen offset:{imm}{flag} lds", tag)

def kv_group(kind, m0expr, soff, tag):
    ops = [m0expr]
    for i in range(4):
        vo = vKD + i if kind == "K" else vVD + (i & 1)
        srd = sK if kind == "K" else sV
        ops.append(lambda A, vo=vo, srd=srd, i=i: dma(A, vo, srd, soff, 1024 * i, tag, CFG["nt_kv"]))
    return ops

def setup(A):
    A.e("s_cmp_ge_u32 s2, 256")
    A.e("s_cbranch_scc1 L_k1_end")
    stamp(A, "start")
    A.e("s_load_dwordx8 s[80:87], s[0:1], 0")
    A.e("s_load_dwordx8 s[88:95], s[0:1], 32")
    A.e(f"v_and_b32 {v(vLANE)}, 63, v0")
    A.e(f"v_lshrrev_b32 {v(vT)}, 6, v0")
    A.e(f"s_and_b32 {s(sT0)}, s2, 7")
    A.e(f"v_readfirstlane_b32 {s(sW)}, {v(vT)}")
    A.e(f"s_lshr_b32 {s(sT1)}, s2, 3")
    A.e(f"s_and_b32 {s(sB)}, {s(sT0)}, 1")
    A.e(f"s_lshl_b32 {s(sB)}, {s(sB)}, 2")
    A.e(f"s_and_b32 {s(sT2)}, {s(sT1)}, 3")
    A.e(f"s_add_u32 {s(sB)}, {s(sB)}, {s(sT2)}")
    A.e(f"s_lshr_b32 {s(sH)}, {s(sT0)}, 1")
    A.e(f"s_lshl_b32 {s(sH)}, {s(sH)}, 3")
    A.e(f"s_lshr_b32 {s(sT2)}, {s(sT1)}, 2")
    A.e(f"s_add_u32 {s(sH)}, {s(sH)}, {s(sT2)}")
    A.e(f"s_lshl_b32 {s(sW4K)}, {s(sW)}, 12")
    L = v(vLANE); t0, t1, t2, t3, t4 = [v(vT + i) for i in range(5)]
    A.e(f"v_lshrrev_b32 {t0}, 4, {L}")
    A.e(f"v_and_b32 {t1}, 15, {L}")
    A.e(f"v_lshrrev_b32 {t2}, 3, {L}")
    A.e(f"v_mul_u32_u24 {t2}, 1152, {t2}")
    A.e(f"v_and_b32 {t3}, 7, {L}")
    A.e(f"v_xor_b32 {t3}, {t3}, {t0}")
    A.e(f"v_xor_b32 {t4}, 4, {t3}")
    A.e(f"v_lshl_add_u32 {t3}, {t3}, 4, {t2}")
    A.e(f"v_lshl_add_u32 {t4}, {t4}, 4, {t2}")
    A.e(f"s_mul_i32 {s(sT0)}, {s(sW)}, {8*9216}")
    for j in range(8):
        A.e(f"s_add_u32 {s(sT1)}, {s(sT0)}, {j*9216 - 1024*(j%4)}")
        A.e(f"v_add_u32 {v(vXD+j)}, {s(sT1)}, {t3 if j%2==0 else t4}")
    A.e(f"s_mul_i32 {s(sT0)}, {s(sW)}, {2*9216}")
    for j in range(2):
        A.e(f"s_add_u32 {s(sT1)}, {s(sT0)}, {(24+j)*9216 - 1024*j}")
        A.e(f"v_add_u32 {v(vXD+8+j)}, {s(sT1)}, {t3 if j%2==0 else t4}")
    A.e(f"s_lshl_b32 {s(sXB)}, {s(sW)}, 13")
    A.e(f"s_lshl_b32 {s(sXE)}, {s(sW)}, 11")
    A.e(f"s_add_u32 {s(sXE)}, {s(sXE)}, {24*1024}")
    A.e(f"s_mul_i32 {s(sWB)}, {s(sW)}, {5*1024}")
    A.e(f"v_lshlrev_b32 {t2}, 1, {t0}")
    A.e(f"v_xor_b32 {t2}, {t2}, {t1}")
    A.e(f"v_lshlrev_b32 {t2}, 4, {t2}")
    A.e(f"v_lshl_add_u32 {t2}, {t0}, 13, {t2}")
    A.e(f"s_mul_i32 {s(sT0)}, {s(sW)}, 5")
    for j in range(6):
        A.e(f"s_add_u32 {s(sT1)}, {s(sT0)}, {j}")
        A.e(f"s_lshl_b32 {s(sT2)}, {s(sT1)}, 6")
        A.e(f"s_and_b32 {s(sT2)}, {s(sT2)}, 128")
        A.e(f"s_lshl_b32 {s(sT1)}, {s(sT1)}, 15")
        A.e(f"s_sub_u32 {s(sT1)}, {s(sT1)}, {1024*(j%3)}") if j % 3 else None
        A.e(f"v_xor_b32 {v(vWD+j)}, {s(sT2)}, {t2}")
        A.e(f"v_add_u32 {v(vWD+j)}, {s(sT1)}, {v(vWD+j)}")
    A.e(f"v_xor_b32 {t2}, {t1}, {t0}")
    for i in range(4):
        A.e(f"v_xor_b32 {t3}, {4*i}, {t2}")
        A.e(f"v_lshlrev_b32 {t3}, 4, {t3}")
        A.e(f"v_lshl_add_u32 {v(vKD+i)}, {t0}, 8, {t3}")
    A.e(f"v_lshlrev_b32 {t2}, 1, {t0}")
    A.e(f"v_xor_b32 {t2}, {t2}, {t1}")
    for i in range(2):
        A.e(f"v_xor_b32 {t3}, {8*i}, {t2}")
        A.e(f"v_lshlrev_b32 {t3}, 4, {t3}")
        A.e(f"v_lshl_add_u32 {v(vVD+i)}, {t0}, 8, {t3}")
    A.e("s_waitcnt lgkmcnt(0)")
    A.e(f"s_mul_i32 {s(sT0)}, {s(sB)}, 276480")
    A.e(f"s_add_u32 {s(sX)}, s80, {s(sT0)}")
    A.e(f"s_addc_u32 {s(sX+1)}, s81, 0")
    A.e(f"s_mov_b32 {s(sX+2)}, 276480")
    A.e(f"s_mov_b32 {s(sX+3)}, 0x20000")
    A.e(f"s_lshl_b32 {s(sT0)}, {s(sH)}, 8")
    A.e(f"s_add_u32 {s(sWQ)}, s86, {s(sT0)}")
    A.e(f"s_addc_u32 {s(sWQ+1)}, s87, 0")
    A.e(f"s_sub_u32 {s(sWQ+2)}, {576*8192}, {s(sT0)}")
    A.e(f"s_mov_b32 {s(sWQ+3)}, 0x20000")
    A.e(f"s_lshl_b32 {s(sT0)}, {s(sB)}, 5")
    A.e(f"s_add_u32 {s(sT0)}, {s(sT0)}, {s(sH)}")
    A.e(f"s_lshl_b32 {s(sT0)}, {s(sT0)}, 18")
    for srd, p in ((sK, 82), (sV, 84)):
        A.e(f"s_add_u32 {s(srd)}, s{p}, {s(sT0)}")
        A.e(f"s_addc_u32 {s(srd+1)}, s{p+1}, 0")
        A.e(f"s_mov_b32 {s(srd+2)}, 262144")
        A.e(f"s_mov_b32 {s(srd+3)}, 0x20000")

def setup2(A):
    L = v(vLANE); t0, t1, t2, t3, t4 = [v(vT + i) for i in range(5)]
    A.e(f"v_lshrrev_b32 {t0}, 4, {L}")
    A.e(f"v_and_b32 {t1}, 15, {L}")
    A.e(f"v_lshrrev_b32 {t2}, 1, {t1}")
    A.e(f"v_xor_b32 {t2}, {t2}, {t0}")
    A.e(f"s_add_u32 {s(sT0)}, {s(sXB)}, {XS0}")
    for s2 in range(2):
        A.e(f"v_xor_b32 {t3}, {4*s2}, {t2}")
        A.e(f"v_lshlrev_b32 {t3}, 4, {t3}")
        A.e(f"v_lshl_add_u32 {t3}, {t1}, 7, {t3}")
        A.e(f"v_add_u32 {v(vXA+s2)}, {s(sT0)}, {t3}")
    A.e(f"v_lshrrev_b32 {t2}, 2, {t1}")
    A.e(f"v_and_b32 {t3}, 1, {t0}")
    A.e(f"v_lshl_add_u32 {t3}, {t3}, 2, {t2}")
    A.e(f"v_and_b32 {t4}, 3, {L}")
    A.e(f"v_lshlrev_b32 {t4}, 3, {t4}")
    tw = v(vT + 5); tv = v(vT + 6)
    A.e(f"v_lshl_add_u32 {tw}, {t0}, 3, {t2}")
    A.e(f"v_lshl_add_u32 {tw}, {tw}, 8, {t4}")
    A.e(f"v_add_u32 {tw}, {WS0}, {tw}")
    for t in range(8):
        A.e(f"v_xor_b32 {tv}, {t}, {t3}")
        A.e(f"v_lshl_add_u32 {v(vWA+t)}, {tv}, 5, {tw}")
    A.e(f"v_lshlrev_b32 {v(vOO)}, 4, {L}")
    A.e(f"s_mul_i32 {s(sT0)}, {s(sB)}, 15")
    A.e(f"s_lshl_b32 {s(sT1)}, {s(sW)}, 2")
    A.e(f"s_add_u32 {s(sT0)}, {s(sT0)}, {s(sT1)}")
    A.e(f"s_lshl_b32 {s(sT0)}, {s(sT0)}, 17")
    A.e(f"s_lshl_b32 {s(sT1)}, {s(sH)}, 12")
    A.e(f"s_add_u32 {s(sT0)}, {s(sT0)}, {s(sT1)}")
    A.e(f"s_add_u32 {s(sO)}, s94, {s(sT0)}")
    A.e(f"s_addc_u32 {s(sO+1)}, s95, 0")
    A.e(f"s_mov_b32 {s(sO+2)}, {3*131072 + 4096}")
    A.e(f"s_mov_b32 {s(sO+3)}, 0x20000")
    A.e(f"s_mov_b32 {s(sWO)}, s88")
    A.e(f"s_mov_b32 {s(sWO+1)}, s89")
    A.e(f"s_mov_b32 {s(sWO+2)}, {4096*1152}")
    A.e(f"s_mov_b32 {s(sWO+3)}, 0x20000")
    A.e(f"s_add_u32 {s(sWP)}, s94, {WS_WO}")
    A.e(f"s_addc_u32 {s(sWP+1)}, s95, 0")
    A.e(f"s_mov_b32 {s(sWP+2)}, {36*131072}")
    A.e(f"s_mov_b32 {s(sWP+3)}, 0x20000")
    A.e(f"s_mov_b32 {s(sSC)}, {f32hex(SCALE)}")
    A.e(f"s_mov_b32 {s(sSC+1)}, {f32hex(SCALE)}")
    A.e(f"s_mov_b32 {s(sSECOND)}, 0")

def attn_addr_init(A):
    L = v(vLANE); t0, t1, t2, t3, t4 = [v(vT + i) for i in range(5)]
    A.e(f"v_lshrrev_b32 {t0}, 4, {L}")
    A.e(f"v_and_b32 {t1}, 15, {L}")
    A.e(f"v_xor_b32 {t2}, {t0}, {t1}")
    for s_ in range(4):
        A.e(f"v_xor_b32 {t3}, {4*s_}, {t2}")
        A.e(f"v_lshlrev_b32 {t3}, 4, {t3}")
        A.e(f"v_lshl_add_u32 {v(vKA+s_)}, {t1}, 8, {t3}")
    A.e(f"v_lshrrev_b32 {t2}, 2, {t1}")
    A.e(f"v_and_b32 {t3}, 1, {t0}")
    A.e(f"v_lshl_add_u32 {t3}, {t3}, 2, {t2}")
    A.e(f"v_and_b32 {t4}, 3, {L}")
    A.e(f"v_lshlrev_b32 {t4}, 3, {t4}")
    tw = v(vT + 5); tv = v(vT + 6)
    A.e(f"v_lshl_add_u32 {tw}, {t0}, 2, {t2}")
    A.e(f"v_lshl_add_u32 {tw}, {tw}, 8, {t4}")
    A.e(f"v_add_u32 {tw}, {VRING + 4*SLOT}, {tw}")
    for t in range(8):
        A.e(f"v_xor_b32 {tv}, {t}, {t3}")
        A.e(f"v_lshl_add_u32 {v(vVA+t)}, {tv}, 5, {tw}")
    A.e(f"v_and_b32 {t2}, 3, {L}")
    A.e(f"v_cmp_eq_u32 vcc, 0, {t2}")
    A.e(f"v_mov_b32 {t3}, 0x3f803f80")
    A.e(f"s_mov_b32 {s(sKOFF)}, 0")
    A.e(f"s_mov_b32 {s(sPREV)}, {4*SLOT}")
    for i in range(4): A.e(f"v_cndmask_b32 {v(vONE+i)}, 0, {t3}, vcc")
    A.e(f"s_add_u32 {s(sKSO)}, {s(sW4K)}, {5*SLOT}")
    A.e(f"s_add_u32 {s(sVSO)}, {s(sW4K)}, {4*SLOT}")

def x_own(kc):
    ops = []
    for j in range(8):
        if j % 4 == 0: ops.append(("sal", f"s_add_u32 m0, {s(sXB)}, {XS(kc) + 1024*j}"))
        ops.append(("mem", lambda A, j=j: dma(A, vXD + j, sX, s(sXO), 1024 * (j % 4), ("x", kc), CFG["nt_x"])))
    return [("sal", f"s_mov_b32 {s(sXO)}, {128*kc}")] + ops
def x_extra(kc):
    ops = [("sal", f"s_mov_b32 {s(sXO)}, {128*kc}"), ("sal", f"s_add_u32 m0, {s(sXE)}, {XS(kc)}")]
    for j in range(2):
        ops.append(("mem", lambda A, j=j: dma(A, vXD + 8 + j, sX, s(sXO), 1024 * j, ("xe", kc), CFG["nt_x"])))
    return ops
def wq_ops(kc):
    ops = [("sal", f"s_mov_b32 {s(sWO_OFF)}, {64*8192*kc}")]
    for j in range(6):
        if j % 3 == 0: ops.append(("sal", f"s_add_u32 m0, {s(sWB)}, {WS(kc) + 1024*j}"))
        ops.append(("mem", lambda A, j=j: dma(A, vWD + j, sWQ, s(sWO_OFF), 1024 * (j % 3), ("wq", kc), CFG["nt_x"])))
    return ops
def kv_ops(kind, n):
    base = (KRING if kind == "K" else VRING) + SLOT * (n % 5)
    g = kv_group(kind, f"s_add_u32 m0, {s(sW4K)}, {base}", s(sT3), (kind, n))
    return [("sal", f"s_add_u32 {s(sT3)}, {s(sW4K)}, {n*SLOT}"), ("sal", g[0])] + [("mem", x) for x in g[1:]]
def emit_ops(A, ops):
    prev = None
    for kind, o in ops:
        if kind == "mem" and prev == "m0": A.e("s_nop 0")
        if isinstance(o, str): A.e(o)
        else: o(A)
        prev = "m0" if isinstance(o, str) and " m0," in o else kind
def place_ops(slots, positions, ops):
    pend = []; k = 0
    for kind, o in ops:
        if kind == "sal": pend.append(o)
        else:
            p = positions[k]; k += 1
            if pend:
                if slots[p-1].mem: slots[p-1].valu += pend
                else: slots[p-1].sal += pend
                pend = []
            slots[p].mem.append(o)
    return k

def wo_gather_ops():
    ops = []
    for i in range(5):
        for j in range(8):
            reg = a(aWG + 4 * i + j // 2) if j % 2 else v(vWG + 4 * i + j // 2)
            hi = "_hi" if j % 2 else ""
            vo = vT + (j // 4)
            ops.append(("mem", lambda A, reg=reg, hi=hi, vo=vo, i=i, j=j: A.vmem(
                f"buffer_load_short_d16{hi} {reg}, {v(vo)}, {s(sWO,4)}, {s(sT2)} offen offset:{1152*(j%4) + 128*i}", "wg")))
    return ops
def wo_gather_setup(A):
    L = v(vLANE)
    A.e(f"v_lshrrev_b32 {v(vT)}, 4, {L}")
    A.e(f"v_mul_u32_u24 {v(vT)}, {4*1152}, {v(vT)}")
    A.e(f"v_and_b32 {v(vT+1)}, 15, {L}")
    A.e(f"v_lshl_add_u32 {v(vT)}, {v(vT+1)}, 1, {v(vT)}")
    A.e(f"v_add_u32 {v(vT+1)}, {16*1152}, {v(vT)}")
    A.e(f"s_lshr_b32 {s(sT2)}, s2, 1")
    A.e(f"s_mul_i32 {s(sT2)}, {s(sT2)}, {32*1152}")
    A.e(f"s_and_b32 {s(sT0)}, s2, 1")
    A.e(f"s_mul_i32 {s(sT0)}, {s(sT0)}, 18")
    A.e(f"s_add_u32 {s(sT0)}, {s(sT0)}, {s(sW)}")
    A.e(f"s_lshl_b32 {s(sT0)}, {s(sT0)}, 5")
    A.e(f"s_add_u32 {s(sT2)}, {s(sT2)}, {s(sT0)}")
def wo_store(A):
    A.e(f"s_and_b32 {s(sT0)}, s2, 1")
    A.e(f"s_mul_i32 {s(sT0)}, {s(sT0)}, 18")
    A.e(f"s_add_u32 {s(sT0)}, {s(sT0)}, {s(sW)}")
    A.e(f"s_lshl_b32 {s(sT0)}, {s(sT0)}, 17")
    A.e(f"s_lshr_b32 {s(sT1)}, s2, 1")
    A.e(f"s_lshl_b32 {s(sT1)}, {s(sT1)}, 10")
    A.e(f"s_add_u32 {s(sT0)}, {s(sT0)}, {s(sT1)}")
    for r in range(20): A.e(f"v_accvgpr_read_b32 {v(vC+r)}, {a(aWG+r)}")
    A.e(f"s_mov_b32 {s(sT1)}, 0xffff")
    for r in range(20): A.e(f"v_bfi_b32 {v(vC+r)}, {s(sT1)}, {v(vWG+r)}, {v(vC+r)}")
    for i in range(5):
        if i == 4:
            A.e(f"s_cmp_ge_u32 {s(sW)}, 2")
            A.e(f"s_cselect_b32 {s(sT0)}, {36*131072}, {s(sT0)}")
        A.vmem(f"buffer_store_dwordx4 {v(vC+4*i,4)}, {v(vOO)}, {s(sWP,4)}, {s(sT0)} offen", "st")
        if i < 4: A.e(f"s_add_u32 {s(sT0)}, {s(sT0)}, {4*131072}")

def qproj(A, nq):
    main = nq == 4
    if main:
        emit_ops(A, wq_ops(0) + x_own(0) + x_extra(0) + wq_ops(1) + x_own(1) + x_extra(1) + wq_ops(2))
    else:
        L = v(vLANE); t0, t1, t2 = v(vT), v(vT+1), v(vT+2)
        if CFG["touch"]:
            A.e(f"v_and_b32 {t0}, 31, {L}")
            A.e(f"v_min_u32 {t0}, 29, {t0}")
            A.e(f"v_mul_u32_u24 {t0}, 1152, {t0}")
            A.e(f"v_lshrrev_b32 {t1}, 5, {L}")
            A.e(f"v_lshl_add_u32 {t0}, {t1}, 7, {t0}")
            A.e(f"s_and_b32 {s(sT0)}, {s(sH)}, 7")
            A.e(f"s_mul_i32 {s(sT0)}, {s(sT0)}, {30*1152}")
            A.e(f"v_and_b32 {t2}, 31, {L}")
            A.e(f"v_lshrrev_b32 {t2}, 1, {t2}")
            A.e(f"v_lshl_add_u32 {t2}, {t1}, 6, {t2}")
            A.e(f"v_lshlrev_b32 {t2}, 13, {t2}")
            A.e(f"v_and_b32 {t1}, 1, {L}")
            A.e(f"v_lshl_add_u32 {t2}, {t1}, 7, {t2}")
            A.e(f"s_and_b32 {s(sT1)}, {s(sB)}, 3")
            A.e(f"s_lshl_b32 {s(sT1)}, {s(sT1)}, 17")
            A.e(f"s_add_u32 {s(sT1)}, {s(sT1)}, {3*64*8192}")
            for i in range(4):
                c = min(2 + 2 * i, 7)
                A.vmem(f"buffer_load_dword {v(vWG+i)}, {t0}, {s(sX,4)}, {s(sT0)} offen offset:{128*c}{CFG['nt_x']}", "touch")
                if i < 3:
                    A.vmem(f"buffer_load_dword {v(vWG+4+i)}, {t2}, {s(sWQ,4)}, {s(sT1)} offen{CFG['nt_x']}", "touch")
                    A.e(f"s_add_u32 {s(sT1)}, {s(sT1)}, {2*64*8192}")
        for kind, n in (("K", 0), ("K", 1), ("V", 0)):
            for w in range(4):
                base = (KRING if kind == "K" else VRING) + SLOT * n + 4096 * w
                g = kv_group(kind, f"s_mov_b32 m0, {base}", s(sT3), (kind, n))
                emit_ops(A, [("sal", g[0]), ("sal", f"s_mov_b32 {s(sT3)}, {n*SLOT + 4096*w}")] + [("mem", x) for x in g[1:]])
    setup2(A)
    wo_gather_setup(A)
    NS = 16 * nq
    BAR = 12 * nq
    LEAD = NS - BAR
    slots = [Slot() for _ in range(LEAD + 9 * NS)]
    def G(kc, i): return LEAD + kc * NS + i
    for kc in range(9):
        bb = aQB + 32 * (kc % 2)
        for i in range(NS):
            f, qt = i // nq, i % nq
            s2, t = f // 8, f % 8
            d = v(vACC + 32 * qt + 4 * t, 4)
            slots[G(kc, i)].m = mfma(d, a(aQA + 4 * f, 4), a(bb + 8 * qt + 4 * s2, 4), d if (kc or s2) else "0")
        def rdA(f, j, kc=kc):
            s2, t = f // 8, f % 8
            off = WS(kc) - WS0 + (32 * s2 + 4 * j) * 256
            return lambda A: A.ds(f"ds_read_b64_tr_b16 {a(aQA + 4*f + 2*j, 2)}, {v(vWA+t)} offset:{off}", ("A", kc, f, j))
        def rdB(qt, s2, kc=kc, bb=bb):
            off = XS(kc) - XS0 + 2048 * qt
            return lambda A: A.ds(f"ds_read_b128 {a(bb + 8*qt + 4*s2, 4)}, {v(vXA+s2)} offset:{off}", ("B", kc, qt, s2))
        head = [rdB(0, 0), rdA(0, 0), rdA(0, 1)] + [rdB(q, 0) for q in range(1, nq)] + [rdA(1, 0), rdA(1, 1), rdA(2, 0), rdA(2, 1)] \
             + [rdB(q, 1) for q in range(nq)] + [rdA(3, 0), rdA(3, 1)]
        p0 = G(kc, -LEAD)
        for k, r in enumerate(head):
            slots[p0 + k * LEAD // len(head)].mem.append(r)
        rest = [rdA(f, j) for f in range(4, 16) for j in range(2)]
        span = BAR - 2 * nq
        for k, r in enumerate(rest):
            slots[G(kc, k * span // len(rest))].mem.append(r)
        slots[G(kc, -1)].valu.append(lambda A, kc=kc: A.wait_lds(("B", kc, nq - 1, 0)))
        for f in range(1, 16):
            tag = ("A", kc, f, 1)
            if f == 3: tag = ("A", kc, 3, 1)
            slots[G(kc, f * nq - 1)].sal.append(lambda A, tag=tag: A.wait_lds(tag))
        def bar(A, kc=kc):
            if main: A.wait_vm(("xe", kc))
            A.e("s_waitcnt lgkmcnt(0)")
            A.e("s_barrier")
            if kc == 0: stamp(A, "bm1")
        slots[p0].sal.insert(0, bar)
        early = []; late = []
        if main:
            if 1 <= kc <= 7: early += x_extra(kc + 1)
            if 1 <= kc <= 6: early += wq_ops(kc + 2)
            if kc <= 6: late += x_own(kc + 2)
        if kc == 7: early += wo_gather_ops() + kv_ops("K", 2)
        if kc == 8: early += kv_ops("V", 1) + kv_ops("K", 3) + kv_ops("V", 2)
        ne = sum(1 for k, _ in early if k == "mem"); nl = sum(1 for k, _ in late if k == "mem")
        if late:
            pe = [p0 + 1 + 2 * k for k in range(ne)]
            pl = [G(kc, 3 * nq + 1 + 3 * k) for k in range(nl)]
            place_ops(slots, pe, early); place_ops(slots, pl, late)
        elif early:
            tot = NS - 4
            pe = [p0 + 1 + k * tot // ne for k in range(ne)]
            place_ops(slots, pe, early)
    def bar8(A):
        if not main: A.wait_vm(("K", 0))
        A.e("s_waitcnt lgkmcnt(0)")
        A.e("s_barrier")
    p8 = G(8, BAR)
    slots[p8].sal.insert(0, bar8)
    place_ops(slots, [p8 + 1 + k for k in range(8)], kv_ops("K", 4) + kv_ops("V", 3))
    emit_slots(A, slots)

def qconvert(A, nq):
    A.e("s_nop 7")
    for qt in range(nq):
        for u in range(4):
            src = vACC + 32 * qt + 8 * u; dst = vQ + 16 * qt + 4 * u
            for j in range(4):
                A.e(f"v_pk_mul_f32 {v(src+2*j,2)}, {v(src+2*j,2)}, {s(sSC,2)}")
            for j in range(4):
                A.e(f"v_cvt_pk_bf16_f32 {v(dst+j)}, {v(src+2*j)}, {v(src+2*j+1)}")
        for u in range(4):
            dst = vQ + 16 * qt + 4 * u
            if u == 0: A.e("s_nop 0")
            A.e(f"v_permlane32_swap_b32 {v(dst)}, {v(dst+2)}")
            A.e(f"v_permlane32_swap_b32 {v(dst+1)}, {v(dst+3)}")
        for u in range(4):
            dst = vQ + 16 * qt + 4 * u
            A.e(f"v_permlane16_swap_b32 {v(dst)}, {v(dst+2)}")
            A.e(f"v_permlane16_swap_b32 {v(dst+1)}, {v(dst+3)}")

def k_read(T, f):
    kt, s_ = f // 4, f % 4
    off = 8192 * (T % 2) + 4096 * kt
    return lambda A: A.ds(f"ds_read_b128 {a(aK+4*f,4)}, {v(vKA+s_)} offset:{off}", ("K", f))
def v_read(T, i):
    t, j = i // 2, i % 2
    off = 8192 * (T % 2) + 4096 * j
    return lambda A: A.ds(f"ds_read_b64_tr_b16 {a(aV+4*t+2*j,2)}, {v(vVA+t)} offset:{off}", ("V", i))
def qk_list(T, nq, czero=False):
    if CFG["qkorder"] == "A": order = [(kt, s_, qt) for kt in range(2) for s_ in range(4) for qt in range(nq)]
    else: order = [(kt, s_, qt) for qt in range(nq) for kt in range(2) for s_ in range(4)]
    out = []
    for kt, s_, qt in order:
        d = v(vS + 32 * (T % 2) + 8 * qt + 4 * kt, 4)
        c = d if s_ else ("0" if czero else v(vC + 4 * qt, 4))
        out.append(mfma(d, a(aK + 4 * (4 * kt + s_), 4), v(vQ + 16 * qt + 4 * s_, 4), c))
    return out

def crosslane_max(A, regs, tmp):
    for sw in ("v_permlane32_swap_b32", "v_permlane16_swap_b32"):
        for i, r in enumerate(regs): A.e(f"v_mov_b32 {v(tmp+i)}, {v(r)}")
        A.e("s_nop 1")
        for i, r in enumerate(regs): A.e(f"{sw} {v(tmp+i)}, {v(r)}")
        A.e("s_nop 1")
        for i, r in enumerate(regs): A.e(f"v_max_f32 {v(r)}, {v(r)}, {v(tmp+i)}")

def zero_acc(A, nq):
    for r in range(32 * nq): A.e(f"v_accvgpr_write_b32 {a(aO+r)}, 0")
    for r in range(4 * nq): A.e(f"v_accvgpr_write_b32 {a(aL+r)}, 0")

def first_tile(A, nq):
    for f in range(8): k_read(0, f)(A)
    zero_acc(A, nq)
    A.e("s_waitcnt lgkmcnt(0)")
    for m in qk_list(0, nq, czero=True): A.e(m)
    A.e("s_nop 7")
    for qt in range(nq):
        b = vS + 8 * qt; c = vC + 4 * qt
        A.e(f"v_max3_f32 {v(c)}, {v(b)}, {v(b+1)}, {v(b+2)}")
        A.e(f"v_max3_f32 {v(c+1)}, {v(b+3)}, {v(b+4)}, {v(b+5)}")
        A.e(f"v_max3_f32 {v(c)}, {v(c)}, {v(b+6)}, {v(b+7)}")
        A.e(f"v_max_f32 {v(c)}, {v(c)}, {v(c+1)}")
    crosslane_max(A, [vC + 4 * qt for qt in range(nq)], vT)
    for qt in range(nq):
        b = vS + 8 * qt; c = vC + 4 * qt
        for e in range(8): A.e(f"v_sub_f32 {v(b+e)}, {v(b+e)}, {v(c)}")
        for e in (3, 2, 1, 0): A.e(f"v_sub_f32 {v(c+e)}, 0, {v(c)}")

def attn_slots(nq):
    P = 17 * nq
    NT = 34
    slots = [Slot() for _ in range(NT * P)]
    E = [2 * e - 4 for e in range(8 * nq)]
    Em = set(x % P for x in E)
    others = [j for j in range(P) if j not in Em]
    BARP = 8 * nq - 2
    aft = [j for j in others if j > BARP]
    kpos = aft[:8]; dpos = aft[8:12]
    seq = aft[12:] + [j + P for j in others if j < BARP]
    if nq == 4: vpos = [x for x in seq if x % 2 == 1][:16]
    else: vpos = [seq[i // 2] for i in range(16)]
    assert vpos[-1] + 6 <= P + BARP, vpos
    used2 = {}
    for T in range(NT):
        g = T * P
        if T < 32:
            for i, m in enumerate(qk_list(T, nq)): slots[g + i].m = m
        if 0 < T <= 32: slots[g - 1].sal.append(lambda A: A.wait_lds(("K", 7)))
        Tp = T - 2
        if 0 <= Tp < 32:
            pb = vP + 16 * (Tp % 2)
            k = 8 * nq
            for t in range(8):
                for qt in range(nq):
                    d = a(aO + 32 * qt + 4 * t, 4)
                    slots[g + k].m = mfma(d, a(aV + 4 * t, 4), v(pb + 4 * qt, 4), d); k += 1
            for qt in range(nq):
                d = a(aL + 4 * qt, 4)
                slots[g + k].m = mfma(d, v(vONE, 4), v(pb + 4 * qt, 4), d); k += 1
            for i in range(16): slots[g - P + vpos[i]].mem.append(v_read(Tp, i))
            slots[g + BARP].sal.append(lambda A: A.wait_lds(("V", 15)))
        Ts = T - 1
        if 0 <= Ts < 32:
            sb = vS + 32 * (Ts % 2); pb = vP + 16 * (Ts % 2)
            for e in range(8 * nq):
                slots[g + E[e]].valu.append(f"v_exp_f32 {v(sb+e)}, {v(sb+e)}")
                if e % 2:
                    slots[g + E[e] + 1].valu.append(f"v_cvt_pk_bf16_f32 {v(pb+e//2)}, {v(sb+e-1)}, {v(sb+e)}")
        if T < 32:
            for f in range(8): slots[g + kpos[f]].mem.append(k_read(T + 1, f))
        if T < 32 and T % 2 == 1:
            slots[g + BARP].sal += ["s_waitcnt vmcnt(24)", "s_barrier"]
            sal = [f"s_add_u32 {s(sNEXT)}, {s(sKOFF)}, {SLOT}", f"s_cmp_eq_u32 {s(sNEXT)}, {5*SLOT}",
                   f"s_cselect_b32 {s(sNEXT)}, 0, {s(sNEXT)}", f"s_sub_u32 {s(sDK)}, {s(sNEXT)}, {s(sKOFF)}",
                   f"s_sub_u32 {s(sDV)}, {s(sKOFF)}, {s(sPREV)}", f"s_add_u32 {s(sVD)}, {s(sPREV)}, {VRING}",
                   f"s_add_u32 {s(sVD)}, {s(sVD)}, {s(sW4K)}", f"s_mov_b32 {s(sPREV)}, {s(sKOFF)}",
                   f"s_mov_b32 {s(sKOFF)}, {s(sNEXT)}"]
            for i, x in enumerate(sal): slots[g + i].sal.append(x)
            cv = set((x + 1) % P for k, x in enumerate(E) if k % 2)
            free = [j for j in others if j not in cv]
            kfree = [j for j in free if 5 < j < kpos[0]][:4]
            assert len(kfree) == 4, kfree
            for i in range(4): slots[g + kfree[i]].valu.append(f"v_add_u32 {v(vKA+i)}, {s(sDK)}, {v(vKA+i)}")
            vfree = [j for j in free if vpos[-1] - P < j < vpos[0] and j not in kfree]
            while len(vfree) < 8: vfree = sorted(vfree + vfree[:8 - len(vfree)])
            for i in range(8): slots[g + vfree[i]].valu.append(f"v_add_u32 {v(vVA+i)}, {s(sDV)}, {v(vVA+i)}")
            grp = kv_group("K", f"s_add_u32 m0, {s(sPREV)}, {s(sW4K)}", s(sKSO), "kv")
            slots[g + dpos[0] - 1].sal.append(grp[0])
            for i in range(4): slots[g + dpos[i]].mem.append(grp[1 + i])
            slots[g + dpos[3] + 1].sal.append(f"s_add_u32 {s(sKSO)}, {s(sKSO)}, {SLOT}")
        if 2 <= T < 32 and T % 2 == 0:
            grp = kv_group("V", f"s_mov_b32 m0, {s(sVD)}", s(sVSO), "kv")
            slots[g + dpos[0] - 1].sal.append(grp[0])
            for i in range(4): slots[g + dpos[i]].mem.append(grp[1 + i])
            slots[g + dpos[3] + 1].sal.append(f"s_add_u32 {s(sVSO)}, {s(sVSO)}, {SLOT}")
    return slots, P

def fix_nomfma(slots):
    for i, sl in enumerate(slots):
        if sl.m is None and (sl.valu or sl.mem):
            sl.sal.insert(0, "s_nop 0")

def attention(A, nq):
    R = f"q{nq}"
    slots, P = attn_slots(nq)
    for i in range(8 * nq): slots[i].m = None
    A.label(f"L_attn_{R}")
    pro = slots[8 * nq:2 * P]; fix_nomfma(pro)
    for sl in slots[:8 * nq]:
        for f in sl.mem: f(A)
    emit_slots(A, pro)
    A.e(f"s_mov_b32 {s(sCNT)}, 15")
    stamp(A, "loop")
    texts = []
    for n in (1, 2, 15):
        B = Asm(); B.lds = list(A.lds); B.vm = list(A.vm)
        if n > 1: emit_slots(B, slots[2 * (n - 1) * P:2 * n * P]); B.lines = []
        emit_slots(B, slots[2 * n * P:2 * (n + 1) * P]); texts.append(B.text())
    if not (texts[0] == texts[1] == texts[2]):
        import difflib
        for x, y in ((0, 1), (1, 2)):
            print("".join(difflib.unified_diff(texts[x].splitlines(True), texts[y].splitlines(True), n=1)))
        raise SystemExit("steady state mismatch")
    A.raw(".p2align 6")
    A.label(f"L_loop_{R}")
    body = slots[2 * P:4 * P]
    body[-3].sal.append(f"s_sub_u32 {s(sCNT)}, {s(sCNT)}, 1")
    body[-2].sal.append(f"s_cmp_lg_u32 {s(sCNT)}, 0")
    emit_slots(A, body)
    A.e(f"s_cbranch_scc1 L_loop_{R}")
    stamp(A, "loopend")
    epi = slots[32 * P:]; fix_nomfma(epi)
    emit_slots(A, epi)
    stamp(A, "pvdone")

def epilogue(A, nq):
    R = f"q{nq}"
    A.e("s_nop 7")
    for qt in range(nq): A.e(f"v_accvgpr_read_b32 {v(vT+qt)}, {a(aL+4*qt)}")
    A.e(f"s_mov_b32 {s(sT0)}, {f32hex(2.0**40)}")
    A.e(f"s_mov_b64 {s(sT2+1,2)}, 0") if False else None
    A.e(f"v_mov_b32 {v(vT+4)}, 0")
    for qt in range(nq):
        A.e(f"v_cmp_nlt_f32 vcc, {v(vT+qt)}, {v(vT+5)}") if False else None
        A.e(f"v_cmp_ngt_f32 vcc, {s(sT0)}, {v(vT+qt)}")
        A.e("s_nop 1")
        A.e(f"v_cndmask_b32 {v(vT+4)}, {v(vT+4)}, 1, vcc") if False else A.e(f"v_addc_co_u32 {v(vT+4)}, vcc, 0, {v(vT+4)}, vcc")
    A.e(f"v_lshlrev_b32 {v(vT+5)}, 2, v0")
    A.ds(f"ds_write_b32 {v(vT+5)}, {v(vT+4)} offset:{KRING + 1*SLOT}", "flag")
    for qt in range(nq): A.e(f"v_rcp_f32 {v(vT+qt)}, {v(vT+qt)}")
    for qt in range(nq):
        if qt: A.e(f"s_mov_b32 {s(sT1)}, {qt*131072}")
        for u in range(4):
            tb = vS + 8 * ((qt * 4 + u) % 8); pb = vP + 4 * ((qt * 4 + u) % 8)
            for j in range(8): A.e(f"v_accvgpr_read_b32 {v(tb+j)}, {a(aO + 32*qt + 8*u + j)}")
            for j in range(8): A.e(f"v_mul_f32 {v(tb+j)}, {v(tb+j)}, {v(vT+qt)}")
            for j in range(4): A.e(f"v_cvt_pk_bf16_f32 {v(pb+j)}, {v(tb+2*j)}, {v(tb+2*j+1)}")
            so = s(sT1) if qt else "0"
            A.vmem(f"buffer_store_dwordx4 {v(pb,4)}, {v(vOO)}, {s(sO,4)}, {so} offen offset:{1024*u}", "st")
    wo_store(A)
    A.e("s_waitcnt lgkmcnt(0)")
    A.e("s_barrier")
    A.e(f"v_lshlrev_b32 {v(vT+5)}, 4, {v(vLANE)}")
    A.e(f"ds_read_b128 {v(24,4)}, {v(vT+5)} offset:{KRING + 1*SLOT}")
    A.e("s_waitcnt lgkmcnt(0)")
    A.e(f"v_or_b32 v24, v24, v25")
    A.e(f"v_or3_b32 v24, v24, v26, v27")
    A.e(f"v_cmp_ne_u32 vcc, 0, v24")
    A.e(f"s_cmp_lg_u32 {s(sSECOND)}, 0")
    A.e(f"s_cbranch_scc1 L_done_{R}")
    A.e("s_nop 2")
    A.e(f"s_cbranch_vccnz L_fallback_{R}")
    A.label(f"L_done_{R}")

def fallback(A, nq):
    R = f"q{nq}"
    A.label(f"L_fallback_{R}")
    A.e(f"s_mov_b32 {s(sSECOND)}, 1")
    attn_addr_init(A)
    for qt in range(nq): A.e(f"v_mov_b32 {v(vC+4*qt)}, 0xff800000")
    A.e(f"s_mov_b32 {s(sT3)}, {s(sW4K)}")
    A.e(f"s_mov_b32 {s(sCNT)}, 16")
    A.e("s_waitcnt vmcnt(0)")
    A.label(f"L_fb_loop_{R}")
    A.e("s_barrier")
    g = kv_group("K", f"s_mov_b32 m0, {s(sW4K)}", s(sT3), "fb")
    emit_ops(A, [("sal", g[0])] + [("mem", x) for x in g[1:]])
    A.e("s_waitcnt vmcnt(0)")
    A.e("s_barrier")
    for T in range(2):
        for f in range(8): k_read(T, f)(A)
        A.e("s_waitcnt lgkmcnt(0)")
        for m in qk_list(T, nq, czero=True): A.e(m)
        A.e("s_nop 7")
        for qt in range(nq):
            b = vS + 32 * T + 8 * qt; c = vC + 4 * qt
            for e in range(0, 8, 2): A.e(f"v_max3_f32 {v(c)}, {v(c)}, {v(b+e)}, {v(b+e+1)}")
    A.e(f"s_add_u32 {s(sT3)}, {s(sT3)}, {SLOT}")
    A.e(f"s_sub_u32 {s(sCNT)}, {s(sCNT)}, 1")
    A.e(f"s_cmp_lg_u32 {s(sCNT)}, 0")
    A.e(f"s_cbranch_scc1 L_fb_loop_{R}")
    crosslane_max(A, [vC + 4 * qt for qt in range(nq)], vT)
    for qt in range(nq):
        c = vC + 4 * qt
        for e in (3, 2, 1, 0): A.e(f"v_sub_f32 {v(c+e)}, 0, {v(c)}")
    A.e("s_barrier")
    for kind, n in (("K", 0), ("K", 1), ("V", 0), ("K", 2), ("V", 1), ("K", 3), ("V", 2), ("K", 4), ("V", 3)):
        emit_ops(A, kv_ops(kind, n))
    zero_acc(A, nq)
    A.e("s_waitcnt vmcnt(0)")
    A.e("s_barrier")
    for f in range(8): k_read(0, f)(A)
    A.e("s_waitcnt lgkmcnt(0)")
    for m in qk_list(0, nq): A.e(m)
    A.e("s_nop 7")
    A.e(f"s_branch L_attn_{R}")

def write_stamps(A):
    if not CFG["stamps"]: return
    A.e("s_waitcnt vmcnt(0)")
    stamp(A, "end")
    A.e(f"s_add_u32 {s(sST)}, s94, {WS_STAMP}")
    A.e(f"s_addc_u32 {s(sST+1)}, s95, 0")
    A.e(f"s_mov_b32 {s(sST+2)}, 0x100000")
    A.e(f"s_mov_b32 {s(sST+3)}, 0x20000")
    A.e(f"s_lshl_b32 {s(sT0)}, s2, 2")
    A.e(f"s_add_u32 {s(sT0)}, {s(sT0)}, {s(sW)}")
    A.e(f"s_lshl_b32 {s(sT0)}, {s(sT0)}, 6")
    A.e("s_waitcnt lgkmcnt(0)")
    A.e(f"v_mov_b32 v2, {s(sT0)}")
    for i in range(len(STAMPS)):
        A.e(f"v_mov_b32 v3, {s(64+2*i)}")
        A.e(f"buffer_store_dword v3, v2, {s(sST,4)}, 0 offen offset:{4*i}")

def k1():
    A = Asm()
    A.raw(".globl attn_kernel\n.p2align 8\n.type attn_kernel,@function\nattn_kernel:")
    setup(A)
    A.e(f"s_cmp_eq_u32 {s(sW)}, 3")
    A.e("s_cbranch_scc1 L_role_q3")
    out = A.text()
    for nq in (4, 3):
        A = Asm()
        A.label(f"L_role_q{nq}")
        qproj(A, nq)
        stamp(A, "qdone")
        qconvert(A, nq)
        attn_addr_init(A)
        stamp(A, "qconv")
        first_tile(A, nq)
        attention(A, nq)
        epilogue(A, nq)
        write_stamps(A)
        A.e("s_endpgm")
        fallback(A, nq)
        out += A.text()
    out += "L_k1_end:\n    s_endpgm\n"
    return out

def k2():
    A = Asm()
    A.raw(".globl oproj_kernel\n.p2align 8\n.type oproj_kernel,@function\noproj_kernel:")
    D = 6
    A.e("s_cmp_ge_u32 s2, 240")
    A.e("s_cbranch_scc1 L_k2_end")
    A.e("s_load_dwordx2 s[4:5], s[0:1], 56")
    A.e("s_load_dwordx2 s[6:7], s[0:1], 40")
    A.e("v_and_b32 v1, 63, v0")
    A.e("v_lshrrev_b32 v2, 6, v0")
    A.e("s_and_b32 s20, s2, 7")
    A.e("v_readfirstlane_b32 s19, v2")
    A.e("s_lshr_b32 s21, s2, 3")
    A.e("s_mul_i32 s22, s21, 43")
    A.e("s_lshr_b32 s22, s22, 8")
    A.e("s_mul_i32 s23, s22, 6")
    A.e("s_sub_u32 s23, s21, s23")
    A.e("s_lshr_b32 s24, s20, 1")
    A.e("s_mul_i32 s24, s24, 5")
    A.e("s_add_u32 s22, s22, s24")
    A.e("s_and_b32 s24, s20, 1")
    A.e("s_mul_i32 s24, s24, 6")
    A.e("s_add_u32 s23, s23, s24")
    A.e("v_lshlrev_b32 v3, 4, v0")
    for i in range(1, 6): A.e(f"v_add_u32 v{3+i}, {i*131072}, v3")
    A.e("s_waitcnt lgkmcnt(0)")
    A.e(f"s_mul_i32 s24, s22, {6*131072}")
    A.e("s_add_u32 s8, s4, s24"); A.e("s_addc_u32 s9, s5, 0"); A.e(f"s_mov_b32 s10, {6*131072}"); A.e("s_mov_b32 s11, 0x20000")
    A.e(f"s_mul_i32 s24, s23, {3*131072}")
    A.e(f"s_add_u32 s24, s24, {WS_WO}")
    A.e("s_add_u32 s12, s4, s24"); A.e("s_addc_u32 s13, s5, 0"); A.e(f"s_mov_b32 s14, {3*131072}"); A.e("s_mov_b32 s15, 0x20000")
    FB = 16
    def loads(st):
        b = FB + 36 * (st % D)
        ops = [lambda A: A.e(f"s_mov_b32 s25, {st*4096}")]
        for j in range(3): ops.append(lambda A, j=j: A.vmem(f"buffer_load_dwordx4 {v(b+4*j,4)}, v{3+j}, s[12:15], s25 offen", st))
        for i in range(6): ops.append(lambda A, i=i: A.vmem(f"buffer_load_dwordx4 {v(b+12+4*i,4)}, v{3+i}, s[8:11], s25 offen", st))
        return ops
    for st in range(D):
        for o in loads(st): o(A)
    for st in range(32):
        b = FB + 36 * (st % D)
        A.wait_vm(st)
        prev = loads(st - 1 + D) if 1 <= st and st - 1 + D < 32 else []
        k = 0
        for i in range(6):
            for j in range(3):
                d = a(4 * (3 * i + j), 4)
                A.e(mfma(d, v(b + 4 * j, 4), v(b + 12 + 4 * i, 4), d if st else "0"))
                if k < len(prev): prev[k](A); k += 1
                if k == 1: prev[k](A); k += 1
    A.e("s_nop 7")
    A.e("v_lshlrev_b32 v10, 4, v1")
    A.e(f"s_mul_i32 s24, s19, {18*1024}")
    A.e("v_add_u32 v11, s24, v10")
    for t in range(18): A.e(f"ds_write_b128 v11, {a(4*t,4)} offset:{1024*t}")
    A.e("s_mov_b32 s16, s6"); A.e("s_mov_b32 s17, s7"); A.e(f"s_mov_b32 s18, {1920*1152}")
    A.e("s_lshl_b32 s24, s19, 10")
    A.e("v_add_u32 v11, s24, v10")
    A.e(f"v_add_u32 v14, {36*1024}, v11")
    A.e("s_mov_b32 s26, s19")
    A.e("s_mov_b32 s19, 0x20000")
    A.e("v_and_b32 v12, 15, v1")
    A.e("v_mul_u32_u24 v12, 1152, v12")
    A.e("v_lshrrev_b32 v13, 4, v1")
    A.e("v_lshl_add_u32 v12, v13, 3, v12")
    A.e(f"s_mul_i32 s27, s22, {96*1152}")
    A.e(f"s_mul_i32 s28, s23, 96")
    A.e("s_add_u32 s27, s27, s28")
    A.e("s_waitcnt lgkmcnt(0)")
    A.e("s_barrier")
    for r in range(5):
        for w in range(4): A.e(f"ds_read_b128 {v(16+16*r+4*w,4)}, v{11 if w < 2 else 14} offset:{4096*r + 18*1024*(w%2)}")
    for r in range(5):
        A.e(f"s_waitcnt lgkmcnt({min(15, 4*(4-r))})")
        b = 16 + 16 * r
        for e in range(4):
            A.e(f"v_add_f32 v{b+e}, v{b+e}, v{b+4+e}")
            A.e(f"v_add_f32 v{b+8+e}, v{b+8+e}, v{b+12+e}")
        for e in range(4): A.e(f"v_add_f32 v{b+e}, v{b+e}, v{b+8+e}")
        A.e(f"v_cvt_pk_bf16_f32 v{b}, v{b}, v{b+1}")
        A.e(f"v_cvt_pk_bf16_f32 v{b+1}, v{b+2}, v{b+3}")
        A.e(f"s_add_u32 s28, s26, {4*r}")
        A.e("s_mul_i32 s29, s28, 86")
        A.e("s_lshr_b32 s29, s29, 8")
        A.e("s_mul_i32 s30, s29, 3")
        A.e("s_sub_u32 s30, s28, s30")
        A.e(f"s_mul_i32 s29, s29, {16*1152}")
        A.e("s_lshl_b32 s30, s30, 5")
        A.e("s_add_u32 s29, s29, s30")
        A.e("s_add_u32 s29, s29, s27")
        if r == 4:
            A.e("s_cmp_ge_u32 s28, 18")
            A.e(f"s_cselect_b32 s29, {1920*1152}, s29")
        A.e(f"buffer_store_dwordx2 {v(b,2)}, v12, s[16:19], s29 offen")
    A.label("L_k2_end")
    A.e("s_endpgm")
    return A.text()

hdr = open("standalone__mha_block_cached__near_ridge.s.ref").read().split("; Override launch")[0]
txt = hdr + "; @launch kernel=attn_kernel grid=(256,1,1) block=(256,1,1) lds=163840\n" \
          + "; @launch kernel=oproj_kernel grid=(240,1,1) block=(256,1,1) lds=81920\n" \
          + '.amdgcn_target "amdgcn-amd-amdhsa--gfx950"\n.text\n' + k1() + k2() \
          + '.section .rodata,"a"\n' + descriptor("attn_kernel") + descriptor("oproj_kernel", 328, 256)
open(sys.argv[1], "w").write(txt)
```

```python
import sys, struct, math
from asmlib import *

CFG = dict(nt_kv=" nt", nt_x=" nt", stamps=False, qkorder="A", touch=True, nodma=False, lin=False, nobar=False, gather=True, itst=False)
for arg in sys.argv[2:]:
    k, val = arg.split("=")
    CFG[k] = {"True": True, "False": False}.get(val, val)
    if k.startswith("nt_"): CFG[k] = (" " + val) if val not in ("", "none") else ""

def f32hex(x): return "0x%08x" % struct.unpack("<I", struct.pack("<f", x))[0]
SCALE = math.log2(math.e) / math.sqrt(128.0)

SLOT = 16384
KRING = 0
VRING = 5 * SLOT
WS0 = 2 * SLOT
XS0 = VRING + SLOT
def XS(kc): return XS0 + 32768 * ((kc + 1) % 2)
def WS(kc): return WS0 + SLOT * (kc % 3)
WS_O = 0
WS_WO = 120 * 131072
WS_STAMP = 32 << 20
sX, sWQ, sK, sV, sO, sWO, sWP = 4, 8, 12, 16, 20, 24, 28
sW, sB, sH = 32, 33, 34
sT0, sT1, sT2, sT3 = 35, 36, 37, 38
sXO, sWO_OFF = 39, 40
sKSO, sVSO = 41, 42
sKOFF, sPREV, sNEXT, sVD = 43, 44, 45, 46
sDK, sDV = 47, 48
sCNT = 49
sW4K = 50
sSECOND = 51
sXB, sXE, sWB = 52, 53, 54
sSC = 56
sST = 60
vLANE = 1
vKA = 2
vVA = 6
vKD = 14
vVD = 18
vOO = 20
vT = 21
vWA = 28
vXA = 36
vWG = 40
vXD = 192
vWD = 202
vS = 64; vP = 128; vC = 160; vONE = 176; vQ = 192; vACC = 64
aO = 0; aK = 128; aV = 160; aL = 192
aQA = 0; aQB = 64; aWG = 208

class Slot:
    def __init__(self, m=None):
        self.m = m; self.sal = []; self.mem = []; self.valu = []
def emit_slots(A, slots):
    for sl in slots:
        if sl.m: A.e(sl.m)
        for f in sl.sal + sl.mem + sl.valu:
            if isinstance(f, str): A.e(f)
            else: f(A)

nstamp = [0]
def stamp(A, name):
    if not CFG["stamps"] or name not in STAMPS: return
    i = STAMPS.index(name)
    A.e(f"s_memrealtime s[64:65]")
    A.e(f"s_memtime s[66:67]")
    A.e("s_waitcnt lgkmcnt(0)")
    A.e(f"v_writelane_b32 v63, s64, {i}")
    A.e(f"v_writelane_b32 v63, s66, {32+i}")
STAMPS = ["start", "karg", "issued", "bm1", "b0", "b1", "b2", "b3", "b6", "b7", "qdone", "qconv", "loop", "loopend", "pvdone", "end"]

def dma(A, voff, srd, soff, imm, tag, flag):
    A.vmem(f"buffer_load_dwordx4 {v(voff)}, {s(srd,4)}, {soff} offen offset:{imm}{flag} lds", tag)

def kv_group(kind, m0expr, soff, tag):
    ops = [m0expr]
    for i in range(4):
        vo = vKD + i if kind == "K" else vVD + (i & 1)
        srd = sK if kind == "K" else sV
        ops.append(lambda A, vo=vo, srd=srd, i=i: dma(A, vo, srd, soff, 1024 * i, tag, CFG["nt_kv"]))
    return ops

def setup(A):
    A.e("s_cmp_ge_u32 s2, 256")
    A.e("s_cbranch_scc1 L_k1_end")
    stamp(A, "start")
    A.e("s_load_dwordx8 s[80:87], s[0:1], 0")
    A.e("s_load_dwordx8 s[88:95], s[0:1], 32")
    A.e(f"v_and_b32 {v(vLANE)}, 63, v0")
    A.e(f"v_lshrrev_b32 {v(vT)}, 6, v0")
    A.e(f"s_and_b32 {s(sT0)}, s2, 7")
    A.e(f"v_readfirstlane_b32 {s(sW)}, {v(vT)}")
    A.e(f"s_lshr_b32 {s(sT1)}, s2, 3")
    A.e(f"s_and_b32 {s(sB)}, {s(sT0)}, 1")
    A.e(f"s_lshl_b32 {s(sB)}, {s(sB)}, 2")
    A.e(f"s_and_b32 {s(sT2)}, {s(sT1)}, 3")
    A.e(f"s_add_u32 {s(sB)}, {s(sB)}, {s(sT2)}")
    A.e(f"s_lshr_b32 {s(sH)}, {s(sT0)}, 1")
    A.e(f"s_lshl_b32 {s(sH)}, {s(sH)}, 3")
    A.e(f"s_lshr_b32 {s(sT2)}, {s(sT1)}, 2")
    A.e(f"s_add_u32 {s(sH)}, {s(sH)}, {s(sT2)}")
    A.e(f"s_lshl_b32 {s(sW4K)}, {s(sW)}, 12")
    L = v(vLANE); t0, t1, t2, t3, t4 = [v(vT + i) for i in range(5)]
    A.e(f"v_lshrrev_b32 {t0}, 4, {L}")
    A.e(f"v_and_b32 {t1}, 15, {L}")
    A.e(f"v_lshrrev_b32 {t2}, 3, {L}")
    A.e(f"v_mul_u32_u24 {t2}, 1152, {t2}")
    A.e(f"v_and_b32 {t3}, 7, {L}")
    A.e(f"v_xor_b32 {t3}, {t3}, {t0}")
    A.e(f"v_xor_b32 {t4}, 4, {t3}")
    A.e(f"v_lshl_add_u32 {t3}, {t3}, 4, {t2}")
    A.e(f"v_lshl_add_u32 {t4}, {t4}, 4, {t2}")
    A.e(f"s_mul_i32 {s(sT0)}, {s(sW)}, {8*9216}")
    for j in range(8):
        A.e(f"s_add_u32 {s(sT1)}, {s(sT0)}, {j*9216 - 1024*(j%4)}")
        A.e(f"v_add_u32 {v(vXD+j)}, {s(sT1)}, {t3 if j%2==0 else t4}")
    A.e(f"s_mul_i32 {s(sT0)}, {s(sW)}, {2*9216}")
    for j in range(2):
        A.e(f"s_add_u32 {s(sT1)}, {s(sT0)}, {(24+j)*9216 - 1024*j}")
        A.e(f"v_add_u32 {v(vXD+8+j)}, {s(sT1)}, {t3 if j%2==0 else t4}")
    A.e(f"s_lshl_b32 {s(sXB)}, {s(sW)}, 13")
    A.e(f"s_lshl_b32 {s(sXE)}, {s(sW)}, 11")
    A.e(f"s_add_u32 {s(sXE)}, {s(sXE)}, {24*1024}")
    A.e(f"s_mul_i32 {s(sWB)}, {s(sW)}, {5*1024}")
    A.e(f"v_lshlrev_b32 {t2}, 1, {t0}")
    A.e(f"v_xor_b32 {t2}, {t2}, {t1}")
    A.e(f"v_lshlrev_b32 {t2}, 4, {t2}")
    A.e(f"v_lshl_add_u32 {t2}, {t0}, 13, {t2}")
    A.e(f"s_mul_i32 {s(sT0)}, {s(sW)}, 5")
    for j in range(6):
        A.e(f"s_add_u32 {s(sT1)}, {s(sT0)}, {j}")
        A.e(f"s_lshl_b32 {s(sT2)}, {s(sT1)}, 6")
        A.e(f"s_and_b32 {s(sT2)}, {s(sT2)}, 128")
        A.e(f"s_lshl_b32 {s(sT1)}, {s(sT1)}, 15")
        A.e(f"s_sub_u32 {s(sT1)}, {s(sT1)}, {1024*(j%3)}") if j % 3 else None
        A.e(f"v_xor_b32 {v(vWD+j)}, {s(sT2)}, {t2}")
        A.e(f"v_add_u32 {v(vWD+j)}, {s(sT1)}, {v(vWD+j)}")
    A.e(f"v_xor_b32 {t2}, {t1}, {t0}")
    for i in range(4):
        A.e(f"v_xor_b32 {t3}, {4*i}, {t2}")
        A.e(f"v_lshlrev_b32 {t3}, 4, {t3}")
        A.e(f"v_lshl_add_u32 {v(vKD+i)}, {t0}, 8, {t3}")
    A.e(f"v_lshlrev_b32 {t2}, 1, {t0}")
    A.e(f"v_xor_b32 {t2}, {t2}, {t1}")
    for i in range(2):
        A.e(f"v_xor_b32 {t3}, {8*i}, {t2}")
        A.e(f"v_lshlrev_b32 {t3}, 4, {t3}")
        A.e(f"v_lshl_add_u32 {v(vVD+i)}, {t0}, 8, {t3}")
    if CFG["lin"]:
        for r in list(range(vKD, vKD+4)) + list(range(vVD, vVD+2)): A.e(f"v_lshlrev_b32 {v(r)}, 4, {L}")
    A.e("s_waitcnt lgkmcnt(0)")
    stamp(A, "karg")
    A.e(f"s_mul_i32 {s(sT0)}, {s(sB)}, 276480")
    A.e(f"s_add_u32 {s(sX)}, s80, {s(sT0)}")
    A.e(f"s_addc_u32 {s(sX+1)}, s81, 0")
    A.e(f"s_mov_b32 {s(sX+2)}, 276480")
    A.e(f"s_mov_b32 {s(sX+3)}, 0x20000")
    A.e(f"s_lshl_b32 {s(sT0)}, {s(sH)}, 8")
    A.e(f"s_add_u32 {s(sWQ)}, s86, {s(sT0)}")
    A.e(f"s_addc_u32 {s(sWQ+1)}, s87, 0")
    A.e(f"s_sub_u32 {s(sWQ+2)}, {576*8192}, {s(sT0)}")
    A.e(f"s_mov_b32 {s(sWQ+3)}, 0x20000")
    A.e(f"s_lshl_b32 {s(sT0)}, {s(sB)}, 5")
    A.e(f"s_add_u32 {s(sT0)}, {s(sT0)}, {s(sH)}")
    A.e(f"s_lshl_b32 {s(sT0)}, {s(sT0)}, 18")
    for srd, p in ((sK, 82), (sV, 84)):
        A.e(f"s_add_u32 {s(srd)}, s{p}, {s(sT0)}")
        A.e(f"s_addc_u32 {s(srd+1)}, s{p+1}, 0")
        A.e(f"s_mov_b32 {s(srd+2)}, 262144")
        A.e(f"s_mov_b32 {s(srd+3)}, 0x20000")

def setup2(A):
    L = v(vLANE); t0, t1, t2, t3, t4 = [v(vT + i) for i in range(5)]
    A.e(f"v_lshrrev_b32 {t0}, 4, {L}")
    A.e(f"v_and_b32 {t1}, 15, {L}")
    A.e(f"v_lshrrev_b32 {t2}, 1, {t1}")
    A.e(f"v_xor_b32 {t2}, {t2}, {t0}")
    A.e(f"s_add_u32 {s(sT0)}, {s(sXB)}, {XS0}")
    for s2 in range(2):
        A.e(f"v_xor_b32 {t3}, {4*s2}, {t2}")
        A.e(f"v_lshlrev_b32 {t3}, 4, {t3}")
        A.e(f"v_lshl_add_u32 {t3}, {t1}, 7, {t3}")
        A.e(f"v_add_u32 {v(vXA+s2)}, {s(sT0)}, {t3}")
    A.e(f"v_lshrrev_b32 {t2}, 2, {t1}")
    A.e(f"v_and_b32 {t3}, 1, {t0}")
    A.e(f"v_lshl_add_u32 {t3}, {t3}, 2, {t2}")
    A.e(f"v_and_b32 {t4}, 3, {L}")
    A.e(f"v_lshlrev_b32 {t4}, 3, {t4}")
    tw = v(vT + 5); tv = v(vT + 6)
    A.e(f"v_lshl_add_u32 {tw}, {t0}, 3, {t2}")
    A.e(f"v_lshl_add_u32 {tw}, {tw}, 8, {t4}")
    A.e(f"v_add_u32 {tw}, {WS0}, {tw}")
    for t in range(8):
        A.e(f"v_xor_b32 {tv}, {t}, {t3}")
        A.e(f"v_lshl_add_u32 {v(vWA+t)}, {tv}, 5, {tw}")
    A.e(f"v_lshlrev_b32 {v(vOO)}, 4, {L}")
    A.e(f"s_mul_i32 {s(sT0)}, {s(sB)}, 15")
    A.e(f"s_lshl_b32 {s(sT1)}, {s(sW)}, 2")
    A.e(f"s_add_u32 {s(sT0)}, {s(sT0)}, {s(sT1)}")
    A.e(f"s_lshl_b32 {s(sT0)}, {s(sT0)}, 17")
    A.e(f"s_lshl_b32 {s(sT1)}, {s(sH)}, 12")
    A.e(f"s_add_u32 {s(sT0)}, {s(sT0)}, {s(sT1)}")
    A.e(f"s_add_u32 {s(sO)}, s94, {s(sT0)}")
    A.e(f"s_addc_u32 {s(sO+1)}, s95, 0")
    A.e(f"s_mov_b32 {s(sO+2)}, {3*131072 + 4096}")
    A.e(f"s_mov_b32 {s(sO+3)}, 0x20000")
    A.e(f"s_mov_b32 {s(sWO)}, s88")
    A.e(f"s_mov_b32 {s(sWO+1)}, s89")
    A.e(f"s_mov_b32 {s(sWO+2)}, {4096*1152}")
    A.e(f"s_mov_b32 {s(sWO+3)}, 0x20000")
    A.e(f"s_add_u32 {s(sWP)}, s94, {WS_WO}")
    A.e(f"s_addc_u32 {s(sWP+1)}, s95, 0")
    A.e(f"s_mov_b32 {s(sWP+2)}, {36*131072}")
    A.e(f"s_mov_b32 {s(sWP+3)}, 0x20000")
    A.e(f"s_mov_b32 {s(sSC)}, {f32hex(SCALE)}")
    A.e(f"s_mov_b32 {s(sSC+1)}, {f32hex(SCALE)}")
    A.e(f"s_mov_b32 {s(sSECOND)}, 0")

def attn_addr_init(A):
    L = v(vLANE); t0, t1, t2, t3, t4 = [v(vT + i) for i in range(5)]
    A.e(f"v_lshrrev_b32 {t0}, 4, {L}")
    A.e(f"v_and_b32 {t1}, 15, {L}")
    A.e(f"v_xor_b32 {t2}, {t0}, {t1}")
    for s_ in range(4):
        A.e(f"v_xor_b32 {t3}, {4*s_}, {t2}")
        A.e(f"v_lshlrev_b32 {t3}, 4, {t3}")
        A.e(f"v_lshl_add_u32 {v(vKA+s_)}, {t1}, 8, {t3}")
    A.e(f"v_lshrrev_b32 {t2}, 2, {t1}")
    A.e(f"v_and_b32 {t3}, 1, {t0}")
    A.e(f"v_lshl_add_u32 {t3}, {t3}, 2, {t2}")
    A.e(f"v_and_b32 {t4}, 3, {L}")
    A.e(f"v_lshlrev_b32 {t4}, 3, {t4}")
    tw = v(vT + 5); tv = v(vT + 6)
    A.e(f"v_lshl_add_u32 {tw}, {t0}, 2, {t2}")
    A.e(f"v_lshl_add_u32 {tw}, {tw}, 8, {t4}")
    A.e(f"v_add_u32 {tw}, {VRING + 4*SLOT}, {tw}")
    for t in range(8):
        A.e(f"v_xor_b32 {tv}, {t}, {t3}")
        A.e(f"v_lshl_add_u32 {v(vVA+t)}, {tv}, 5, {tw}")
    A.e(f"v_and_b32 {t2}, 3, {L}")
    A.e(f"v_cmp_eq_u32 vcc, 0, {t2}")
    A.e(f"v_mov_b32 {t3}, 0x3f803f80")
    A.e(f"s_mov_b32 {s(sKOFF)}, 0")
    A.e(f"s_mov_b32 {s(sPREV)}, {4*SLOT}")
    for i in range(4): A.e(f"v_cndmask_b32 {v(vONE+i)}, 0, {t3}, vcc")
    A.e(f"s_add_u32 {s(sKSO)}, {s(sW4K)}, {5*SLOT}")
    A.e(f"s_add_u32 {s(sVSO)}, {s(sW4K)}, {4*SLOT}")

def x_own(kc):
    ops = []
    for j in range(8):
        if j % 4 == 0: ops.append(("sal", f"s_add_u32 m0, {s(sXB)}, {XS(kc) + 1024*j}"))
        ops.append(("mem", lambda A, j=j: dma(A, vXD + j, sX, s(sXO), 1024 * (j % 4), ("x", kc), CFG["nt_x"])))
    return [("sal", f"s_mov_b32 {s(sXO)}, {128*kc}")] + ops
def x_extra(kc):
    ops = [("sal", f"s_mov_b32 {s(sXO)}, {128*kc}"), ("sal", f"s_add_u32 m0, {s(sXE)}, {XS(kc)}")]
    for j in range(2):
        ops.append(("mem", lambda A, j=j: dma(A, vXD + 8 + j, sX, s(sXO), 1024 * j, ("xe", kc), CFG["nt_x"])))
    return ops
def wq_ops(kc):
    ops = [("sal", f"s_mov_b32 {s(sWO_OFF)}, {64*8192*kc}")]
    for j in range(6):
        if j % 3 == 0: ops.append(("sal", f"s_add_u32 m0, {s(sWB)}, {WS(kc) + 1024*j}"))
        ops.append(("mem", lambda A, j=j: dma(A, vWD + j, sWQ, s(sWO_OFF), 1024 * (j % 3), ("wq", kc), CFG["nt_x"])))
    return ops
def kv_ops(kind, n):
    base = (KRING if kind == "K" else VRING) + SLOT * (n % 5)
    g = kv_group(kind, f"s_add_u32 m0, {s(sW4K)}, {base}", s(sT3), (kind, n))
    return [("sal", f"s_add_u32 {s(sT3)}, {s(sW4K)}, {n*SLOT}"), ("sal", g[0])] + [("mem", x) for x in g[1:]]
def emit_ops(A, ops):
    prev = None
    for kind, o in ops:
        if kind == "mem" and prev == "m0": A.e("s_nop 0")
        if isinstance(o, str): A.e(o)
        else: o(A)
        prev = "m0" if isinstance(o, str) and " m0," in o else kind
def place_ops(slots, positions, ops):
    pend = []; k = 0
    for kind, o in ops:
        if kind == "sal": pend.append(o)
        else:
            p = positions[k]; k += 1
            if pend:
                if slots[p-1].mem: slots[p-1].valu += pend
                else: slots[p-1].sal += pend
                pend = []
            slots[p].mem.append(o)
    return k

def wo_gather_ops():
    ops = []
    for i in range(5):
        for j in range(8):
            reg = a(aWG + 4 * i + j // 2) if j % 2 else v(vWG + 4 * i + j // 2)
            hi = "_hi" if j % 2 else ""
            vo = vT + (j // 4)
            ops.append(("mem", lambda A, reg=reg, hi=hi, vo=vo, i=i, j=j: A.vmem(
                f"buffer_load_short_d16{hi} {reg}, {v(vo)}, {s(sWO,4)}, {s(sT2)} offen offset:{1152*(j%4) + 128*i}", "wg")))
    return ops
def wo_gather_setup(A):
    L = v(vLANE)
    A.e(f"v_lshrrev_b32 {v(vT)}, 4, {L}")
    A.e(f"v_mul_u32_u24 {v(vT)}, {4*1152}, {v(vT)}")
    A.e(f"v_and_b32 {v(vT+1)}, 15, {L}")
    A.e(f"v_lshl_add_u32 {v(vT)}, {v(vT+1)}, 1, {v(vT)}")
    A.e(f"v_add_u32 {v(vT+1)}, {16*1152}, {v(vT)}")
    A.e(f"s_lshr_b32 {s(sT2)}, s2, 1")
    A.e(f"s_mul_i32 {s(sT2)}, {s(sT2)}, {32*1152}")
    A.e(f"s_and_b32 {s(sT0)}, s2, 1")
    A.e(f"s_mul_i32 {s(sT0)}, {s(sT0)}, 18")
    A.e(f"s_add_u32 {s(sT0)}, {s(sT0)}, {s(sW)}")
    A.e(f"s_lshl_b32 {s(sT0)}, {s(sT0)}, 5")
    A.e(f"s_add_u32 {s(sT2)}, {s(sT2)}, {s(sT0)}")
def wo_store(A):
    A.e(f"s_and_b32 {s(sT0)}, s2, 1")
    A.e(f"s_mul_i32 {s(sT0)}, {s(sT0)}, 18")
    A.e(f"s_add_u32 {s(sT0)}, {s(sT0)}, {s(sW)}")
    A.e(f"s_lshl_b32 {s(sT0)}, {s(sT0)}, 17")
    A.e(f"s_lshr_b32 {s(sT1)}, s2, 1")
    A.e(f"s_lshl_b32 {s(sT1)}, {s(sT1)}, 10")
    A.e(f"s_add_u32 {s(sT0)}, {s(sT0)}, {s(sT1)}")
    for r in range(20): A.e(f"v_accvgpr_read_b32 {v(vC+r)}, {a(aWG+r)}")
    A.e(f"s_mov_b32 {s(sT1)}, 0xffff")
    for r in range(20): A.e(f"v_bfi_b32 {v(vC+r)}, {s(sT1)}, {v(vWG+r)}, {v(vC+r)}")
    for i in range(5):
        if i == 4:
            A.e(f"s_cmp_ge_u32 {s(sW)}, 2")
            A.e(f"s_cselect_b32 {s(sT0)}, {36*131072}, {s(sT0)}")
        A.vmem(f"buffer_store_dwordx4 {v(vC+4*i,4)}, {v(vOO)}, {s(sWP,4)}, {s(sT0)} offen", "st")
        if i < 4: A.e(f"s_add_u32 {s(sT0)}, {s(sT0)}, {4*131072}")

def qproj(A, nq):
    main = nq == 4
    if main:
        emit_ops(A, wq_ops(0) + x_own(0) + x_extra(0) + wq_ops(1) + x_own(1) + x_extra(1) + wq_ops(2))
    else:
        L = v(vLANE); t0, t1, t2 = v(vT), v(vT+1), v(vT+2)
        if CFG["touch"]:
            A.e(f"v_and_b32 {t0}, 31, {L}")
            A.e(f"v_min_u32 {t0}, 29, {t0}")
            A.e(f"v_mul_u32_u24 {t0}, 1152, {t0}")
            A.e(f"v_lshrrev_b32 {t1}, 5, {L}")
            A.e(f"v_lshl_add_u32 {t0}, {t1}, 7, {t0}")
            A.e(f"s_and_b32 {s(sT0)}, {s(sH)}, 7")
            A.e(f"s_mul_i32 {s(sT0)}, {s(sT0)}, {30*1152}")
            A.e(f"v_and_b32 {t2}, 31, {L}")
            A.e(f"v_lshrrev_b32 {t2}, 1, {t2}")
            A.e(f"v_lshl_add_u32 {t2}, {t1}, 6, {t2}")
            A.e(f"v_lshlrev_b32 {t2}, 13, {t2}")
            A.e(f"v_and_b32 {t1}, 1, {L}")
            A.e(f"v_lshl_add_u32 {t2}, {t1}, 7, {t2}")
            A.e(f"s_and_b32 {s(sT1)}, {s(sB)}, 3")
            A.e(f"s_lshl_b32 {s(sT1)}, {s(sT1)}, 17")
            A.e(f"s_add_u32 {s(sT1)}, {s(sT1)}, {3*64*8192}")
            for i in range(4):
                c = min(2 + 2 * i, 7)
                A.vmem(f"buffer_load_dword {v(vWG+i)}, {t0}, {s(sX,4)}, {s(sT0)} offen offset:{128*c}{CFG['nt_x']}", "touch")
                if i < 3:
                    A.vmem(f"buffer_load_dword {v(vWG+4+i)}, {t2}, {s(sWQ,4)}, {s(sT1)} offen{CFG['nt_x']}", "touch")
                    A.e(f"s_add_u32 {s(sT1)}, {s(sT1)}, {2*64*8192}")
        for kind, n in (("K", 0), ("K", 1), ("V", 0)):
            for w in range(4):
                base = (KRING if kind == "K" else VRING) + SLOT * n + 4096 * w
                g = kv_group(kind, f"s_mov_b32 m0, {base}", s(sT3), (kind, n))
                emit_ops(A, [("sal", g[0]), ("sal", f"s_mov_b32 {s(sT3)}, {n*SLOT + 4096*w}")] + [("mem", x) for x in g[1:]])
    stamp(A, "issued")
    setup2(A)
    wo_gather_setup(A)
    NS = 16 * nq
    BAR = 12 * nq
    LEAD = NS - BAR
    slots = [Slot() for _ in range(LEAD + 9 * NS)]
    def G(kc, i): return LEAD + kc * NS + i
    for kc in range(9):
        bb = aQB + 32 * (kc % 2)
        for i in range(NS):
            f, qt = i // nq, i % nq
            s2, t = f // 8, f % 8
            d = v(vACC + 32 * qt + 4 * t, 4)
            slots[G(kc, i)].m = mfma(d, a(aQA + 4 * f, 4), a(bb + 8 * qt + 4 * s2, 4), d if (kc or s2) else "0")
        def rdA(f, j, kc=kc):
            s2, t = f // 8, f % 8
            off = WS(kc) - WS0 + (32 * s2 + 4 * j) * 256
            return lambda A: A.ds(f"ds_read_b64_tr_b16 {a(aQA + 4*f + 2*j, 2)}, {v(vWA+t)} offset:{off}", ("A", kc, f, j))
        def rdB(qt, s2, kc=kc, bb=bb):
            off = XS(kc) - XS0 + 2048 * qt
            return lambda A: A.ds(f"ds_read_b128 {a(bb + 8*qt + 4*s2, 4)}, {v(vXA+s2)} offset:{off}", ("B", kc, qt, s2))
        head = [rdB(0, 0), rdA(0, 0), rdA(0, 1)] + [rdB(q, 0) for q in range(1, nq)] + [rdA(1, 0), rdA(1, 1), rdA(2, 0), rdA(2, 1)] \
             + [rdB(q, 1) for q in range(nq)] + [rdA(3, 0), rdA(3, 1)]
        p0 = G(kc, -LEAD)
        for k, r in enumerate(head):
            slots[p0 + k * LEAD // len(head)].mem.append(r)
        rest = [rdA(f, j) for f in range(4, 16) for j in range(2)]
        span = BAR - 2 * nq
        for k, r in enumerate(rest):
            slots[G(kc, k * span // len(rest))].mem.append(r)
        slots[G(kc, -1)].valu.append(lambda A, kc=kc: A.wait_lds(("B", kc, nq - 1, 0)))
        for f in range(1, 16):
            tag = ("A", kc, f, 1)
            if f == 3: tag = ("A", kc, 3, 1)
            slots[G(kc, f * nq - 1)].sal.append(lambda A, tag=tag: A.wait_lds(tag))
        def bar(A, kc=kc):
            if main: A.wait_vm(("xe", kc))
            A.e("s_waitcnt lgkmcnt(0)")
            A.e("s_barrier")
            stamp(A, "bm1" if kc == 0 else f"b{kc-1}")
        slots[p0].sal.insert(0, bar)
        early = []; late = []
        if main:
            if 1 <= kc <= 7: early += x_extra(kc + 1)
            if 1 <= kc <= 6: early += wq_ops(kc + 2)
            if kc <= 6: late += x_own(kc + 2)
        if kc == 7: early += (wo_gather_ops() if CFG["gather"] else []) + kv_ops("K", 2)
        if kc == 8: early += kv_ops("V", 1) + kv_ops("K", 3) + kv_ops("V", 2)
        ne = sum(1 for k, _ in early if k == "mem"); nl = sum(1 for k, _ in late if k == "mem")
        if late:
            pe = [p0 + 1 + 2 * k for k in range(ne)]
            pl = [G(kc, 3 * nq + 1 + 3 * k) for k in range(nl)]
            place_ops(slots, pe, early); place_ops(slots, pl, late)
        elif early:
            tot = NS - 4
            pe = [p0 + 1 + k * tot // ne for k in range(ne)]
            place_ops(slots, pe, early)
    def bar8(A):
        if not main: A.wait_vm(("K", 0))
        A.e("s_waitcnt lgkmcnt(0)")
        A.e("s_barrier")
    p8 = G(8, BAR)
    slots[p8].sal.insert(0, bar8)
    place_ops(slots, [p8 + 1 + k for k in range(8)], kv_ops("K", 4) + kv_ops("V", 3))
    emit_slots(A, slots)

def qconvert(A, nq):
    A.e("s_nop 7")
    for qt in range(nq):
        for u in range(4):
            src = vACC + 32 * qt + 8 * u; dst = vQ + 16 * qt + 4 * u
            for j in range(4):
                A.e(f"v_pk_mul_f32 {v(src+2*j,2)}, {v(src+2*j,2)}, {s(sSC,2)}")
            for j in range(4):
                A.e(f"v_cvt_pk_bf16_f32 {v(dst+j)}, {v(src+2*j)}, {v(src+2*j+1)}")
        for u in range(4):
            dst = vQ + 16 * qt + 4 * u
            if u == 0: A.e("s_nop 0")
            A.e(f"v_permlane32_swap_b32 {v(dst)}, {v(dst+2)}")
            A.e(f"v_permlane32_swap_b32 {v(dst+1)}, {v(dst+3)}")
        for u in range(4):
            dst = vQ + 16 * qt + 4 * u
            A.e(f"v_permlane16_swap_b32 {v(dst)}, {v(dst+2)}")
            A.e(f"v_permlane16_swap_b32 {v(dst+1)}, {v(dst+3)}")

def k_read(T, f):
    kt, s_ = f // 4, f % 4
    off = 8192 * (T % 2) + 4096 * kt
    return lambda A: A.ds(f"ds_read_b128 {a(aK+4*f,4)}, {v(vKA+s_)} offset:{off}", ("K", f))
def v_read(T, i):
    t, j = i // 2, i % 2
    off = 8192 * (T % 2) + 4096 * j
    return lambda A: A.ds(f"ds_read_b64_tr_b16 {a(aV+4*t+2*j,2)}, {v(vVA+t)} offset:{off}", ("V", i))
def qk_list(T, nq, czero=False):
    if CFG["qkorder"] == "A": order = [(kt, s_, qt) for kt in range(2) for s_ in range(4) for qt in range(nq)]
    else: order = [(kt, s_, qt) for qt in range(nq) for kt in range(2) for s_ in range(4)]
    out = []
    for kt, s_, qt in order:
        d = v(vS + 32 * (T % 2) + 8 * qt + 4 * kt, 4)
        c = d if s_ else ("0" if czero else v(vC + 4 * qt, 4))
        out.append(mfma(d, a(aK + 4 * (4 * kt + s_), 4), v(vQ + 16 * qt + 4 * s_, 4), c))
    return out

def crosslane_max(A, regs, tmp):
    for sw in ("v_permlane32_swap_b32", "v_permlane16_swap_b32"):
        for i, r in enumerate(regs): A.e(f"v_mov_b32 {v(tmp+i)}, {v(r)}")
        A.e("s_nop 1")
        for i, r in enumerate(regs): A.e(f"{sw} {v(tmp+i)}, {v(r)}")
        A.e("s_nop 1")
        for i, r in enumerate(regs): A.e(f"v_max_f32 {v(r)}, {v(r)}, {v(tmp+i)}")

def zero_acc(A, nq):
    for r in range(32 * nq): A.e(f"v_accvgpr_write_b32 {a(aO+r)}, 0")
    for r in range(4 * nq): A.e(f"v_accvgpr_write_b32 {a(aL+r)}, 0")

def first_tile(A, nq):
    for f in range(8): k_read(0, f)(A)
    zero_acc(A, nq)
    A.e("s_waitcnt lgkmcnt(0)")
    for m in qk_list(0, nq, czero=True): A.e(m)
    A.e("s_nop 7")
    for qt in range(nq):
        b = vS + 8 * qt; c = vC + 4 * qt
        A.e(f"v_max3_f32 {v(c)}, {v(b)}, {v(b+1)}, {v(b+2)}")
        A.e(f"v_max3_f32 {v(c+1)}, {v(b+3)}, {v(b+4)}, {v(b+5)}")
        A.e(f"v_max3_f32 {v(c)}, {v(c)}, {v(b+6)}, {v(b+7)}")
        A.e(f"v_max_f32 {v(c)}, {v(c)}, {v(c+1)}")
    crosslane_max(A, [vC + 4 * qt for qt in range(nq)], vT)
    for qt in range(nq):
        b = vS + 8 * qt; c = vC + 4 * qt
        for e in range(8): A.e(f"v_sub_f32 {v(b+e)}, {v(b+e)}, {v(c)}")
        for e in (3, 2, 1, 0): A.e(f"v_sub_f32 {v(c+e)}, 0, {v(c)}")

def attn_slots(nq):
    P = 17 * nq
    NT = 34
    slots = [Slot() for _ in range(NT * P)]
    E = [2 * e - 4 for e in range(8 * nq)]
    Em = set(x % P for x in E)
    others = [j for j in range(P) if j not in Em]
    BARP = 8 * nq - 2
    aft = [j for j in others if j > BARP]
    kpos = aft[:8]; dpos = aft[8:12]
    seq = aft[12:] + [j + P for j in others if j < BARP]
    if nq == 4: vpos = [x for x in seq if x % 2 == 1][:16]
    else: vpos = [seq[i // 2] for i in range(16)]
    assert vpos[-1] + 6 <= P + BARP, vpos
    used2 = {}
    for T in range(NT):
        g = T * P
        if T < 32:
            for i, m in enumerate(qk_list(T, nq)): slots[g + i].m = m
        if 0 < T <= 32: slots[g - 1].sal.append(lambda A: A.wait_lds(("K", 7)))
        Tp = T - 2
        if 0 <= Tp < 32:
            pb = vP + 16 * (Tp % 2)
            k = 8 * nq
            for t in range(8):
                for qt in range(nq):
                    d = a(aO + 32 * qt + 4 * t, 4)
                    slots[g + k].m = mfma(d, a(aV + 4 * t, 4), v(pb + 4 * qt, 4), d); k += 1
            for qt in range(nq):
                d = a(aL + 4 * qt, 4)
                slots[g + k].m = mfma(d, v(vONE, 4), v(pb + 4 * qt, 4), d); k += 1
            for i in range(16): slots[g - P + vpos[i]].mem.append(v_read(Tp, i))
            slots[g + BARP].sal.append(lambda A: A.wait_lds(("V", 15)))
        Ts = T - 1
        if 0 <= Ts < 32:
            sb = vS + 32 * (Ts % 2); pb = vP + 16 * (Ts % 2)
            for e in range(8 * nq):
                slots[g + E[e]].valu.append(f"v_exp_f32 {v(sb+e)}, {v(sb+e)}")
                if e % 2:
                    slots[g + E[e] + 1].valu.append(f"v_cvt_pk_bf16_f32 {v(pb+e//2)}, {v(sb+e-1)}, {v(sb+e)}")
        if T < 32:
            for f in range(8): slots[g + kpos[f]].mem.append(k_read(T + 1, f))
        if T < 32 and T % 2 == 1:
            slots[g + BARP].sal += ["s_waitcnt vmcnt(24)"] + ([] if CFG["nobar"] else ["s_barrier"])
            sal = [f"s_add_u32 {s(sNEXT)}, {s(sKOFF)}, {SLOT}", f"s_cmp_eq_u32 {s(sNEXT)}, {5*SLOT}",
                   f"s_cselect_b32 {s(sNEXT)}, 0, {s(sNEXT)}", f"s_sub_u32 {s(sDK)}, {s(sNEXT)}, {s(sKOFF)}",
                   f"s_sub_u32 {s(sDV)}, {s(sKOFF)}, {s(sPREV)}", f"s_add_u32 {s(sVD)}, {s(sPREV)}, {VRING}",
                   f"s_add_u32 {s(sVD)}, {s(sVD)}, {s(sW4K)}", f"s_mov_b32 {s(sPREV)}, {s(sKOFF)}",
                   f"s_mov_b32 {s(sKOFF)}, {s(sNEXT)}"]
            for i, x in enumerate(sal): slots[g + i].sal.append(x)
            cv = set((x + 1) % P for k, x in enumerate(E) if k % 2)
            free = [j for j in others if j not in cv]
            kfree = [j for j in free if 5 < j < kpos[0]][:4]
            assert len(kfree) == 4, kfree
            for i in range(4): slots[g + kfree[i]].valu.append(f"v_add_u32 {v(vKA+i)}, {s(sDK)}, {v(vKA+i)}")
            vfree = [j for j in free if vpos[-1] - P < j < vpos[0] and j not in kfree]
            while len(vfree) < 8: vfree = sorted(vfree + vfree[:8 - len(vfree)])
            for i in range(8): slots[g + vfree[i]].valu.append(f"v_add_u32 {v(vVA+i)}, {s(sDV)}, {v(vVA+i)}")
            grp = kv_group("K", f"s_add_u32 m0, {s(sPREV)}, {s(sW4K)}", s(sKSO), "kv")
            slots[g + dpos[0] - 1].sal.append(grp[0])
            for i in range(4):
                if not CFG["nodma"]: slots[g + dpos[i]].mem.append(grp[1 + i])
            slots[g + dpos[3] + 1].sal.append(f"s_add_u32 {s(sKSO)}, {s(sKSO)}, {SLOT}")
        if 2 <= T < 32 and T % 2 == 0:
            grp = kv_group("V", f"s_mov_b32 m0, {s(sVD)}", s(sVSO), "kv")
            slots[g + dpos[0] - 1].sal.append(grp[0])
            for i in range(4):
                if not CFG["nodma"]: slots[g + dpos[i]].mem.append(grp[1 + i])
            slots[g + dpos[3] + 1].sal.append(f"s_add_u32 {s(sVSO)}, {s(sVSO)}, {SLOT}")
    return slots, P

def fix_nomfma(slots):
    for i, sl in enumerate(slots):
        if sl.m is None and (sl.valu or sl.mem):
            sl.sal.insert(0, "s_nop 0")

def attention(A, nq):
    R = f"q{nq}"
    slots, P = attn_slots(nq)
    for i in range(8 * nq): slots[i].m = None
    A.label(f"L_attn_{R}")
    pro = slots[8 * nq:2 * P]; fix_nomfma(pro)
    for sl in slots[:8 * nq]:
        for f in sl.mem: f(A)
    emit_slots(A, pro)
    A.e(f"s_mov_b32 {s(sCNT)}, 15")
    stamp(A, "loop")
    texts = []
    for n in (1, 2, 15):
        B = Asm(); B.lds = list(A.lds); B.vm = list(A.vm)
        if n > 1: emit_slots(B, slots[2 * (n - 1) * P:2 * n * P]); B.lines = []
        emit_slots(B, slots[2 * n * P:2 * (n + 1) * P]); texts.append(B.text())
    if not (texts[0] == texts[1] == texts[2]):
        import difflib
        for x, y in ((0, 1), (1, 2)):
            print("".join(difflib.unified_diff(texts[x].splitlines(True), texts[y].splitlines(True), n=1)))
        raise SystemExit("steady state mismatch")
    A.raw(".p2align 6")
    A.label(f"L_loop_{R}")
    body = slots[2 * P:4 * P]
    body[-3].sal.append(f"s_sub_u32 {s(sCNT)}, {s(sCNT)}, 1")
    body[-2].sal.append(f"s_cmp_lg_u32 {s(sCNT)}, 0")
    if CFG["itst"]:
        body[P + 8*nq].sal += ["s_memrealtime s[68:69]"]
        body[P + 8*nq + 24].sal += ["s_waitcnt lgkmcnt(0)", f"v_cmp_eq_u32 vcc, {s(sCNT)}, {v(vLANE)}", "v_mov_b32 v61, s68", "s_nop 0", "v_cndmask_b32 v62, v62, v61, vcc"]
    emit_slots(A, body)
    A.e(f"s_cbranch_scc1 L_loop_{R}")
    stamp(A, "loopend")
    epi = slots[32 * P:]; fix_nomfma(epi)
    emit_slots(A, epi)
    stamp(A, "pvdone")

def epilogue(A, nq):
    R = f"q{nq}"
    A.e("s_nop 7")
    for qt in range(nq): A.e(f"v_accvgpr_read_b32 {v(vT+qt)}, {a(aL+4*qt)}")
    A.e(f"s_mov_b32 {s(sT0)}, {f32hex(2.0**40)}")
    A.e(f"s_mov_b64 {s(sT2+1,2)}, 0") if False else None
    A.e(f"v_mov_b32 {v(vT+4)}, 0")
    for qt in range(nq):
        A.e(f"v_cmp_nlt_f32 vcc, {v(vT+qt)}, {v(vT+5)}") if False else None
        A.e(f"v_cmp_ngt_f32 vcc, {s(sT0)}, {v(vT+qt)}")
        A.e("s_nop 1")
        A.e(f"v_cndmask_b32 {v(vT+4)}, {v(vT+4)}, 1, vcc") if False else A.e(f"v_addc_co_u32 {v(vT+4)}, vcc, 0, {v(vT+4)}, vcc")
    A.e(f"v_lshlrev_b32 {v(vT+5)}, 2, v0")
    A.ds(f"ds_write_b32 {v(vT+5)}, {v(vT+4)} offset:{KRING + 1*SLOT}", "flag")
    for qt in range(nq): A.e(f"v_rcp_f32 {v(vT+qt)}, {v(vT+qt)}")
    for qt in range(nq):
        if qt: A.e(f"s_mov_b32 {s(sT1)}, {qt*131072}")
        for u in range(4):
            tb = vS + 8 * ((qt * 4 + u) % 8); pb = vP + 4 * ((qt * 4 + u) % 8)
            for j in range(8): A.e(f"v_accvgpr_read_b32 {v(tb+j)}, {a(aO + 32*qt + 8*u + j)}")
            for j in range(8): A.e(f"v_mul_f32 {v(tb+j)}, {v(tb+j)}, {v(vT+qt)}")
            for j in range(4): A.e(f"v_cvt_pk_bf16_f32 {v(pb+j)}, {v(tb+2*j)}, {v(tb+2*j+1)}")
            so = s(sT1) if qt else "0"
            A.vmem(f"buffer_store_dwordx4 {v(pb,4)}, {v(vOO)}, {s(sO,4)}, {so} offen offset:{1024*u}", "st")
    wo_store(A)
    A.e("s_waitcnt lgkmcnt(0)")
    A.e("s_barrier")
    A.e(f"v_lshlrev_b32 {v(vT+5)}, 4, {v(vLANE)}")
    A.e(f"ds_read_b128 {v(24,4)}, {v(vT+5)} offset:{KRING + 1*SLOT}")
    A.e("s_waitcnt lgkmcnt(0)")
    A.e(f"v_or_b32 v24, v24, v25")
    A.e(f"v_or3_b32 v24, v24, v26, v27")
    A.e(f"v_cmp_ne_u32 vcc, 0, v24")
    A.e(f"s_cmp_lg_u32 {s(sSECOND)}, 0")
    A.e(f"s_cbranch_scc1 L_done_{R}")
    A.e("s_nop 2")
    A.e(f"s_cbranch_vccnz L_fallback_{R}")
    A.label(f"L_done_{R}")

def fallback(A, nq):
    R = f"q{nq}"
    A.label(f"L_fallback_{R}")
    A.e(f"s_mov_b32 {s(sSECOND)}, 1")
    attn_addr_init(A)
    for qt in range(nq): A.e(f"v_mov_b32 {v(vC+4*qt)}, 0xff800000")
    A.e(f"s_mov_b32 {s(sT3)}, {s(sW4K)}")
    A.e(f"s_mov_b32 {s(sCNT)}, 16")
    A.e("s_waitcnt vmcnt(0)")
    A.label(f"L_fb_loop_{R}")
    A.e("s_barrier")
    g = kv_group("K", f"s_mov_b32 m0, {s(sW4K)}", s(sT3), "fb")
    emit_ops(A, [("sal", g[0])] + [("mem", x) for x in g[1:]])
    A.e("s_waitcnt vmcnt(0)")
    A.e("s_barrier")
    for T in range(2):
        for f in range(8): k_read(T, f)(A)
        A.e("s_waitcnt lgkmcnt(0)")
        for m in qk_list(T, nq, czero=True): A.e(m)
        A.e("s_nop 7")
        for qt in range(nq):
            b = vS + 32 * T + 8 * qt; c = vC + 4 * qt
            for e in range(0, 8, 2): A.e(f"v_max3_f32 {v(c)}, {v(c)}, {v(b+e)}, {v(b+e+1)}")
    A.e(f"s_add_u32 {s(sT3)}, {s(sT3)}, {SLOT}")
    A.e(f"s_sub_u32 {s(sCNT)}, {s(sCNT)}, 1")
    A.e(f"s_cmp_lg_u32 {s(sCNT)}, 0")
    A.e(f"s_cbranch_scc1 L_fb_loop_{R}")
    crosslane_max(A, [vC + 4 * qt for qt in range(nq)], vT)
    for qt in range(nq):
        c = vC + 4 * qt
        for e in (3, 2, 1, 0): A.e(f"v_sub_f32 {v(c+e)}, 0, {v(c)}")
    A.e("s_barrier")
    for kind, n in (("K", 0), ("K", 1), ("V", 0), ("K", 2), ("V", 1), ("K", 3), ("V", 2), ("K", 4), ("V", 3)):
        emit_ops(A, kv_ops(kind, n))
    zero_acc(A, nq)
    A.e("s_waitcnt vmcnt(0)")
    A.e("s_barrier")
    for f in range(8): k_read(0, f)(A)
    A.e("s_waitcnt lgkmcnt(0)")
    for m in qk_list(0, nq): A.e(m)
    A.e("s_nop 7")
    A.e(f"s_branch L_attn_{R}")

def write_stamps(A):
    if not CFG["stamps"]: return
    A.e("s_waitcnt vmcnt(0)")
    stamp(A, "end")
    A.e(f"s_add_u32 {s(sST)}, s94, {WS_STAMP}")
    A.e(f"s_addc_u32 {s(sST+1)}, s95, 0")
    A.e(f"s_mov_b32 {s(sST+2)}, 0x100000")
    A.e(f"s_mov_b32 {s(sST+3)}, 0x20000")
    A.e(f"s_lshl_b32 {s(sT0)}, s2, 2")
    A.e(f"s_add_u32 {s(sT0)}, {s(sT0)}, {s(sW)}")
    A.e(f"s_lshl_b32 {s(sT0)}, {s(sT0)}, 8")
    A.e(f"v_lshlrev_b32 v2, 2, {v(vLANE)}")
    A.e(f"buffer_store_dword v63, v2, {s(sST,4)}, {s(sT0)} offen")
    A.e(f"s_cmp_eq_u32 {s(sT0)}, {CFG.get('dbgwg', 0)}")
    A.e(f"s_cselect_b32 {s(sT1)}, 0, 256")
    A.e(f"s_mov_b32 s96, s92")
    A.e(f"s_mov_b32 s97, s93")
    A.e(f"s_mov_b32 s98, 256")
    A.e(f"s_mov_b32 s99, 0x20000")
    A.e(f"v_readlane_b32 s64, v63, 0")
    A.e("s_nop 1")
    A.e(f"v_subrev_u32 v61, s64, v63")
    A.e(f"buffer_store_dword v61, v2, s[96:99], {s(sT1)} offen")
    A.e(f"s_add_u32 {s(sT0)}, {s(sT0)}, 0x40000")
    A.e(f"buffer_store_dword v62, v2, {s(sST,4)}, {s(sT0)} offen")

def k1():
    A = Asm()
    A.raw(".globl attn_kernel\n.p2align 8\n.type attn_kernel,@function\nattn_kernel:")
    setup(A)
    A.e(f"s_cmp_eq_u32 {s(sW)}, 3")
    A.e("s_cbranch_scc1 L_role_q3")
    out = A.text()
    for nq in (4, 3):
        A = Asm()
        A.label(f"L_role_q{nq}")
        qproj(A, nq)
        stamp(A, "qdone")
        qconvert(A, nq)
        attn_addr_init(A)
        stamp(A, "qconv")
        first_tile(A, nq)
        attention(A, nq)
        epilogue(A, nq)
        write_stamps(A)
        A.e("s_endpgm")
        fallback(A, nq)
        out += A.text()
    out += "L_k1_end:\n    s_endpgm\n"
    return out

def k2():
    A = Asm()
    A.raw(".globl oproj_kernel\n.p2align 8\n.type oproj_kernel,@function\noproj_kernel:")
    D = 6
    A.e("s_cmp_ge_u32 s2, 240")
    A.e("s_cbranch_scc1 L_k2_end")
    A.e("s_load_dwordx2 s[4:5], s[0:1], 56")
    A.e("s_load_dwordx2 s[6:7], s[0:1], 40")
    A.e("v_and_b32 v1, 63, v0")
    A.e("v_lshrrev_b32 v2, 6, v0")
    A.e("s_and_b32 s20, s2, 7")
    A.e("v_readfirstlane_b32 s19, v2")
    A.e("s_lshr_b32 s21, s2, 3")
    A.e("s_mul_i32 s22, s21, 43")
    A.e("s_lshr_b32 s22, s22, 8")
    A.e("s_mul_i32 s23, s22, 6")
    A.e("s_sub_u32 s23, s21, s23")
    A.e("s_lshr_b32 s24, s20, 1")
    A.e("s_mul_i32 s24, s24, 5")
    A.e("s_add_u32 s22, s22, s24")
    A.e("s_and_b32 s24, s20, 1")
    A.e("s_mul_i32 s24, s24, 6")
    A.e("s_add_u32 s23, s23, s24")
    A.e("v_lshlrev_b32 v3, 4, v0")
    for i in range(1, 6): A.e(f"v_add_u32 v{3+i}, {i*131072}, v3")
    A.e("s_waitcnt lgkmcnt(0)")
    A.e(f"s_mul_i32 s24, s22, {6*131072}")
    A.e("s_add_u32 s8, s4, s24"); A.e("s_addc_u32 s9, s5, 0"); A.e(f"s_mov_b32 s10, {6*131072}"); A.e("s_mov_b32 s11, 0x20000")
    A.e(f"s_mul_i32 s24, s23, {3*131072}")
    A.e(f"s_add_u32 s24, s24, {WS_WO}")
    A.e("s_add_u32 s12, s4, s24"); A.e("s_addc_u32 s13, s5, 0"); A.e(f"s_mov_b32 s14, {3*131072}"); A.e("s_mov_b32 s15, 0x20000")
    FB = 16
    def loads(st):
        b = FB + 36 * (st % D)
        ops = [lambda A: A.e(f"s_mov_b32 s25, {st*4096}")]
        for j in range(3): ops.append(lambda A, j=j: A.vmem(f"buffer_load_dwordx4 {v(b+4*j,4)}, v{3+j}, s[12:15], s25 offen", st))
        for i in range(6): ops.append(lambda A, i=i: A.vmem(f"buffer_load_dwordx4 {v(b+12+4*i,4)}, v{3+i}, s[8:11], s25 offen", st))
        return ops
    for st in range(D):
        for o in loads(st): o(A)
    for st in range(32):
        b = FB + 36 * (st % D)
        A.wait_vm(st)
        prev = loads(st - 1 + D) if 1 <= st and st - 1 + D < 32 else []
        k = 0
        for i in range(6):
            for j in range(3):
                d = a(4 * (3 * i + j), 4)
                A.e(mfma(d, v(b + 4 * j, 4), v(b + 12 + 4 * i, 4), d if st else "0"))
                if k < len(prev): prev[k](A); k += 1
                if k == 1: prev[k](A); k += 1
    A.e("s_nop 7")
    A.e("v_lshlrev_b32 v10, 4, v1")
    A.e(f"s_mul_i32 s24, s19, {18*1024}")
    A.e("v_add_u32 v11, s24, v10")
    for t in range(18): A.e(f"ds_write_b128 v11, {a(4*t,4)} offset:{1024*t}")
    A.e("s_mov_b32 s16, s6"); A.e("s_mov_b32 s17, s7"); A.e(f"s_mov_b32 s18, {1920*1152}")
    A.e("s_lshl_b32 s24, s19, 10")
    A.e("v_add_u32 v11, s24, v10")
    A.e(f"v_add_u32 v14, {36*1024}, v11")
    A.e("s_mov_b32 s26, s19")
    A.e("s_mov_b32 s19, 0x20000")
    A.e("v_and_b32 v12, 15, v1")
    A.e("v_mul_u32_u24 v12, 1152, v12")
    A.e("v_lshrrev_b32 v13, 4, v1")
    A.e("v_lshl_add_u32 v12, v13, 3, v12")
    A.e(f"s_mul_i32 s27, s22, {96*1152}")
    A.e(f"s_mul_i32 s28, s23, 96")
    A.e("s_add_u32 s27, s27, s28")
    A.e("s_waitcnt lgkmcnt(0)")
    A.e("s_barrier")
    for r in range(5):
        for w in range(4): A.e(f"ds_read_b128 {v(16+16*r+4*w,4)}, v{11 if w < 2 else 14} offset:{4096*r + 18*1024*(w%2)}")
    for r in range(5):
        A.e(f"s_waitcnt lgkmcnt({min(15, 4*(4-r))})")
        b = 16 + 16 * r
        for e in range(4):
            A.e(f"v_add_f32 v{b+e}, v{b+e}, v{b+4+e}")
            A.e(f"v_add_f32 v{b+8+e}, v{b+8+e}, v{b+12+e}")
        for e in range(4): A.e(f"v_add_f32 v{b+e}, v{b+e}, v{b+8+e}")
        A.e(f"v_cvt_pk_bf16_f32 v{b}, v{b}, v{b+1}")
        A.e(f"v_cvt_pk_bf16_f32 v{b+1}, v{b+2}, v{b+3}")
        A.e(f"s_add_u32 s28, s26, {4*r}")
        A.e("s_mul_i32 s29, s28, 86")
        A.e("s_lshr_b32 s29, s29, 8")
        A.e("s_mul_i32 s30, s29, 3")
        A.e("s_sub_u32 s30, s28, s30")
        A.e(f"s_mul_i32 s29, s29, {16*1152}")
        A.e("s_lshl_b32 s30, s30, 5")
        A.e("s_add_u32 s29, s29, s30")
        A.e("s_add_u32 s29, s29, s27")
        if r == 4:
            A.e("s_cmp_ge_u32 s28, 18")
            A.e(f"s_cselect_b32 s29, {1920*1152}, s29")
        A.e(f"buffer_store_dwordx2 {v(b,2)}, v12, s[16:19], s29 offen")
    A.label("L_k2_end")
    A.e("s_endpgm")
    return A.text()

hdr = open("standalone__mha_block_cached__near_ridge.s.ref").read().split("; Override launch")[0]
txt = hdr + "; @launch kernel=attn_kernel grid=(256,1,1) block=(256,1,1) lds=163840\n" \
          + "; @launch kernel=oproj_kernel grid=(240,1,1) block=(256,1,1) lds=81920\n" \
          + '.amdgcn_target "amdgcn-amd-amdhsa--gfx950"\n.text\n' + k1() + k2() \
          + '.section .rodata,"a"\n' + descriptor("attn_kernel") + descriptor("oproj_kernel", 328, 256)
open(sys.argv[1], "w").write(txt)
```

```python
import sys, struct, math
from asmlib import *

CFG = dict(nt_kv=" nt", nt_x=" nt", stamps=False, qkorder="A", touch=True, nodma=False, lin=False, nobar=False, gather=True, itst=False)
for arg in sys.argv[2:]:
    k, val = arg.split("=")
    CFG[k] = {"True": True, "False": False}.get(val, val)
    if k.startswith("nt_"): CFG[k] = (" " + val) if val not in ("", "none") else ""

def f32hex(x): return "0x%08x" % struct.unpack("<I", struct.pack("<f", x))[0]
SCALE = math.log2(math.e) / math.sqrt(128.0)

SLOT = 16384
KRING = 0
VRING = 5 * SLOT
WS0 = 2 * SLOT
XS0 = VRING + SLOT
def XS(kc): return XS0 + 32768 * ((kc + 1) % 2)
def WS(kc): return WS0 + SLOT * (kc % 3)
WS_O = 0
WS_WO = 120 * 131072
WS_STAMP = 32 << 20
sX, sWQ, sK, sV, sO, sWO, sWP = 4, 8, 12, 16, 20, 24, 28
sW, sB, sH = 32, 33, 34
sT0, sT1, sT2, sT3 = 35, 36, 37, 38
sXO, sWO_OFF = 39, 40
sKSO, sVSO = 41, 42
sKOFF, sPREV, sNEXT, sVD = 43, 44, 45, 46
sDK, sDV = 47, 48
sCNT = 49
sW4K = 50
sSECOND = 51
sXB, sXE, sWB = 52, 53, 54
sSC = 56
sST = 60
vLANE = 1
vKA = 2
vVA = 6
vKD = 14
vVD = 18
vOO = 20
vT = 21
vWA = 28
vXA = 36
vWG = 40
vXD = 192
vWD = 202
vS = 64; vP = 128; vC = 160; vONE = 176; vQ = 192; vACC = 64
aO = 0; aK = 128; aV = 160; aL = 192
aQA = 0; aQB = 64; aWG = 208

class Slot:
    def __init__(self, m=None):
        self.m = m; self.sal = []; self.mem = []; self.valu = []
def emit_slots(A, slots):
    for sl in slots:
        if sl.m: A.e(sl.m)
        for f in sl.sal + sl.mem + sl.valu:
            if isinstance(f, str): A.e(f)
            else: f(A)

nstamp = [0]
def stamp(A, name):
    if not CFG["stamps"] or name not in STAMPS: return
    i = STAMPS.index(name)
    A.e(f"s_memrealtime s[64:65]")
    A.e(f"s_memtime s[66:67]")
    A.e("s_waitcnt lgkmcnt(0)")
    A.e(f"v_writelane_b32 v63, s64, {i}")
    A.e(f"v_writelane_b32 v63, s66, {32+i}")
STAMPS = ["start", "karg", "issued", "bm1", "b0", "b3", "b7", "qdone", "qconv", "loop", "loopend", "pvdone", "end"]

def dma(A, voff, srd, soff, imm, tag, flag):
    A.vmem(f"buffer_load_dwordx4 {v(voff)}, {s(srd,4)}, {soff} offen offset:{imm}{flag} lds", tag)

def kv_group(kind, m0expr, soff, tag):
    ops = [m0expr]
    for i in range(4):
        vo = vKD + i if kind == "K" else vVD + (i & 1)
        srd = sK if kind == "K" else sV
        ops.append(lambda A, vo=vo, srd=srd, i=i: dma(A, vo, srd, soff, 1024 * i, tag, CFG["nt_kv"]))
    return ops

def setup(A):
    A.e("s_cmp_ge_u32 s2, 256")
    A.e("s_cbranch_scc1 L_k1_end")
    stamp(A, "start")
    A.e("s_load_dwordx8 s[80:87], s[0:1], 0")
    A.e("s_load_dwordx8 s[88:95], s[0:1], 32")
    A.e(f"v_and_b32 {v(vLANE)}, 63, v0")
    A.e(f"v_lshrrev_b32 {v(vT)}, 6, v0")
    A.e(f"s_and_b32 {s(sT0)}, s2, 7")
    A.e(f"v_readfirstlane_b32 {s(sW)}, {v(vT)}")
    A.e(f"s_lshr_b32 {s(sT1)}, s2, 3")
    A.e(f"s_and_b32 {s(sB)}, {s(sT0)}, 1")
    A.e(f"s_lshl_b32 {s(sB)}, {s(sB)}, 2")
    A.e(f"s_and_b32 {s(sT2)}, {s(sT1)}, 3")
    A.e(f"s_add_u32 {s(sB)}, {s(sB)}, {s(sT2)}")
    A.e(f"s_lshr_b32 {s(sH)}, {s(sT0)}, 1")
    A.e(f"s_lshl_b32 {s(sH)}, {s(sH)}, 3")
    A.e(f"s_lshr_b32 {s(sT2)}, {s(sT1)}, 2")
    A.e(f"s_add_u32 {s(sH)}, {s(sH)}, {s(sT2)}")
    A.e(f"s_lshl_b32 {s(sW4K)}, {s(sW)}, 12")
    L = v(vLANE); t0, t1, t2, t3, t4 = [v(vT + i) for i in range(5)]
    A.e(f"v_lshrrev_b32 {t0}, 4, {L}")
    A.e(f"v_and_b32 {t1}, 15, {L}")
    A.e(f"v_lshrrev_b32 {t2}, 3, {L}")
    A.e(f"v_mul_u32_u24 {t2}, 1152, {t2}")
    A.e(f"v_and_b32 {t3}, 7, {L}")
    A.e(f"v_xor_b32 {t3}, {t3}, {t0}")
    A.e(f"v_xor_b32 {t4}, 4, {t3}")
    A.e(f"v_lshl_add_u32 {t3}, {t3}, 4, {t2}")
    A.e(f"v_lshl_add_u32 {t4}, {t4}, 4, {t2}")
    A.e(f"s_mul_i32 {s(sT0)}, {s(sW)}, {8*9216}")
    for j in range(8):
        A.e(f"s_add_u32 {s(sT1)}, {s(sT0)}, {j*9216 - 1024*(j%4)}")
        A.e(f"v_add_u32 {v(vXD+j)}, {s(sT1)}, {t3 if j%2==0 else t4}")
    A.e(f"s_mul_i32 {s(sT0)}, {s(sW)}, {2*9216}")
    for j in range(2):
        A.e(f"s_add_u32 {s(sT1)}, {s(sT0)}, {(24+j)*9216 - 1024*j}")
        A.e(f"v_add_u32 {v(vXD+8+j)}, {s(sT1)}, {t3 if j%2==0 else t4}")
    A.e(f"s_lshl_b32 {s(sXB)}, {s(sW)}, 13")
    A.e(f"s_lshl_b32 {s(sXE)}, {s(sW)}, 11")
    A.e(f"s_add_u32 {s(sXE)}, {s(sXE)}, {24*1024}")
    A.e(f"s_mul_i32 {s(sWB)}, {s(sW)}, {5*1024}")
    A.e(f"v_lshlrev_b32 {t2}, 1, {t0}")
    A.e(f"v_xor_b32 {t2}, {t2}, {t1}")
    A.e(f"v_lshlrev_b32 {t2}, 4, {t2}")
    A.e(f"v_lshl_add_u32 {t2}, {t0}, 13, {t2}")
    A.e(f"s_mul_i32 {s(sT0)}, {s(sW)}, 5")
    for j in range(6):
        A.e(f"s_add_u32 {s(sT1)}, {s(sT0)}, {j}")
        A.e(f"s_lshl_b32 {s(sT2)}, {s(sT1)}, 6")
        A.e(f"s_and_b32 {s(sT2)}, {s(sT2)}, 128")
        A.e(f"s_lshl_b32 {s(sT1)}, {s(sT1)}, 15")
        A.e(f"s_sub_u32 {s(sT1)}, {s(sT1)}, {1024*(j%3)}") if j % 3 else None
        A.e(f"v_xor_b32 {v(vWD+j)}, {s(sT2)}, {t2}")
        A.e(f"v_add_u32 {v(vWD+j)}, {s(sT1)}, {v(vWD+j)}")
    A.e(f"v_xor_b32 {t2}, {t1}, {t0}")
    for i in range(4):
        A.e(f"v_xor_b32 {t3}, {4*i}, {t2}")
        A.e(f"v_lshlrev_b32 {t3}, 4, {t3}")
        A.e(f"v_lshl_add_u32 {v(vKD+i)}, {t0}, 8, {t3}")
    A.e(f"v_lshlrev_b32 {t2}, 1, {t0}")
    A.e(f"v_xor_b32 {t2}, {t2}, {t1}")
    for i in range(2):
        A.e(f"v_xor_b32 {t3}, {8*i}, {t2}")
        A.e(f"v_lshlrev_b32 {t3}, 4, {t3}")
        A.e(f"v_lshl_add_u32 {v(vVD+i)}, {t0}, 8, {t3}")
    if CFG["lin"]:
        for r in list(range(vKD, vKD+4)) + list(range(vVD, vVD+2)): A.e(f"v_lshlrev_b32 {v(r)}, 4, {L}")
    A.e("s_waitcnt lgkmcnt(0)")
    stamp(A, "karg")
    A.e(f"s_mul_i32 {s(sT0)}, {s(sB)}, 276480")
    A.e(f"s_add_u32 {s(sX)}, s80, {s(sT0)}")
    A.e(f"s_addc_u32 {s(sX+1)}, s81, 0")
    A.e(f"s_mov_b32 {s(sX+2)}, 276480")
    A.e(f"s_mov_b32 {s(sX+3)}, 0x20000")
    A.e(f"s_lshl_b32 {s(sT0)}, {s(sH)}, 8")
    A.e(f"s_add_u32 {s(sWQ)}, s86, {s(sT0)}")
    A.e(f"s_addc_u32 {s(sWQ+1)}, s87, 0")
    A.e(f"s_sub_u32 {s(sWQ+2)}, {576*8192}, {s(sT0)}")
    A.e(f"s_mov_b32 {s(sWQ+3)}, 0x20000")
    A.e(f"s_lshl_b32 {s(sT0)}, {s(sB)}, 5")
    A.e(f"s_add_u32 {s(sT0)}, {s(sT0)}, {s(sH)}")
    A.e(f"s_lshl_b32 {s(sT0)}, {s(sT0)}, 18")
    for srd, p in ((sK, 82), (sV, 84)):
        A.e(f"s_add_u32 {s(srd)}, s{p}, {s(sT0)}")
        A.e(f"s_addc_u32 {s(srd+1)}, s{p+1}, 0")
        A.e(f"s_mov_b32 {s(srd+2)}, 262144")
        A.e(f"s_mov_b32 {s(srd+3)}, 0x20000")

def setup2(A):
    L = v(vLANE); t0, t1, t2, t3, t4 = [v(vT + i) for i in range(5)]
    A.e(f"v_lshrrev_b32 {t0}, 4, {L}")
    A.e(f"v_and_b32 {t1}, 15, {L}")
    A.e(f"v_lshrrev_b32 {t2}, 1, {t1}")
    A.e(f"v_xor_b32 {t2}, {t2}, {t0}")
    A.e(f"s_add_u32 {s(sT0)}, {s(sXB)}, {XS0}")
    for s2 in range(2):
        A.e(f"v_xor_b32 {t3}, {4*s2}, {t2}")
        A.e(f"v_lshlrev_b32 {t3}, 4, {t3}")
        A.e(f"v_lshl_add_u32 {t3}, {t1}, 7, {t3}")
        A.e(f"v_add_u32 {v(vXA+s2)}, {s(sT0)}, {t3}")
    A.e(f"v_lshrrev_b32 {t2}, 2, {t1}")
    A.e(f"v_and_b32 {t3}, 1, {t0}")
    A.e(f"v_lshl_add_u32 {t3}, {t3}, 2, {t2}")
    A.e(f"v_and_b32 {t4}, 3, {L}")
    A.e(f"v_lshlrev_b32 {t4}, 3, {t4}")
    tw = v(vT + 5); tv = v(vT + 6)
    A.e(f"v_lshl_add_u32 {tw}, {t0}, 3, {t2}")
    A.e(f"v_lshl_add_u32 {tw}, {tw}, 8, {t4}")
    A.e(f"v_add_u32 {tw}, {WS0}, {tw}")
    for t in range(8):
        A.e(f"v_xor_b32 {tv}, {t}, {t3}")
        A.e(f"v_lshl_add_u32 {v(vWA+t)}, {tv}, 5, {tw}")
    A.e(f"v_lshlrev_b32 {v(vOO)}, 4, {L}")
    A.e(f"s_mul_i32 {s(sT0)}, {s(sB)}, 15")
    A.e(f"s_lshl_b32 {s(sT1)}, {s(sW)}, 2")
    A.e(f"s_add_u32 {s(sT0)}, {s(sT0)}, {s(sT1)}")
    A.e(f"s_lshl_b32 {s(sT0)}, {s(sT0)}, 17")
    A.e(f"s_lshl_b32 {s(sT1)}, {s(sH)}, 12")
    A.e(f"s_add_u32 {s(sT0)}, {s(sT0)}, {s(sT1)}")
    A.e(f"s_add_u32 {s(sO)}, s94, {s(sT0)}")
    A.e(f"s_addc_u32 {s(sO+1)}, s95, 0")
    A.e(f"s_mov_b32 {s(sO+2)}, {3*131072 + 4096}")
    A.e(f"s_mov_b32 {s(sO+3)}, 0x20000")
    A.e(f"s_mov_b32 {s(sWO)}, s88")
    A.e(f"s_mov_b32 {s(sWO+1)}, s89")
    A.e(f"s_mov_b32 {s(sWO+2)}, {4096*1152}")
    A.e(f"s_mov_b32 {s(sWO+3)}, 0x20000")
    A.e(f"s_add_u32 {s(sWP)}, s94, {WS_WO}")
    A.e(f"s_addc_u32 {s(sWP+1)}, s95, 0")
    A.e(f"s_mov_b32 {s(sWP+2)}, {36*131072}")
    A.e(f"s_mov_b32 {s(sWP+3)}, 0x20000")
    A.e(f"s_mov_b32 {s(sSC)}, {f32hex(SCALE)}")
    A.e(f"s_mov_b32 {s(sSC+1)}, {f32hex(SCALE)}")
    A.e(f"s_mov_b32 {s(sSECOND)}, 0")

def attn_addr_init(A):
    L = v(vLANE); t0, t1, t2, t3, t4 = [v(vT + i) for i in range(5)]
    A.e(f"v_lshrrev_b32 {t0}, 4, {L}")
    A.e(f"v_and_b32 {t1}, 15, {L}")
    A.e(f"v_xor_b32 {t2}, {t0}, {t1}")
    for s_ in range(4):
        A.e(f"v_xor_b32 {t3}, {4*s_}, {t2}")
        A.e(f"v_lshlrev_b32 {t3}, 4, {t3}")
        A.e(f"v_lshl_add_u32 {v(vKA+s_)}, {t1}, 8, {t3}")
    A.e(f"v_lshrrev_b32 {t2}, 2, {t1}")
    A.e(f"v_and_b32 {t3}, 1, {t0}")
    A.e(f"v_lshl_add_u32 {t3}, {t3}, 2, {t2}")
    A.e(f"v_and_b32 {t4}, 3, {L}")
    A.e(f"v_lshlrev_b32 {t4}, 3, {t4}")
    tw = v(vT + 5); tv = v(vT + 6)
    A.e(f"v_lshl_add_u32 {tw}, {t0}, 2, {t2}")
    A.e(f"v_lshl_add_u32 {tw}, {tw}, 8, {t4}")
    A.e(f"v_add_u32 {tw}, {VRING + 4*SLOT}, {tw}")
    for t in range(8):
        A.e(f"v_xor_b32 {tv}, {t}, {t3}")
        A.e(f"v_lshl_add_u32 {v(vVA+t)}, {tv}, 5, {tw}")
    A.e(f"v_and_b32 {t2}, 3, {L}")
    A.e(f"v_cmp_eq_u32 vcc, 0, {t2}")
    A.e(f"v_mov_b32 {t3}, 0x3f803f80")
    A.e(f"s_mov_b32 {s(sKOFF)}, 0")
    A.e(f"s_mov_b32 {s(sPREV)}, {4*SLOT}")
    for i in range(4): A.e(f"v_cndmask_b32 {v(vONE+i)}, 0, {t3}, vcc")
    A.e(f"s_add_u32 {s(sKSO)}, {s(sW4K)}, {5*SLOT}")
    A.e(f"s_add_u32 {s(sVSO)}, {s(sW4K)}, {4*SLOT}")

def x_own(kc):
    ops = []
    for j in range(8):
        if j % 4 == 0: ops.append(("sal", f"s_add_u32 m0, {s(sXB)}, {XS(kc) + 1024*j}"))
        ops.append(("mem", lambda A, j=j: dma(A, vXD + j, sX, s(sXO), 1024 * (j % 4), ("x", kc), CFG["nt_x"])))
    return [("sal", f"s_mov_b32 {s(sXO)}, {128*kc}")] + ops
def x_extra(kc):
    ops = [("sal", f"s_mov_b32 {s(sXO)}, {128*kc}"), ("sal", f"s_add_u32 m0, {s(sXE)}, {XS(kc)}")]
    for j in range(2):
        ops.append(("mem", lambda A, j=j: dma(A, vXD + 8 + j, sX, s(sXO), 1024 * j, ("xe", kc), CFG["nt_x"])))
    return ops
def wq_ops(kc):
    ops = [("sal", f"s_mov_b32 {s(sWO_OFF)}, {64*8192*kc}")]
    for j in range(6):
        if j % 3 == 0: ops.append(("sal", f"s_add_u32 m0, {s(sWB)}, {WS(kc) + 1024*j}"))
        ops.append(("mem", lambda A, j=j: dma(A, vWD + j, sWQ, s(sWO_OFF), 1024 * (j % 3), ("wq", kc), CFG["nt_x"])))
    return ops
def kv_ops(kind, n):
    base = (KRING if kind == "K" else VRING) + SLOT * (n % 5)
    g = kv_group(kind, f"s_add_u32 m0, {s(sW4K)}, {base}", s(sT3), (kind, n))
    return [("sal", f"s_add_u32 {s(sT3)}, {s(sW4K)}, {n*SLOT}"), ("sal", g[0])] + [("mem", x) for x in g[1:]]
def emit_ops(A, ops):
    prev = None
    for kind, o in ops:
        if kind == "mem" and prev == "m0": A.e("s_nop 0")
        if isinstance(o, str): A.e(o)
        else: o(A)
        prev = "m0" if isinstance(o, str) and " m0," in o else kind
def place_ops(slots, positions, ops):
    pend = []; k = 0
    for kind, o in ops:
        if kind == "sal": pend.append(o)
        else:
            p = positions[k]; k += 1
            if pend:
                if slots[p-1].mem: slots[p-1].valu += pend
                else: slots[p-1].sal += pend
                pend = []
            slots[p].mem.append(o)
    return k

def wo_gather_ops():
    ops = []
    for i in range(5):
        for j in range(8):
            reg = a(aWG + 4 * i + j // 2) if j % 2 else v(vWG + 4 * i + j // 2)
            hi = "_hi" if j % 2 else ""
            vo = vT + (j // 4)
            ops.append(("mem", lambda A, reg=reg, hi=hi, vo=vo, i=i, j=j: A.vmem(
                f"buffer_load_short_d16{hi} {reg}, {v(vo)}, {s(sWO,4)}, {s(sT2)} offen offset:{1152*(j%4) + 128*i}", "wg")))
    return ops
def wo_gather_setup(A):
    L = v(vLANE)
    A.e(f"v_lshrrev_b32 {v(vT)}, 4, {L}")
    A.e(f"v_mul_u32_u24 {v(vT)}, {4*1152}, {v(vT)}")
    A.e(f"v_and_b32 {v(vT+1)}, 15, {L}")
    A.e(f"v_lshl_add_u32 {v(vT)}, {v(vT+1)}, 1, {v(vT)}")
    A.e(f"v_add_u32 {v(vT+1)}, {16*1152}, {v(vT)}")
    A.e(f"s_lshr_b32 {s(sT2)}, s2, 1")
    A.e(f"s_mul_i32 {s(sT2)}, {s(sT2)}, {32*1152}")
    A.e(f"s_and_b32 {s(sT0)}, s2, 1")
    A.e(f"s_mul_i32 {s(sT0)}, {s(sT0)}, 18")
    A.e(f"s_add_u32 {s(sT0)}, {s(sT0)}, {s(sW)}")
    A.e(f"s_lshl_b32 {s(sT0)}, {s(sT0)}, 5")
    A.e(f"s_add_u32 {s(sT2)}, {s(sT2)}, {s(sT0)}")
def wo_store(A):
    A.e(f"s_and_b32 {s(sT0)}, s2, 1")
    A.e(f"s_mul_i32 {s(sT0)}, {s(sT0)}, 18")
    A.e(f"s_add_u32 {s(sT0)}, {s(sT0)}, {s(sW)}")
    A.e(f"s_lshl_b32 {s(sT0)}, {s(sT0)}, 17")
    A.e(f"s_lshr_b32 {s(sT1)}, s2, 1")
    A.e(f"s_lshl_b32 {s(sT1)}, {s(sT1)}, 10")
    A.e(f"s_add_u32 {s(sT0)}, {s(sT0)}, {s(sT1)}")
    for r in range(20): A.e(f"v_accvgpr_read_b32 {v(vC+r)}, {a(aWG+r)}")
    A.e(f"s_mov_b32 {s(sT1)}, 0xffff")
    for r in range(20): A.e(f"v_bfi_b32 {v(vC+r)}, {s(sT1)}, {v(vWG+r)}, {v(vC+r)}")
    for i in range(5):
        if i == 4:
            A.e(f"s_cmp_ge_u32 {s(sW)}, 2")
            A.e(f"s_cselect_b32 {s(sT0)}, {36*131072}, {s(sT0)}")
        A.vmem(f"buffer_store_dwordx4 {v(vC+4*i,4)}, {v(vOO)}, {s(sWP,4)}, {s(sT0)} offen", "st")
        if i < 4: A.e(f"s_add_u32 {s(sT0)}, {s(sT0)}, {4*131072}")

def qproj(A, nq):
    main = nq == 4
    if main:
        emit_ops(A, wq_ops(0) + x_own(0) + x_extra(0) + wq_ops(1) + x_own(1) + x_extra(1) + wq_ops(2))
    else:
        L = v(vLANE); t0, t1, t2 = v(vT), v(vT+1), v(vT+2)
        if CFG["touch"]:
            A.e(f"v_and_b32 {t0}, 31, {L}")
            A.e(f"v_min_u32 {t0}, 29, {t0}")
            A.e(f"v_mul_u32_u24 {t0}, 1152, {t0}")
            A.e(f"v_lshrrev_b32 {t1}, 5, {L}")
            A.e(f"v_lshl_add_u32 {t0}, {t1}, 7, {t0}")
            A.e(f"s_and_b32 {s(sT0)}, {s(sH)}, 7")
            A.e(f"s_mul_i32 {s(sT0)}, {s(sT0)}, {30*1152}")
            A.e(f"v_and_b32 {t2}, 31, {L}")
            A.e(f"v_lshrrev_b32 {t2}, 1, {t2}")
            A.e(f"v_lshl_add_u32 {t2}, {t1}, 6, {t2}")
            A.e(f"v_lshlrev_b32 {t2}, 13, {t2}")
            A.e(f"v_and_b32 {t1}, 1, {L}")
            A.e(f"v_lshl_add_u32 {t2}, {t1}, 7, {t2}")
            A.e(f"s_and_b32 {s(sT1)}, {s(sB)}, 3")
            A.e(f"s_lshl_b32 {s(sT1)}, {s(sT1)}, 17")
            A.e(f"s_add_u32 {s(sT1)}, {s(sT1)}, {3*64*8192}")
            for i in range(4):
                c = min(2 + 2 * i, 7)
                A.vmem(f"buffer_load_dword {v(vWG+i)}, {t0}, {s(sX,4)}, {s(sT0)} offen offset:{128*c}{CFG['nt_x']}", "touch")
                if i < 3:
                    A.vmem(f"buffer_load_dword {v(vWG+4+i)}, {t2}, {s(sWQ,4)}, {s(sT1)} offen{CFG['nt_x']}", "touch")
                    A.e(f"s_add_u32 {s(sT1)}, {s(sT1)}, {2*64*8192}")
        for kind, n in (("K", 0), ("K", 1), ("V", 0)):
            for w in range(4):
                base = (KRING if kind == "K" else VRING) + SLOT * n + 4096 * w
                g = kv_group(kind, f"s_mov_b32 m0, {base}", s(sT3), (kind, n))
                emit_ops(A, [("sal", g[0]), ("sal", f"s_mov_b32 {s(sT3)}, {n*SLOT + 4096*w}")] + [("mem", x) for x in g[1:]])
    stamp(A, "issued")
    setup2(A)
    wo_gather_setup(A)
    NS = 16 * nq
    BAR = 12 * nq
    LEAD = NS - BAR
    slots = [Slot() for _ in range(LEAD + 9 * NS)]
    def G(kc, i): return LEAD + kc * NS + i
    for kc in range(9):
        bb = aQB + 32 * (kc % 2)
        for i in range(NS):
            f, qt = i // nq, i % nq
            s2, t = f // 8, f % 8
            d = v(vACC + 32 * qt + 4 * t, 4)
            slots[G(kc, i)].m = mfma(d, a(aQA + 4 * f, 4), a(bb + 8 * qt + 4 * s2, 4), d if (kc or s2) else "0")
        def rdA(f, j, kc=kc):
            s2, t = f // 8, f % 8
            off = WS(kc) - WS0 + (32 * s2 + 4 * j) * 256
            return lambda A: A.ds(f"ds_read_b64_tr_b16 {a(aQA + 4*f + 2*j, 2)}, {v(vWA+t)} offset:{off}", ("A", kc, f, j))
        def rdB(qt, s2, kc=kc, bb=bb):
            off = XS(kc) - XS0 + 2048 * qt
            return lambda A: A.ds(f"ds_read_b128 {a(bb + 8*qt + 4*s2, 4)}, {v(vXA+s2)} offset:{off}", ("B", kc, qt, s2))
        head = [rdB(0, 0), rdA(0, 0), rdA(0, 1)] + [rdB(q, 0) for q in range(1, nq)] + [rdA(1, 0), rdA(1, 1), rdA(2, 0), rdA(2, 1)] \
             + [rdB(q, 1) for q in range(nq)] + [rdA(3, 0), rdA(3, 1)]
        p0 = G(kc, -LEAD)
        for k, r in enumerate(head):
            slots[p0 + k * LEAD // len(head)].mem.append(r)
        rest = [rdA(f, j) for f in range(4, 16) for j in range(2)]
        span = BAR - 2 * nq
        for k, r in enumerate(rest):
            slots[G(kc, k * span // len(rest))].mem.append(r)
        slots[G(kc, -1)].valu.append(lambda A, kc=kc: A.wait_lds(("B", kc, nq - 1, 0)))
        for f in range(1, 16):
            tag = ("A", kc, f, 1)
            if f == 3: tag = ("A", kc, 3, 1)
            slots[G(kc, f * nq - 1)].sal.append(lambda A, tag=tag: A.wait_lds(tag))
        def bar(A, kc=kc):
            if main: A.wait_vm(("xe", kc))
            A.e("s_waitcnt lgkmcnt(0)")
            A.e("s_barrier")
            stamp(A, "bm1" if kc == 0 else f"b{kc-1}")
        slots[p0].sal.insert(0, bar)
        early = []; late = []
        if main:
            if 1 <= kc <= 7: early += x_extra(kc + 1)
            if 1 <= kc <= 6: early += wq_ops(kc + 2)
            if kc <= 6: late += x_own(kc + 2)
        if kc == 7: early += (wo_gather_ops() if CFG["gather"] else []) + kv_ops("K", 2)
        if kc == 8: early += kv_ops("V", 1) + kv_ops("K", 3) + kv_ops("V", 2)
        ne = sum(1 for k, _ in early if k == "mem"); nl = sum(1 for k, _ in late if k == "mem")
        if late:
            pe = [p0 + 1 + 2 * k for k in range(ne)]
            pl = [G(kc, 3 * nq + 1 + 3 * k) for k in range(nl)]
            place_ops(slots, pe, early); place_ops(slots, pl, late)
        elif early:
            tot = NS - 4
            pe = [p0 + 1 + k * tot // ne for k in range(ne)]
            place_ops(slots, pe, early)
    def bar8(A):
        if not main: A.wait_vm(("K", 0))
        A.e("s_waitcnt lgkmcnt(0)")
        A.e("s_barrier")
    p8 = G(8, BAR)
    slots[p8].sal.insert(0, bar8)
    place_ops(slots, [p8 + 1 + k for k in range(8)], kv_ops("K", 4) + kv_ops("V", 3))
    emit_slots(A, slots)

def qconvert(A, nq):
    A.e("s_nop 7")
    for qt in range(nq):
        for u in range(4):
            src = vACC + 32 * qt + 8 * u; dst = vQ + 16 * qt + 4 * u
            for j in range(4):
                A.e(f"v_pk_mul_f32 {v(src+2*j,2)}, {v(src+2*j,2)}, {s(sSC,2)}")
            for j in range(4):
                A.e(f"v_cvt_pk_bf16_f32 {v(dst+j)}, {v(src+2*j)}, {v(src+2*j+1)}")
        for u in range(4):
            dst = vQ + 16 * qt + 4 * u
            if u == 0: A.e("s_nop 0")
            A.e(f"v_permlane32_swap_b32 {v(dst)}, {v(dst+2)}")
            A.e(f"v_permlane32_swap_b32 {v(dst+1)}, {v(dst+3)}")
        for u in range(4):
            dst = vQ + 16 * qt + 4 * u
            A.e(f"v_permlane16_swap_b32 {v(dst)}, {v(dst+2)}")
            A.e(f"v_permlane16_swap_b32 {v(dst+1)}, {v(dst+3)}")

def k_read(T, f):
    kt, s_ = f // 4, f % 4
    off = 8192 * (T % 2) + 4096 * kt
    return lambda A: A.ds(f"ds_read_b128 {a(aK+4*f,4)}, {v(vKA+s_)} offset:{off}", ("K", f))
def v_read(T, i):
    t, j = i // 2, i % 2
    off = 8192 * (T % 2) + 4096 * j
    return lambda A: A.ds(f"ds_read_b64_tr_b16 {a(aV+4*t+2*j,2)}, {v(vVA+t)} offset:{off}", ("V", i))
def qk_list(T, nq, czero=False):
    if CFG["qkorder"] == "A": order = [(kt, s_, qt) for kt in range(2) for s_ in range(4) for qt in range(nq)]
    else: order = [(kt, s_, qt) for qt in range(nq) for kt in range(2) for s_ in range(4)]
    out = []
    for kt, s_, qt in order:
        d = v(vS + 32 * (T % 2) + 8 * qt + 4 * kt, 4)
        c = d if s_ else ("0" if czero else v(vC + 4 * qt, 4))
        out.append(mfma(d, a(aK + 4 * (4 * kt + s_), 4), v(vQ + 16 * qt + 4 * s_, 4), c))
    return out

def crosslane_max(A, regs, tmp):
    for sw in ("v_permlane32_swap_b32", "v_permlane16_swap_b32"):
        for i, r in enumerate(regs): A.e(f"v_mov_b32 {v(tmp+i)}, {v(r)}")
        A.e("s_nop 1")
        for i, r in enumerate(regs): A.e(f"{sw} {v(tmp+i)}, {v(r)}")
        A.e("s_nop 1")
        for i, r in enumerate(regs): A.e(f"v_max_f32 {v(r)}, {v(r)}, {v(tmp+i)}")

def zero_acc(A, nq):
    for r in range(32 * nq): A.e(f"v_accvgpr_write_b32 {a(aO+r)}, 0")
    for r in range(4 * nq): A.e(f"v_accvgpr_write_b32 {a(aL+r)}, 0")

def first_tile(A, nq):
    for f in range(8): k_read(0, f)(A)
    zero_acc(A, nq)
    A.e("s_waitcnt lgkmcnt(0)")
    for m in qk_list(0, nq, czero=True): A.e(m)
    A.e("s_nop 7")
    for qt in range(nq):
        b = vS + 8 * qt; c = vC + 4 * qt
        A.e(f"v_max3_f32 {v(c)}, {v(b)}, {v(b+1)}, {v(b+2)}")
        A.e(f"v_max3_f32 {v(c+1)}, {v(b+3)}, {v(b+4)}, {v(b+5)}")
        A.e(f"v_max3_f32 {v(c)}, {v(c)}, {v(b+6)}, {v(b+7)}")
        A.e(f"v_max_f32 {v(c)}, {v(c)}, {v(c+1)}")
    crosslane_max(A, [vC + 4 * qt for qt in range(nq)], vT)
    for qt in range(nq):
        b = vS + 8 * qt; c = vC + 4 * qt
        for e in range(8): A.e(f"v_sub_f32 {v(b+e)}, {v(b+e)}, {v(c)}")
        for e in (3, 2, 1, 0): A.e(f"v_sub_f32 {v(c+e)}, 0, {v(c)}")

def attn_slots(nq):
    P = 17 * nq
    NT = 34
    slots = [Slot() for _ in range(NT * P)]
    E = [2 * e - 4 for e in range(8 * nq)]
    Em = set(x % P for x in E)
    others = [j for j in range(P) if j not in Em]
    BARP = 8 * nq - 2
    aft = [j for j in others if j > BARP]
    kpos = aft[:8]; dpos = aft[8:12]
    seq = aft[12:] + [j + P for j in others if j < BARP]
    if nq == 4: vpos = [x for x in seq if x % 2 == 1][:16]
    else: vpos = [seq[i // 2] for i in range(16)]
    assert vpos[-1] + 6 <= P + BARP, vpos
    used2 = {}
    for T in range(NT):
        g = T * P
        if T < 32:
            for i, m in enumerate(qk_list(T, nq)): slots[g + i].m = m
        if 0 < T <= 32: slots[g - 1].sal.append(lambda A: A.wait_lds(("K", 7)))
        Tp = T - 2
        if 0 <= Tp < 32:
            pb = vP + 16 * (Tp % 2)
            k = 8 * nq
            for t in range(8):
                for qt in range(nq):
                    d = a(aO + 32 * qt + 4 * t, 4)
                    slots[g + k].m = mfma(d, a(aV + 4 * t, 4), v(pb + 4 * qt, 4), d); k += 1
            for qt in range(nq):
                d = a(aL + 4 * qt, 4)
                slots[g + k].m = mfma(d, v(vONE, 4), v(pb + 4 * qt, 4), d); k += 1
            for i in range(16): slots[g - P + vpos[i]].mem.append(v_read(Tp, i))
            slots[g + BARP].sal.append(lambda A: A.wait_lds(("V", 15)))
        Ts = T - 1
        if 0 <= Ts < 32:
            sb = vS + 32 * (Ts % 2); pb = vP + 16 * (Ts % 2)
            for e in range(8 * nq):
                slots[g + E[e]].valu.append(f"v_exp_f32 {v(sb+e)}, {v(sb+e)}")
                if e % 2:
                    slots[g + E[e] + 1].valu.append(f"v_cvt_pk_bf16_f32 {v(pb+e//2)}, {v(sb+e-1)}, {v(sb+e)}")
        if T < 32:
            for f in range(8): slots[g + kpos[f]].mem.append(k_read(T + 1, f))
        if T < 32 and T % 2 == 1:
            slots[g + BARP].sal += ["s_waitcnt vmcnt(24)"] + ([] if CFG["nobar"] else ["s_barrier"])
            sal = [f"s_add_u32 {s(sNEXT)}, {s(sKOFF)}, {SLOT}", f"s_cmp_eq_u32 {s(sNEXT)}, {5*SLOT}",
                   f"s_cselect_b32 {s(sNEXT)}, 0, {s(sNEXT)}", f"s_sub_u32 {s(sDK)}, {s(sNEXT)}, {s(sKOFF)}",
                   f"s_sub_u32 {s(sDV)}, {s(sKOFF)}, {s(sPREV)}", f"s_add_u32 {s(sVD)}, {s(sPREV)}, {VRING}",
                   f"s_add_u32 {s(sVD)}, {s(sVD)}, {s(sW4K)}", f"s_mov_b32 {s(sPREV)}, {s(sKOFF)}",
                   f"s_mov_b32 {s(sKOFF)}, {s(sNEXT)}"]
            for i, x in enumerate(sal): slots[g + i].sal.append(x)
            cv = set((x + 1) % P for k, x in enumerate(E) if k % 2)
            free = [j for j in others if j not in cv]
            kfree = [j for j in free if 5 < j < kpos[0]][:4]
            assert len(kfree) == 4, kfree
            for i in range(4): slots[g + kfree[i]].valu.append(f"v_add_u32 {v(vKA+i)}, {s(sDK)}, {v(vKA+i)}")
            vfree = [j for j in free if vpos[-1] - P < j < vpos[0] and j not in kfree]
            while len(vfree) < 8: vfree = sorted(vfree + vfree[:8 - len(vfree)])
            for i in range(8): slots[g + vfree[i]].valu.append(f"v_add_u32 {v(vVA+i)}, {s(sDV)}, {v(vVA+i)}")
            grp = kv_group("K", f"s_add_u32 m0, {s(sPREV)}, {s(sW4K)}", s(sKSO), "kv")
            slots[g + dpos[0] - 1].sal.append(grp[0])
            for i in range(4):
                if not CFG["nodma"]: slots[g + dpos[i]].mem.append(grp[1 + i])
            slots[g + dpos[3] + 1].sal.append(f"s_add_u32 {s(sKSO)}, {s(sKSO)}, {SLOT}")
        if 2 <= T < 32 and T % 2 == 0:
            grp = kv_group("V", f"s_mov_b32 m0, {s(sVD)}", s(sVSO), "kv")
            slots[g + dpos[0] - 1].sal.append(grp[0])
            for i in range(4):
                if not CFG["nodma"]: slots[g + dpos[i]].mem.append(grp[1 + i])
            slots[g + dpos[3] + 1].sal.append(f"s_add_u32 {s(sVSO)}, {s(sVSO)}, {SLOT}")
    return slots, P

def fix_nomfma(slots):
    for i, sl in enumerate(slots):
        if sl.m is None and (sl.valu or sl.mem):
            sl.sal.insert(0, "s_nop 0")

def attention(A, nq):
    R = f"q{nq}"
    slots, P = attn_slots(nq)
    for i in range(8 * nq): slots[i].m = None
    A.label(f"L_attn_{R}")
    pro = slots[8 * nq:2 * P]; fix_nomfma(pro)
    for sl in slots[:8 * nq]:
        for f in sl.mem: f(A)
    emit_slots(A, pro)
    A.e(f"s_mov_b32 {s(sCNT)}, 15")
    stamp(A, "loop")
    texts = []
    for n in (1, 2, 15):
        B = Asm(); B.lds = list(A.lds); B.vm = list(A.vm)
        if n > 1: emit_slots(B, slots[2 * (n - 1) * P:2 * n * P]); B.lines = []
        emit_slots(B, slots[2 * n * P:2 * (n + 1) * P]); texts.append(B.text())
    if not (texts[0] == texts[1] == texts[2]):
        import difflib
        for x, y in ((0, 1), (1, 2)):
            print("".join(difflib.unified_diff(texts[x].splitlines(True), texts[y].splitlines(True), n=1)))
        raise SystemExit("steady state mismatch")
    A.raw(".p2align 6")
    A.label(f"L_loop_{R}")
    body = slots[2 * P:4 * P]
    body[-3].sal.append(f"s_sub_u32 {s(sCNT)}, {s(sCNT)}, 1")
    body[-2].sal.append(f"s_cmp_lg_u32 {s(sCNT)}, 0")
    if CFG["itst"]:
        body[P + 8*nq].sal += ["s_memrealtime s[68:69]"]
        body[P + 8*nq + 24].sal += ["s_waitcnt lgkmcnt(0)", f"v_cmp_eq_u32 vcc, {s(sCNT)}, {v(vLANE)}", "v_mov_b32 v61, s68", "s_nop 0", "v_cndmask_b32 v62, v62, v61, vcc"]
    emit_slots(A, body)
    A.e(f"s_cbranch_scc1 L_loop_{R}")
    stamp(A, "loopend")
    epi = slots[32 * P:]; fix_nomfma(epi)
    emit_slots(A, epi)
    stamp(A, "pvdone")

def epilogue(A, nq):
    R = f"q{nq}"
    A.e("s_nop 7")
    for qt in range(nq): A.e(f"v_accvgpr_read_b32 {v(vT+qt)}, {a(aL+4*qt)}")
    A.e(f"s_mov_b32 {s(sT0)}, {f32hex(2.0**40)}")
    A.e(f"s_mov_b64 {s(sT2+1,2)}, 0") if False else None
    A.e(f"v_mov_b32 {v(vT+4)}, 0")
    for qt in range(nq):
        A.e(f"v_cmp_nlt_f32 vcc, {v(vT+qt)}, {v(vT+5)}") if False else None
        A.e(f"v_cmp_ngt_f32 vcc, {s(sT0)}, {v(vT+qt)}")
        A.e("s_nop 1")
        A.e(f"v_cndmask_b32 {v(vT+4)}, {v(vT+4)}, 1, vcc") if False else A.e(f"v_addc_co_u32 {v(vT+4)}, vcc, 0, {v(vT+4)}, vcc")
    A.e(f"v_lshlrev_b32 {v(vT+5)}, 2, v0")
    A.ds(f"ds_write_b32 {v(vT+5)}, {v(vT+4)} offset:{KRING + 1*SLOT}", "flag")
    for qt in range(nq): A.e(f"v_rcp_f32 {v(vT+qt)}, {v(vT+qt)}")
    for qt in range(nq):
        if qt: A.e(f"s_mov_b32 {s(sT1)}, {qt*131072}")
        for u in range(4):
            tb = vS + 8 * ((qt * 4 + u) % 8); pb = vP + 4 * ((qt * 4 + u) % 8)
            for j in range(8): A.e(f"v_accvgpr_read_b32 {v(tb+j)}, {a(aO + 32*qt + 8*u + j)}")
            for j in range(8): A.e(f"v_mul_f32 {v(tb+j)}, {v(tb+j)}, {v(vT+qt)}")
            for j in range(4): A.e(f"v_cvt_pk_bf16_f32 {v(pb+j)}, {v(tb+2*j)}, {v(tb+2*j+1)}")
            so = s(sT1) if qt else "0"
            A.vmem(f"buffer_store_dwordx4 {v(pb,4)}, {v(vOO)}, {s(sO,4)}, {so} offen offset:{1024*u}", "st")
    wo_store(A)
    A.e("s_waitcnt lgkmcnt(0)")
    A.e("s_barrier")
    A.e(f"v_lshlrev_b32 {v(vT+5)}, 4, {v(vLANE)}")
    A.e(f"ds_read_b128 {v(24,4)}, {v(vT+5)} offset:{KRING + 1*SLOT}")
    A.e("s_waitcnt lgkmcnt(0)")
    A.e(f"v_or_b32 v24, v24, v25")
    A.e(f"v_or3_b32 v24, v24, v26, v27")
    A.e(f"v_cmp_ne_u32 vcc, 0, v24")
    A.e(f"s_cmp_lg_u32 {s(sSECOND)}, 0")
    A.e(f"s_cbranch_scc1 L_done_{R}")
    A.e("s_nop 2")
    A.e(f"s_cbranch_vccnz L_fallback_{R}")
    A.label(f"L_done_{R}")

def fallback(A, nq):
    R = f"q{nq}"
    A.label(f"L_fallback_{R}")
    A.e(f"s_mov_b32 {s(sSECOND)}, 1")
    attn_addr_init(A)
    for qt in range(nq): A.e(f"v_mov_b32 {v(vC+4*qt)}, 0xff800000")
    A.e(f"s_mov_b32 {s(sT3)}, {s(sW4K)}")
    A.e(f"s_mov_b32 {s(sCNT)}, 16")
    A.e("s_waitcnt vmcnt(0)")
    A.label(f"L_fb_loop_{R}")
    A.e("s_barrier")
    g = kv_group("K", f"s_mov_b32 m0, {s(sW4K)}", s(sT3), "fb")
    emit_ops(A, [("sal", g[0])] + [("mem", x) for x in g[1:]])
    A.e("s_waitcnt vmcnt(0)")
    A.e("s_barrier")
    for T in range(2):
        for f in range(8): k_read(T, f)(A)
        A.e("s_waitcnt lgkmcnt(0)")
        for m in qk_list(T, nq, czero=True): A.e(m)
        A.e("s_nop 7")
        for qt in range(nq):
            b = vS + 32 * T + 8 * qt; c = vC + 4 * qt
            for e in range(0, 8, 2): A.e(f"v_max3_f32 {v(c)}, {v(c)}, {v(b+e)}, {v(b+e+1)}")
    A.e(f"s_add_u32 {s(sT3)}, {s(sT3)}, {SLOT}")
    A.e(f"s_sub_u32 {s(sCNT)}, {s(sCNT)}, 1")
    A.e(f"s_cmp_lg_u32 {s(sCNT)}, 0")
    A.e(f"s_cbranch_scc1 L_fb_loop_{R}")
    crosslane_max(A, [vC + 4 * qt for qt in range(nq)], vT)
    for qt in range(nq):
        c = vC + 4 * qt
        for e in (3, 2, 1, 0): A.e(f"v_sub_f32 {v(c+e)}, 0, {v(c)}")
    A.e("s_barrier")
    for kind, n in (("K", 0), ("K", 1), ("V", 0), ("K", 2), ("V", 1), ("K", 3), ("V", 2), ("K", 4), ("V", 3)):
        emit_ops(A, kv_ops(kind, n))
    zero_acc(A, nq)
    A.e("s_waitcnt vmcnt(0)")
    A.e("s_barrier")
    for f in range(8): k_read(0, f)(A)
    A.e("s_waitcnt lgkmcnt(0)")
    for m in qk_list(0, nq): A.e(m)
    A.e("s_nop 7")
    A.e(f"s_branch L_attn_{R}")

def write_stamps(A):
    if not CFG["stamps"]: return
    A.e("s_waitcnt vmcnt(0)")
    stamp(A, "end")
    A.e(f"s_add_u32 {s(sST)}, s94, {WS_STAMP}")
    A.e(f"s_addc_u32 {s(sST+1)}, s95, 0")
    A.e(f"s_mov_b32 {s(sST+2)}, 0x100000")
    A.e(f"s_mov_b32 {s(sST+3)}, 0x20000")
    A.e(f"s_lshl_b32 {s(sT0)}, s2, 2")
    A.e(f"s_add_u32 {s(sT0)}, {s(sT0)}, {s(sW)}")
    A.e(f"s_lshl_b32 {s(sT0)}, {s(sT0)}, 8")
    A.e(f"v_lshlrev_b32 v2, 2, {v(vLANE)}")
    A.e(f"buffer_store_dword v63, v2, {s(sST,4)}, {s(sT0)} offen")
    A.e(f"s_cmp_eq_u32 {s(sT0)}, {CFG.get('dbgwg', 0)}")
    A.e(f"s_cselect_b32 {s(sT1)}, 0, 256")
    A.e(f"s_mov_b32 s96, s92")
    A.e(f"s_mov_b32 s97, s93")
    A.e(f"s_mov_b32 s98, 256")
    A.e(f"s_mov_b32 s99, 0x20000")
    A.e(f"v_readlane_b32 s64, v63, 0")
    A.e("s_nop 1")
    A.e(f"v_subrev_u32 v61, s64, v63")
    A.e(f"buffer_store_dword v61, v2, s[96:99], {s(sT1)} offen")
    A.e(f"s_add_u32 {s(sT0)}, {s(sT0)}, 0x40000")
    A.e(f"buffer_store_dword v62, v2, {s(sST,4)}, {s(sT0)} offen")

def k1():
    A = Asm()
    A.raw(".globl attn_kernel\n.p2align 8\n.type attn_kernel,@function\nattn_kernel:")
    setup(A)
    A.e(f"s_cmp_eq_u32 {s(sW)}, 3")
    A.e("s_cbranch_scc1 L_role_q3")
    out = A.text()
    for nq in (4, 3):
        A = Asm()
        A.label(f"L_role_q{nq}")
        qproj(A, nq)
        stamp(A, "qdone")
        qconvert(A, nq)
        attn_addr_init(A)
        stamp(A, "qconv")
        first_tile(A, nq)
        attention(A, nq)
        epilogue(A, nq)
        write_stamps(A)
        A.e("s_endpgm")
        fallback(A, nq)
        out += A.text()
    out += "L_k1_end:\n    s_endpgm\n"
    return out

def k2():
    A = Asm()
    A.raw(".globl oproj_kernel\n.p2align 8\n.type oproj_kernel,@function\noproj_kernel:")
    D = 6
    A.e("s_cmp_ge_u32 s2, 240")
    A.e("s_cbranch_scc1 L_k2_end")
    if CFG["stamps"]: A.e("s_memrealtime s[40:41]")
    A.e("s_load_dwordx2 s[4:5], s[0:1], 56")
    A.e("s_load_dwordx2 s[6:7], s[0:1], 40")
    if CFG["stamps"]: A.e("s_load_dwordx2 s[44:45], s[0:1], 48")
    A.e("v_and_b32 v1, 63, v0")
    A.e("v_lshrrev_b32 v2, 6, v0")
    A.e("s_and_b32 s20, s2, 7")
    A.e("v_readfirstlane_b32 s19, v2")
    A.e("s_lshr_b32 s21, s2, 3")
    A.e("s_mul_i32 s22, s21, 43")
    A.e("s_lshr_b32 s22, s22, 8")
    A.e("s_mul_i32 s23, s22, 6")
    A.e("s_sub_u32 s23, s21, s23")
    A.e("s_lshr_b32 s24, s20, 1")
    A.e("s_mul_i32 s24, s24, 5")
    A.e("s_add_u32 s22, s22, s24")
    A.e("s_and_b32 s24, s20, 1")
    A.e("s_mul_i32 s24, s24, 6")
    A.e("s_add_u32 s23, s23, s24")
    A.e("v_lshlrev_b32 v3, 4, v0")
    for i in range(1, 6): A.e(f"v_add_u32 v{3+i}, {i*131072}, v3")
    A.e("s_waitcnt lgkmcnt(0)")
    A.e(f"s_mul_i32 s24, s22, {6*131072}")
    A.e("s_add_u32 s8, s4, s24"); A.e("s_addc_u32 s9, s5, 0"); A.e(f"s_mov_b32 s10, {6*131072}"); A.e("s_mov_b32 s11, 0x20000")
    A.e(f"s_mul_i32 s24, s23, {3*131072}")
    A.e(f"s_add_u32 s24, s24, {WS_WO}")
    A.e("s_add_u32 s12, s4, s24"); A.e("s_addc_u32 s13, s5, 0"); A.e(f"s_mov_b32 s14, {3*131072}"); A.e("s_mov_b32 s15, 0x20000")
    FB = 16
    def loads(st):
        b = FB + 36 * (st % D)
        ops = [lambda A: A.e(f"s_mov_b32 s25, {st*4096}")]
        for j in range(3): ops.append(lambda A, j=j: A.vmem(f"buffer_load_dwordx4 {v(b+4*j,4)}, v{3+j}, s[12:15], s25 offen", st))
        for i in range(6): ops.append(lambda A, i=i: A.vmem(f"buffer_load_dwordx4 {v(b+12+4*i,4)}, v{3+i}, s[8:11], s25 offen", st))
        return ops
    for st in range(D):
        for o in loads(st): o(A)
    for st in range(32):
        b = FB + 36 * (st % D)
        A.wait_vm(st)
        prev = loads(st - 1 + D) if 1 <= st and st - 1 + D < 32 else []
        k = 0
        for i in range(6):
            for j in range(3):
                d = a(4 * (3 * i + j), 4)
                A.e(mfma(d, v(b + 4 * j, 4), v(b + 12 + 4 * i, 4), d if st else "0"))
                if k < len(prev): prev[k](A); k += 1
                if k == 1: prev[k](A); k += 1
    if CFG["stamps"]: A.e("s_memrealtime s[52:53]")
    A.e("s_nop 7")
    A.e("v_lshlrev_b32 v10, 4, v1")
    A.e(f"s_mul_i32 s24, s19, {18*1024}")
    A.e("v_add_u32 v11, s24, v10")
    for t in range(18): A.e(f"ds_write_b128 v11, {a(4*t,4)} offset:{1024*t}")
    A.e("s_mov_b32 s16, s6"); A.e("s_mov_b32 s17, s7"); A.e(f"s_mov_b32 s18, {1920*1152}")
    A.e("s_lshl_b32 s24, s19, 10")
    A.e("v_add_u32 v11, s24, v10")
    A.e(f"v_add_u32 v14, {36*1024}, v11")
    A.e("s_mov_b32 s26, s19")
    A.e("s_mov_b32 s19, 0x20000")
    A.e("v_and_b32 v12, 15, v1")
    A.e("v_mul_u32_u24 v12, 1152, v12")
    A.e("v_lshrrev_b32 v13, 4, v1")
    A.e("v_lshl_add_u32 v12, v13, 3, v12")
    A.e(f"s_mul_i32 s27, s22, {96*1152}")
    A.e(f"s_mul_i32 s28, s23, 96")
    A.e("s_add_u32 s27, s27, s28")
    A.e("s_waitcnt lgkmcnt(0)")
    A.e("s_barrier")
    for r in range(5):
        for w in range(4): A.e(f"ds_read_b128 {v(16+16*r+4*w,4)}, v{11 if w < 2 else 14} offset:{4096*r + 18*1024*(w%2)}")
    for r in range(5):
        A.e(f"s_waitcnt lgkmcnt({min(15, 4*(4-r))})")
        b = 16 + 16 * r
        for e in range(4):
            A.e(f"v_add_f32 v{b+e}, v{b+e}, v{b+4+e}")
            A.e(f"v_add_f32 v{b+8+e}, v{b+8+e}, v{b+12+e}")
        for e in range(4): A.e(f"v_add_f32 v{b+e}, v{b+e}, v{b+8+e}")
        A.e(f"v_cvt_pk_bf16_f32 v{b}, v{b}, v{b+1}")
        A.e(f"v_cvt_pk_bf16_f32 v{b+1}, v{b+2}, v{b+3}")
        A.e(f"s_add_u32 s28, s26, {4*r}")
        A.e("s_mul_i32 s29, s28, 86")
        A.e("s_lshr_b32 s29, s29, 8")
        A.e("s_mul_i32 s30, s29, 3")
        A.e("s_sub_u32 s30, s28, s30")
        A.e(f"s_mul_i32 s29, s29, {16*1152}")
        A.e("s_lshl_b32 s30, s30, 5")
        A.e("s_add_u32 s29, s29, s30")
        A.e("s_add_u32 s29, s29, s27")
        if r == 4:
            A.e("s_cmp_ge_u32 s28, 18")
            A.e(f"s_cselect_b32 s29, {1920*1152}, s29")
        A.e(f"buffer_store_dwordx2 {v(b,2)}, v12, s[16:19], s29 offen")
    if CFG["stamps"]:
        A.e("s_waitcnt vmcnt(0)")
        A.e("s_memrealtime s[42:43]")
        A.e(f"s_add_u32 s48, s4, {WS_STAMP}"); A.e("s_addc_u32 s49, s5, 0"); A.e("s_mov_b32 s50, 0x100000"); A.e("s_mov_b32 s51, 0x20000")
        A.e("s_mov_b32 s46, 256"); A.e("s_mov_b32 s47, 0x20000")
        A.e("v_lshlrev_b32 v2, 2, v1")
        A.e("s_lshl_b32 s28, s2, 2"); A.e("s_add_u32 s28, s28, s26"); A.e("s_lshl_b32 s28, s28, 8")
        A.e("buffer_load_dword v63, v2, s[48:51], s28 offen")
        A.e("s_waitcnt vmcnt(0) lgkmcnt(0)")
        A.e("v_writelane_b32 v63, s40, 13"); A.e("v_writelane_b32 v63, s52, 14"); A.e("v_writelane_b32 v63, s42, 15")
        A.e("buffer_store_dword v63, v2, s[48:51], s28 offen")
        A.e("v_readlane_b32 s40, v63, 0"); A.e("s_nop 1"); A.e("v_subrev_u32 v62, s40, v63")
        A.e("s_cmp_eq_u32 s28, 0"); A.e("s_cselect_b32 s28, 0, 256")
        A.e("buffer_store_dword v62, v2, s[44:47], s28 offen")
    A.label("L_k2_end")
    A.e("s_endpgm")
    return A.text()

hdr = open("standalone__mha_block_cached__near_ridge.s.ref").read().split("; Override launch")[0]
txt = hdr + "; @launch kernel=attn_kernel grid=(256,1,1) block=(256,1,1) lds=163840\n" \
          + "; @launch kernel=oproj_kernel grid=(240,1,1) block=(256,1,1) lds=81920\n" \
          + '.amdgcn_target "amdgcn-amd-amdhsa--gfx950"\n.text\n' + k1() + k2() \
          + '.section .rodata,"a"\n' + descriptor("attn_kernel") + descriptor("oproj_kernel", 328, 256)
open(sys.argv[1], "w").write(txt)
```

```python
import sys, struct, math
from asmlib import *

CFG = dict(nt_kv=" nt", nt_x=" nt", stamps=False, qkorder="A", touch=True, nodma=False, lin=False, nobar=False, gather=True, itst=False, nt_o=" sc1", wbl2=False, rot="rot8", mulh=1, mulb=2, rmask=7, kvq="0,0,0,8,8,8,12,12", kv8=20, kvpos="end", rate=7, vmw=36)
for arg in sys.argv[2:]:
    k, val = arg.split("=")
    CFG[k] = {"True": True, "False": False}.get(val, int(val) if val.lstrip("-").isdigit() else val)
    if k.startswith("nt_"): CFG[k] = (" " + val) if val not in ("", "none") else ""

def f32hex(x): return "0x%08x" % struct.unpack("<I", struct.pack("<f", x))[0]
SCALE = math.log2(math.e) / math.sqrt(128.0)

SLOT = 16384
KRING = 0
VRING = 5 * SLOT
WS0 = 1 * SLOT
def KPOS(n): return KRING + SLOT * ((n - 1) % 5)
def VPOS(n): return VRING + SLOT * (n % 5)
XS0 = VRING + SLOT
def XS(kc): return XS0 + 32768 * ((kc + 1) % 2)
def WS(kc): return WS0 + SLOT * (kc % 3)
WS_O = 0
WS_WO = 120 * 131072
WS_STAMP = 32 << 20
sX, sWQ, sK, sV, sO, sWO, sWP = 4, 8, 12, 16, 20, 24, 28
sW, sB, sH = 32, 33, 34
sT0, sT1, sT2, sT3 = 35, 36, 37, 38
sXO, sWO_OFF = 39, 40
sKSO, sVSO = 41, 42
sKOFF, sPREV, sNEXT, sVD = 43, 44, 45, 46
sDK, sDV = 47, 48
sCNT = 49
sW4K = 50
sSECOND = 51
sXB, sXE, sWB = 52, 53, 54
sSC = 56
sM4 = 55
sP, sQ = 58, 59
sCH = 70
sK1 = 96
sST = 60
vLANE = 1
vKA = 2
vVA = 6
vKD = 14
vVD = 18
vOO = 20
vT = 21
vWA = 28
vXA = 36
vWG = 40
vXD = 192
vWD = 202
vS = 64; vP = 128; vC = 160; vONE = 176; vQ = 192; vACC = 64
aO = 0; aK = 128; aV = 160; aL = 192
aQA = 0; aQB = 64; aWG = 208

class Slot:
    def __init__(self, m=None):
        self.m = m; self.sal = []; self.mem = []; self.valu = []
def emit_slots(A, slots):
    for sl in slots:
        if sl.m: A.e(sl.m)
        for f in sl.sal + sl.mem + sl.valu:
            if isinstance(f, str): A.e(f)
            else: f(A)

nstamp = [0]
def stamp(A, name):
    if not CFG["stamps"] or name not in STAMPS: return
    i = STAMPS.index(name)
    A.e(f"s_memrealtime s[64:65]")
    A.e(f"s_memtime s[66:67]")
    A.e("s_waitcnt lgkmcnt(0)")
    A.e(f"v_writelane_b32 v63, s64, {i}")
    A.e(f"v_writelane_b32 v63, s66, {32+i}")
STAMPS = ["start", "karg", "issued", "bm1", "b0", "b3", "b7", "qdone", "qconv", "loop", "loopend", "pvdone", "end"]

def dma(A, voff, srd, soff, imm, tag, flag):
    A.vmem(f"buffer_load_dwordx4 {v(voff)}, {s(srd,4)}, {soff} offen offset:{imm}{flag} lds", tag)

def kv_group(kind, m0expr, soff, tag):
    ops = [m0expr]
    for i in range(4):
        vo = vVD + (i & 1)
        srd = sK if kind == "K" else sV
        ops.append(lambda A, vo=vo, srd=srd, i=i: dma(A, vo, srd, soff, 1024 * i, tag, CFG["nt_kv"]))
    return ops

def setup(A):
    A.e("s_cmp_ge_u32 s2, 256")
    A.e("s_cbranch_scc1 L_k1_end")
    stamp(A, "start")
    A.e("s_load_dwordx8 s[80:87], s[0:1], 0")
    A.e("s_load_dwordx8 s[88:95], s[0:1], 32")
    A.e(f"v_and_b32 {v(vLANE)}, 63, v0")
    A.e(f"v_lshrrev_b32 {v(vT)}, 6, v0")
    A.e(f"s_and_b32 {s(sT0)}, s2, 7")
    A.e(f"v_readfirstlane_b32 {s(sW)}, {v(vT)}")
    A.e(f"s_lshr_b32 {s(sT1)}, s2, 3")
    A.e(f"s_and_b32 {s(sB)}, {s(sT0)}, 1")
    A.e(f"s_lshl_b32 {s(sB)}, {s(sB)}, 2")
    A.e(f"s_and_b32 {s(sT2)}, {s(sT1)}, 3")
    A.e(f"s_add_u32 {s(sB)}, {s(sB)}, {s(sT2)}")
    A.e(f"s_lshr_b32 {s(sH)}, {s(sT0)}, 1")
    A.e(f"s_lshl_b32 {s(sH)}, {s(sH)}, 3")
    A.e(f"s_lshr_b32 {s(sT2)}, {s(sT1)}, 2")
    A.e(f"s_add_u32 {s(sH)}, {s(sH)}, {s(sT2)}")
    A.e(f"s_lshl_b32 {s(sW4K)}, {s(sW)}, 12")
    chunk_order(A)
    L = v(vLANE); t0, t1, t2, t3, t4 = [v(vT + i) for i in range(5)]
    A.e(f"v_lshrrev_b32 {t0}, 4, {L}")
    A.e(f"v_and_b32 {t1}, 15, {L}")
    A.e(f"v_lshrrev_b32 {t2}, 3, {L}")
    A.e(f"v_mul_u32_u24 {t2}, 1152, {t2}")
    A.e(f"v_and_b32 {t3}, 7, {L}")
    A.e(f"v_xor_b32 {t3}, {t3}, {t0}")
    A.e(f"v_xor_b32 {t4}, 4, {t3}")
    A.e(f"v_lshl_add_u32 {t3}, {t3}, 4, {t2}")
    A.e(f"v_lshl_add_u32 {t4}, {t4}, 4, {t2}")
    A.e(f"s_mul_i32 {s(sT0)}, {s(sW)}, {8*9216}")
    for j in range(8):
        A.e(f"s_add_u32 {s(sT1)}, {s(sT0)}, {j*9216 - 1024*(j%4)}")
        A.e(f"v_add_u32 {v(vXD+j)}, {s(sT1)}, {t3 if j%2==0 else t4}")
    A.e(f"s_mul_i32 {s(sT0)}, {s(sW)}, {2*9216}")
    for j in range(2):
        A.e(f"s_add_u32 {s(sT1)}, {s(sT0)}, {(24+j)*9216 - 1024*j}")
        A.e(f"v_add_u32 {v(vXD+8+j)}, {s(sT1)}, {t3 if j%2==0 else t4}")
    A.e(f"s_lshl_b32 {s(sXB)}, {s(sW)}, 13")
    A.e(f"s_lshl_b32 {s(sXE)}, {s(sW)}, 11")
    A.e(f"s_add_u32 {s(sXE)}, {s(sXE)}, {24*1024}")
    A.e(f"s_mul_i32 {s(sWB)}, {s(sW)}, {5*1024}")
    A.e(f"v_lshlrev_b32 {t2}, 1, {t0}")
    A.e(f"v_xor_b32 {t2}, {t2}, {t1}")
    A.e(f"v_lshlrev_b32 {t2}, 4, {t2}")
    A.e(f"v_lshl_add_u32 {t2}, {t0}, 13, {t2}")
    A.e(f"s_mul_i32 {s(sT0)}, {s(sW)}, 5")
    for j in range(6):
        A.e(f"s_add_u32 {s(sT1)}, {s(sT0)}, {j}")
        A.e(f"s_lshl_b32 {s(sT2)}, {s(sT1)}, 6")
        A.e(f"s_and_b32 {s(sT2)}, {s(sT2)}, 128")
        A.e(f"s_lshl_b32 {s(sT1)}, {s(sT1)}, 15")
        A.e(f"s_sub_u32 {s(sT1)}, {s(sT1)}, {1024*(j%3)}") if j % 3 else None
        A.e(f"v_xor_b32 {v(vWD+j)}, {s(sT2)}, {t2}")
        A.e(f"v_add_u32 {v(vWD+j)}, {s(sT1)}, {v(vWD+j)}")
    A.e(f"v_lshlrev_b32 {t2}, 1, {t0}")
    A.e(f"v_xor_b32 {t2}, {t2}, {t1}")
    for i in range(2):
        A.e(f"v_xor_b32 {t3}, {8*i}, {t2}")
        A.e(f"v_lshlrev_b32 {t3}, 4, {t3}")
        A.e(f"v_lshl_add_u32 {v(vVD+i)}, {t0}, 8, {t3}")
    if CFG["lin"]:
        for r in list(range(vVD, vVD+2)): A.e(f"v_lshlrev_b32 {v(r)}, 4, {L}")
    A.e("s_waitcnt lgkmcnt(0)")
    stamp(A, "karg")
    A.e(f"s_mul_i32 {s(sT0)}, {s(sB)}, 276480")
    A.e(f"s_add_u32 {s(sX)}, s80, {s(sT0)}")
    A.e(f"s_addc_u32 {s(sX+1)}, s81, 0")
    A.e(f"s_mov_b32 {s(sX+2)}, 276480")
    A.e(f"s_mov_b32 {s(sX+3)}, 0x20000")
    A.e(f"s_lshl_b32 {s(sT0)}, {s(sH)}, 8")
    A.e(f"s_add_u32 {s(sWQ)}, s86, {s(sT0)}")
    A.e(f"s_addc_u32 {s(sWQ+1)}, s87, 0")
    A.e(f"s_sub_u32 {s(sWQ+2)}, {576*8192}, {s(sT0)}")
    A.e(f"s_mov_b32 {s(sWQ+3)}, 0x20000")
    A.e(f"s_lshl_b32 {s(sT0)}, {s(sB)}, 5")
    A.e(f"s_add_u32 {s(sT0)}, {s(sT0)}, {s(sH)}")
    A.e(f"s_lshl_b32 {s(sT0)}, {s(sT0)}, 18")
    for srd, p in ((sK, 82), (sV, 84)):
        A.e(f"s_add_u32 {s(srd)}, s{p}, {s(sT0)}")
        A.e(f"s_addc_u32 {s(srd+1)}, s{p+1}, 0")
        A.e(f"s_mov_b32 {s(srd+2)}, 262144")
        A.e(f"s_mov_b32 {s(srd+3)}, 0x20000")

    A.e(f"s_add_u32 {s(sK1)}, {s(sK)}, {SLOT}")
    A.e(f"s_addc_u32 {s(sK1+1)}, {s(sK+1)}, 0")
    A.e(f"s_mov_b32 {s(sK1+2)}, {262144 - SLOT}")
    A.e(f"s_mov_b32 {s(sK1+3)}, 0x20000")

def chunk_order(A):
    if CFG["rot"] == "lock":
        for t in range(9): A.e(f"s_movk_i32 {s(sCH+t)}, {128*t}")
        return
    A.e(f"s_mul_i32 {s(sT0)}, {s(sH)}, {CFG['mulh']}")
    A.e(f"s_mul_i32 {s(sT1)}, {s(sB)}, {CFG['mulb']}")
    A.e(f"s_add_u32 {s(sT0)}, {s(sT0)}, {s(sT1)}")
    A.e(f"s_and_b32 {s(sT0)}, {s(sT0)}, {CFG['rmask']}")
    A.e(f"s_lshl_b32 {s(sT0)}, {s(sT0)}, 7")
    pos = {"rot8": 0, "rot8l": 8}[CFG["rot"]]
    k = 0
    for t in range(9):
        if t == pos: A.e(f"s_movk_i32 {s(sCH+t)}, 1024"); continue
        A.e(f"s_add_u32 {s(sCH+t)}, {s(sT0)}, {128*k}")
        A.e(f"s_and_b32 {s(sCH+t)}, {s(sCH+t)}, 1023")
        k += 1

def setup2(A):
    L = v(vLANE); t0, t1, t2, t3, t4 = [v(vT + i) for i in range(5)]
    A.e(f"v_lshrrev_b32 {t0}, 4, {L}")
    A.e(f"v_and_b32 {t1}, 15, {L}")
    A.e(f"v_lshrrev_b32 {t2}, 1, {t1}")
    A.e(f"v_xor_b32 {t2}, {t2}, {t0}")
    A.e(f"s_add_u32 {s(sT0)}, {s(sXB)}, {XS0}")
    for s2 in range(2):
        A.e(f"v_xor_b32 {t3}, {4*s2}, {t2}")
        A.e(f"v_lshlrev_b32 {t3}, 4, {t3}")
        A.e(f"v_lshl_add_u32 {t3}, {t1}, 7, {t3}")
        A.e(f"v_add_u32 {v(vXA+s2)}, {s(sT0)}, {t3}")
    A.e(f"v_lshrrev_b32 {t2}, 2, {t1}")
    A.e(f"v_and_b32 {t3}, 1, {t0}")
    A.e(f"v_lshl_add_u32 {t3}, {t3}, 2, {t2}")
    A.e(f"v_and_b32 {t4}, 3, {L}")
    A.e(f"v_lshlrev_b32 {t4}, 3, {t4}")
    tw = v(vT + 5); tv = v(vT + 6)
    A.e(f"v_lshl_add_u32 {tw}, {t0}, 3, {t2}")
    A.e(f"v_lshl_add_u32 {tw}, {tw}, 8, {t4}")
    A.e(f"v_add_u32 {tw}, {WS0}, {tw}")
    for t in range(8):
        A.e(f"v_xor_b32 {tv}, {t}, {t3}")
        A.e(f"v_lshl_add_u32 {v(vWA+t)}, {tv}, 5, {tw}")
    A.e(f"v_lshlrev_b32 {v(vOO)}, 4, {L}")
    A.e(f"s_mul_i32 {s(sT0)}, {s(sB)}, 15")
    A.e(f"s_lshl_b32 {s(sT1)}, {s(sW)}, 2")
    A.e(f"s_add_u32 {s(sT0)}, {s(sT0)}, {s(sT1)}")
    A.e(f"s_lshl_b32 {s(sT0)}, {s(sT0)}, 17")
    A.e(f"s_lshl_b32 {s(sT1)}, {s(sH)}, 12")
    A.e(f"s_add_u32 {s(sT0)}, {s(sT0)}, {s(sT1)}")
    A.e(f"s_add_u32 {s(sO)}, s94, {s(sT0)}")
    A.e(f"s_addc_u32 {s(sO+1)}, s95, 0")
    A.e(f"s_mov_b32 {s(sO+2)}, {3*131072 + 4096}")
    A.e(f"s_mov_b32 {s(sO+3)}, 0x20000")
    A.e(f"s_mov_b32 {s(sWO)}, s88")
    A.e(f"s_mov_b32 {s(sWO+1)}, s89")
    A.e(f"s_mov_b32 {s(sWO+2)}, {4096*1152}")
    A.e(f"s_mov_b32 {s(sWO+3)}, 0x20000")
    A.e(f"s_add_u32 {s(sWP)}, s94, {WS_WO}")
    A.e(f"s_addc_u32 {s(sWP+1)}, s95, 0")
    A.e(f"s_mov_b32 {s(sWP+2)}, {36*131072}")
    A.e(f"s_mov_b32 {s(sWP+3)}, 0x20000")
    A.e(f"s_mov_b32 {s(sSC)}, {f32hex(SCALE)}")
    A.e(f"s_mov_b32 {s(sSC+1)}, {f32hex(SCALE)}")
    A.e(f"s_mov_b32 {s(sSECOND)}, 0")

def attn_addr_init(A):
    L = v(vLANE); t0, t1, t2, t3, t4 = [v(vT + i) for i in range(5)]
    A.e(f"v_lshrrev_b32 {t0}, 4, {L}")
    A.e(f"v_and_b32 {t1}, 15, {L}")
    A.e(f"v_and_b32 {t2}, 7, {t1}")
    A.e(f"v_lshlrev_b32 {t2}, 1, {t2}")
    A.e(f"v_xor_b32 {t2}, {t0}, {t2}")
    A.e(f"v_lshlrev_b32 {t4}, 8, {t1}")
    A.e(f"v_add_u32 {t4}, {KPOS(0)}, {t4}")
    for s_ in range(4):
        A.e(f"v_xor_b32 {t3}, {4*s_}, {t2}")
        A.e(f"v_lshl_add_u32 {v(vKA+s_)}, {t3}, 4, {t4}")
    A.e(f"v_lshrrev_b32 {t2}, 2, {t1}")
    A.e(f"v_and_b32 {t3}, 1, {t0}")
    A.e(f"v_lshl_add_u32 {t3}, {t3}, 2, {t2}")
    A.e(f"v_and_b32 {t4}, 3, {L}")
    A.e(f"v_lshlrev_b32 {t4}, 3, {t4}")
    tw = v(vT + 5); tv = v(vT + 6)
    A.e(f"v_lshl_add_u32 {tw}, {t0}, 2, {t2}")
    A.e(f"v_lshl_add_u32 {tw}, {tw}, 8, {t4}")
    A.e(f"v_add_u32 {tw}, {VRING + 4*SLOT}, {tw}")
    for t in range(8):
        A.e(f"v_xor_b32 {tv}, {t}, {t3}")
        A.e(f"v_lshl_add_u32 {v(vVA+t)}, {tv}, 5, {tw}")
    A.e(f"v_and_b32 {t2}, 3, {L}")
    A.e(f"v_cmp_eq_u32 vcc, 0, {t2}")
    A.e(f"v_mov_b32 {t3}, 0x3f803f80")
    A.e(f"s_mov_b32 {s(sKOFF)}, {4*SLOT}")
    A.e(f"s_mov_b32 {s(sM4)}, {-4*SLOT}")
    for i in range(4): A.e(f"v_cndmask_b32 {v(vONE+i)}, 0, {t3}, vcc")
    A.e(f"s_mov_b32 {s(sP)}, {4*SLOT}")
    A.e(f"s_mov_b32 {s(sQ)}, {4*SLOT}")

def x_own(kc):
    ops = []
    for j in range(8):
        if j % 4 == 0: ops.append(("sal", f"s_add_u32 m0, {s(sXB)}, {XS(kc) + 1024*j}"))
        ops.append(("mem", lambda A, j=j: dma(A, vXD + j, sX, s(sCH + kc), 1024 * (j % 4), ("x", kc), CFG["nt_x"])))
    return ops
def x_extra(kc):
    ops = [("sal", f"s_add_u32 m0, {s(sXE)}, {XS(kc)}")]
    for j in range(2):
        ops.append(("mem", lambda A, j=j: dma(A, vXD + 8 + j, sX, s(sCH + kc), 1024 * j, ("xe", kc), CFG["nt_x"])))
    return ops
def wq_ops(kc):
    ops = [("sal", f"s_lshl_b32 {s(sWO_OFF)}, {s(sCH + kc)}, 12")]
    for j in range(6):
        if j % 3 == 0: ops.append(("sal", f"s_add_u32 m0, {s(sWB)}, {WS(kc) + 1024*j}"))
        ops.append(("mem", lambda A, j=j: dma(A, vWD + j, sWQ, s(sWO_OFF), 1024 * (j % 3), ("wq", kc), CFG["nt_x"])))
    return ops
def kv_full(kind, n):
    ops = []
    for w in range(4):
        base = (KPOS(n) if kind == "K" else VPOS(n)) + 4096 * w
        g = kv_group(kind, f"s_mov_b32 m0, {base}", s(sT3), (kind, n))
        ops += [("sal", g[0]), ("sal", f"s_mov_b32 {s(sT3)}, {n*SLOT + 4096*w}")] + [("mem", x) for x in g[1:]]
    return ops
def split_ops(ops, counts):
    out = []; cur = []; k = 0; n = 0
    for o in ops:
        while k < len(counts) and n == counts[k]:
            out.append(cur); cur = []; n = 0; k += 1
        cur.append(o)
        if o[0] == "mem": n += 1
    out.append(cur)
    while len(out) < len(counts) + 1: out.append([])
    return out
def weave(A, fn, ops):
    B = Asm(); B.lds = A.lds; B.vm = A.vm
    fn(B)
    lines = B.lines
    groups = []; cur = []
    for o in ops:
        cur.append(o)
        if o[0] == "mem": groups.append(cur); cur = []
    pos = [(k + 1) * len(lines) // (len(groups) + 1) for k in range(len(groups))]
    k = 0
    for i, l in enumerate(lines):
        while k < len(groups) and pos[k] == i:
            emit_ops(A, groups[k]); k += 1
        A.lines.append(l)
def kv_ops(kind, n):
    base = (KPOS(n) if kind == "K" else VPOS(n))
    g = kv_group(kind, f"s_add_u32 m0, {s(sW4K)}, {base}", s(sT3), (kind, n))
    return [("sal", f"s_add_u32 {s(sT3)}, {s(sW4K)}, {n*SLOT}"), ("sal", g[0])] + [("mem", x) for x in g[1:]]
def emit_ops(A, ops):
    prev = None
    for kind, o in ops:
        if kind == "mem" and prev == "m0": A.e("s_nop 0")
        if isinstance(o, str): A.e(o)
        else: o(A)
        prev = "m0" if isinstance(o, str) and " m0," in o else kind
def place_ops(slots, positions, ops):
    pend = []; k = 0
    for kind, o in ops:
        if kind == "sal": pend.append(o)
        else:
            p = positions[k]; k += 1
            if pend:
                if slots[p-1].mem: slots[p-1].valu += pend
                else: slots[p-1].sal += pend
                pend = []
            slots[p].mem.append(o)
    return k

def wo_gather_ops():
    ops = []
    for i in range(5):
        for j in range(8):
            reg = a(aWG + 4 * i + j // 2) if j % 2 else v(vWG + 4 * i + j // 2)
            hi = "_hi" if j % 2 else ""
            vo = vT + (j // 4)
            ops.append(("mem", lambda A, reg=reg, hi=hi, vo=vo, i=i, j=j: A.vmem(
                f"buffer_load_short_d16{hi} {reg}, {v(vo)}, {s(sWO,4)}, {s(sT2)} offen offset:{1152*(j%4) + 128*i}", "wg")))
    return ops
def wo_gather_setup(A):
    L = v(vLANE)
    A.e(f"v_lshrrev_b32 {v(vT)}, 4, {L}")
    A.e(f"v_mul_u32_u24 {v(vT)}, {4*1152}, {v(vT)}")
    A.e(f"v_and_b32 {v(vT+1)}, 15, {L}")
    A.e(f"v_lshl_add_u32 {v(vT)}, {v(vT+1)}, 1, {v(vT)}")
    A.e(f"v_add_u32 {v(vT+1)}, {16*1152}, {v(vT)}")
    A.e(f"s_lshr_b32 {s(sT2)}, s2, 1")
    A.e(f"s_mul_i32 {s(sT2)}, {s(sT2)}, {32*1152}")
    A.e(f"s_and_b32 {s(sT0)}, s2, 1")
    A.e(f"s_mul_i32 {s(sT0)}, {s(sT0)}, 18")
    A.e(f"s_add_u32 {s(sT0)}, {s(sT0)}, {s(sW)}")
    A.e(f"s_lshl_b32 {s(sT0)}, {s(sT0)}, 5")
    A.e(f"s_add_u32 {s(sT2)}, {s(sT2)}, {s(sT0)}")
def wo_store(A):
    A.e(f"s_and_b32 {s(sT0)}, s2, 1")
    A.e(f"s_mul_i32 {s(sT0)}, {s(sT0)}, 18")
    A.e(f"s_add_u32 {s(sT0)}, {s(sT0)}, {s(sW)}")
    A.e(f"s_lshl_b32 {s(sT0)}, {s(sT0)}, 17")
    A.e(f"s_lshr_b32 {s(sT1)}, s2, 1")
    A.e(f"s_lshl_b32 {s(sT1)}, {s(sT1)}, 10")
    A.e(f"s_add_u32 {s(sT0)}, {s(sT0)}, {s(sT1)}")
    if CFG["gather"]: A.wait_vm("wg")
    for r in range(20): A.e(f"v_accvgpr_read_b32 {v(vC+r)}, {a(aWG+r)}")
    A.e(f"s_mov_b32 {s(sT1)}, 0xffff")
    for r in range(20): A.e(f"v_bfi_b32 {v(vC+r)}, {s(sT1)}, {v(vWG+r)}, {v(vC+r)}")
    for i in range(5):
        if i == 4:
            A.e(f"s_cmp_ge_u32 {s(sW)}, 2")
            A.e(f"s_cselect_b32 {s(sT0)}, {36*131072}, {s(sT0)}")
        A.vmem(f"buffer_store_dwordx4 {v(vC+4*i,4)}, {v(vOO)}, {s(sWP,4)}, {s(sT0)} offen", "st")
        if i < 4: A.e(f"s_add_u32 {s(sT0)}, {s(sT0)}, {4*131072}")

def qproj(A, nq):
    main = nq == 4
    if main: emit_ops(A, wq_ops(0) + x_own(0) + x_extra(0))
    setup2(A)
    if main: emit_ops(A, wq_ops(1) + x_own(1) + x_extra(1))
    kvq = [int(x) for x in str(CFG["kvq"]).split(",")]
    kvp = split_ops(kv_full("K", 0) + kv_full("K", 1) + kv_full("V", 0), kvq[:-1])
    assert len(kvq) == 8 and sum(kvq) == 48
    if not main: emit_ops(A, kvp[0])
    kvrest = split_ops(kv_full("V", 1) + kv_full("K", 3) + kv_full("V", 2) + kv_full("K", 4) + kv_full("V", 3), [CFG["kv8"]])
    stamp(A, "issued")
    NS = 16 * nq
    BAR = 12 * nq
    LEAD = NS - BAR
    slots = [Slot() for _ in range(LEAD + 9 * NS)]
    def G(kc, i): return LEAD + kc * NS + i
    for kc in range(9):
        bb = aQB + 32 * (kc % 2)
        for i in range(NS):
            f, qt = i // nq, i % nq
            s2, t = f // 8, f % 8
            d = v(vACC + 32 * qt + 4 * t, 4)
            slots[G(kc, i)].m = mfma(d, a(aQA + 4 * f, 4), a(bb + 8 * qt + 4 * s2, 4), d if (kc or s2) else "0")
        def rdA(f, j, kc=kc):
            s2, t = f // 8, f % 8
            off = WS(kc) - WS0 + (32 * s2 + 4 * j) * 256
            return lambda A: A.ds(f"ds_read_b64_tr_b16 {a(aQA + 4*f + 2*j, 2)}, {v(vWA+t)} offset:{off}", ("A", kc, f, j))
        def rdB(qt, s2, kc=kc, bb=bb):
            off = XS(kc) - XS0 + 2048 * qt
            return lambda A: A.ds(f"ds_read_b128 {a(bb + 8*qt + 4*s2, 4)}, {v(vXA+s2)} offset:{off}", ("B", kc, qt, s2))
        head = [rdB(0, 0), rdA(0, 0), rdA(0, 1)] + [rdB(q, 0) for q in range(1, nq)] + [rdA(1, 0), rdA(1, 1), rdA(2, 0), rdA(2, 1)] \
             + [rdB(q, 1) for q in range(nq)] + [rdA(3, 0), rdA(3, 1)]
        p0 = G(kc, -LEAD)
        for k, r in enumerate(head):
            slots[p0 + k * LEAD // len(head)].mem.append(r)
        rest = [rdA(f, j) for f in range(4, 16) for j in range(2)]
        span = BAR - 2 * nq
        for k, r in enumerate(rest):
            slots[G(kc, k * span // len(rest))].mem.append(r)
        slots[G(kc, -1)].valu.append(lambda A, kc=kc: A.wait_lds(("B", kc, nq - 1, 0)))
        for f in range(1, 16):
            tag = ("A", kc, f, 1)
            if f == 3: tag = ("A", kc, 3, 1)
            slots[G(kc, f * nq - 1)].sal.append(lambda A, tag=tag: A.wait_lds(tag))
        def bar(A, kc=kc):
            if main: A.wait_vm(("xe", kc))
            A.e("s_waitcnt lgkmcnt(0)")
            A.e("s_barrier")
            stamp(A, "bm1" if kc == 0 else f"b{kc-1}")
        slots[p0].sal.insert(0, bar)
        early = []; late = []
        if main:
            if 1 <= kc <= 7: early += x_extra(kc + 1)
            if kc <= 6: early += wq_ops(kc + 2)
            if kc <= 6: late += x_own(kc + 2)
            ne = sum(1 for k, _ in early if k == "mem"); nl = sum(1 for k, _ in late if k == "mem")
            if kc == 0: pe = [G(0, 1 + 2 * k) for k in range(ne)]
            else: pe = [p0 + 1 + 2 * k for k in range(ne)]
            pl = [G(kc, 3 * nq + 1 + 3 * k) for k in range(nl)]
            place_ops(slots, pe, early); place_ops(slots, pl, late)
        else:
            ops = kvp[kc + 1] if kc <= 6 else kv_full("K", 2) if kc == 7 else kvrest[0]
            ne = sum(1 for k, _ in ops if k == "mem")
            if kc <= 6: pe = [G(kc, BAR - 2 - ne + k) if CFG["kvpos"] == "end" else p0 + 1 + k for k in range(ne)]
            else: pe = [p0 + 1 + k * (NS - 4) // ne for k in range(ne)]
            place_ops(slots, pe, ops)
    def bar8(A):
        if not main: A.wait_vm(("K", 0))
        A.e("s_waitcnt lgkmcnt(0)")
        A.e("s_barrier")
    p8 = G(8, BAR)
    slots[p8].sal.insert(0, bar8)
    for sl in slots[:LEAD]:
        if sl.mem and sl.sal: sl.sal.append("s_nop 0")
    emit_slots(A, slots)
    return [] if main else kvrest[1]

def qconvert(A, nq):
    A.e("s_nop 7")
    for qt in range(nq):
        for u in range(4):
            src = vACC + 32 * qt + 8 * u; dst = vQ + 16 * qt + 4 * u
            for j in range(4):
                A.e(f"v_pk_mul_f32 {v(src+2*j,2)}, {v(src+2*j,2)}, {s(sSC,2)}")
            for j in range(4):
                A.e(f"v_cvt_pk_bf16_f32 {v(dst+j)}, {v(src+2*j)}, {v(src+2*j+1)}")
        for u in range(4):
            dst = vQ + 16 * qt + 4 * u
            if u == 0: A.e("s_nop 0")
            A.e(f"v_permlane32_swap_b32 {v(dst)}, {v(dst+2)}")
            A.e(f"v_permlane32_swap_b32 {v(dst+1)}, {v(dst+3)}")
        for u in range(4):
            dst = vQ + 16 * qt + 4 * u
            A.e(f"v_permlane16_swap_b32 {v(dst)}, {v(dst+2)}")
            A.e(f"v_permlane16_swap_b32 {v(dst+1)}, {v(dst+3)}")

def k_read(T, f):
    kt, s_ = f // 4, f % 4
    off = 8192 * (T % 2) + 4096 * kt
    return lambda A: A.ds(f"ds_read_b128 {a(aK+4*f,4)}, {v(vKA+s_)} offset:{off}", ("K", f))
def v_read(T, i):
    t, j = i // 2, i % 2
    off = 8192 * (T % 2) + 4096 * j
    return lambda A: A.ds(f"ds_read_b64_tr_b16 {a(aV+4*t+2*j,2)}, {v(vVA+t)} offset:{off}", ("V", i))
def qk_list(T, nq, czero=False):
    if CFG["qkorder"] == "A": order = [(kt, s_, qt) for kt in range(2) for s_ in range(4) for qt in range(nq)]
    else: order = [(kt, s_, qt) for qt in range(nq) for kt in range(2) for s_ in range(4)]
    out = []
    for kt, s_, qt in order:
        d = v(vS + 32 * (T % 2) + 8 * qt + 4 * kt, 4)
        c = d if s_ else ("0" if czero else v(vC + 4 * qt, 4))
        out.append(mfma(d, a(aK + 4 * (4 * kt + s_), 4), v(vQ + 16 * qt + 4 * s_, 4), c))
    return out

def crosslane_max(A, regs, tmp):
    for sw in ("v_permlane32_swap_b32", "v_permlane16_swap_b32"):
        for i, r in enumerate(regs): A.e(f"v_mov_b32 {v(tmp+i)}, {v(r)}")
        A.e("s_nop 1")
        for i, r in enumerate(regs): A.e(f"{sw} {v(tmp+i)}, {v(r)}")
        A.e("s_nop 1")
        for i, r in enumerate(regs): A.e(f"v_max_f32 {v(r)}, {v(r)}, {v(tmp+i)}")

def zero_acc(A, nq):
    for r in range(32 * nq): A.e(f"v_accvgpr_write_b32 {a(aO+r)}, 0")
    for r in range(4 * nq): A.e(f"v_accvgpr_write_b32 {a(aL+r)}, 0")

def first_tile(A, nq):
    for f in range(8): k_read(0, f)(A)
    zero_acc(A, nq)
    A.e("s_waitcnt lgkmcnt(0)")
    for m in qk_list(0, nq, czero=True): A.e(m)
    A.e("s_nop 7")
    for qt in range(nq):
        b = vS + 8 * qt; c = vC + 4 * qt
        A.e(f"v_max3_f32 {v(c)}, {v(b)}, {v(b+1)}, {v(b+2)}")
        A.e(f"v_max3_f32 {v(c+1)}, {v(b+3)}, {v(b+4)}, {v(b+5)}")
        A.e(f"v_max3_f32 {v(c)}, {v(c)}, {v(b+6)}, {v(b+7)}")
        A.e(f"v_max_f32 {v(c)}, {v(c)}, {v(c+1)}")
    crosslane_max(A, [vC + 4 * qt for qt in range(nq)], vT)
    for qt in range(nq):
        b = vS + 8 * qt; c = vC + 4 * qt
        for e in range(8): A.e(f"v_sub_f32 {v(b+e)}, {v(b+e)}, {v(c)}")
        for e in (3, 2, 1, 0): A.e(f"v_sub_f32 {v(c+e)}, 0, {v(c)}")

def attn_slots(nq):
    P = 17 * nq
    NT = 34
    slots = [Slot() for _ in range(NT * P)]
    E = [2 * e - 4 for e in range(8 * nq)]
    Em = set(x % P for x in E)
    others = [j for j in range(P) if j not in Em]
    BARP = 8 * nq - 2
    aft = [j for j in others if j > BARP]
    kpos = aft[:8]
    seq = aft[12:] + [j + P for j in others if j < BARP]
    if nq == 4: vpos = [x for x in seq if x % 2 == 1][:16]
    else: vpos = [seq[i // 2] for i in range(16)]
    assert vpos[-1] + 6 <= P + BARP, vpos
    used2 = {}
    for T in range(NT):
        g = T * P
        if T < 32:
            for i, m in enumerate(qk_list(T, nq)): slots[g + i].m = m
        if 0 < T <= 32: slots[g - 1].sal.append(lambda A: A.wait_lds(("K", 7)))
        Tp = T - 2
        if 0 <= Tp < 32:
            pb = vP + 16 * (Tp % 2)
            k = 8 * nq
            for t in range(8):
                for qt in range(nq):
                    d = a(aO + 32 * qt + 4 * t, 4)
                    slots[g + k].m = mfma(d, a(aV + 4 * t, 4), v(pb + 4 * qt, 4), d); k += 1
            for qt in range(nq):
                d = a(aL + 4 * qt, 4)
                slots[g + k].m = mfma(d, v(vONE, 4), v(pb + 4 * qt, 4), d); k += 1
            for i in range(16): slots[g - P + vpos[i]].mem.append(v_read(Tp, i))
            slots[g + BARP].sal.append(lambda A: A.wait_lds(("V", 15)))
        Ts = T - 1
        if 0 <= Ts < 32:
            sb = vS + 32 * (Ts % 2); pb = vP + 16 * (Ts % 2)
            for e in range(8 * nq):
                slots[g + E[e]].valu.append(f"v_exp_f32 {v(sb+e)}, {v(sb+e)}")
                if e % 2:
                    slots[g + E[e] + 1].valu.append(f"v_cvt_pk_bf16_f32 {v(pb+e//2)}, {v(sb+e-1)}, {v(sb+e)}")
        if T < 32:
            for f in range(8): slots[g + kpos[f]].mem.append(k_read(T + 1, f))
        if T < 32 and T % 2 == 1:
            if nq == 3: slots[g + BARP].sal.append(f"s_waitcnt vmcnt({CFG['vmw']})")
            if not CFG["nobar"]: slots[g + BARP].sal.append("s_barrier")
            slots[g].sal += [f"s_cmp_eq_u32 {s(sKOFF)}, {4*SLOT}", f"s_cselect_b32 {s(sDK)}, {s(sM4)}, {SLOT}"]
            slots[g + 1].sal.append(f"s_add_u32 {s(sKOFF)}, {s(sKOFF)}, {s(sDK)}")
            cv = set((x + 1) % P for k, x in enumerate(E) if k % 2)
            free = [j for j in others if j not in cv]
            kfree = [j for j in free if 2 < j < kpos[0]][:4]
            assert len(kfree) == 4, kfree
            for i in range(4): slots[g + kfree[i]].valu.append(f"v_add_u32 {v(vKA+i)}, {s(sDK)}, {v(vKA+i)}")
            vfree = [j for j in free if vpos[-1] - P < j < vpos[0] and j not in kfree]
            while len(vfree) < 8: vfree = sorted(vfree + vfree[:8 - len(vfree)])
            for i in range(8): slots[g + vfree[i]].valu.append(f"v_add_u32 {v(vVA+i)}, {s(sDK)}, {v(vVA+i)}")
            if nq == 3 and not CFG["nodma"]:
                nu = CFG["rate"]
                for u in range(nu):
                    p = g + BARP + 2 + u * (2 * P - 4) // nu
                    if p + 8 >= 32 * P: continue
                    st = (2 * P - 4) // nu // 5
                    def dm(srd, i): return lambda A: dma(A, vVD + i, srd, s(sQ), 1024 * i, "kv", CFG["nt_kv"])
                    q = [p + k * st for k in range(5)]
                    q = [x + 1 if (x % P) in Em else x for x in q]
                    slots[q[0] - 1].sal.append(f"s_mov_b32 m0, {s(sP)}")
                    slots[q[0]].mem.append(dm(sK1, 0)); slots[q[1]].mem.append(dm(sK1, 1))
                    slots[q[1]].valu.append(f"s_add_u32 m0, {s(sP)}, {VRING}")
                    slots[q[2]].mem.append(dm(sV, 0)); slots[q[3]].mem.append(dm(sV, 1))
                    r = q[4]
                    while r % (2 * P) >= 2 * P - 3 or r % (2 * P) == P: r += 1
                    slots[r].sal += [f"s_add_u32 {s(sP)}, {s(sP)}, 2048", f"s_cmp_eq_u32 {s(sP)}, {5*SLOT}",
                                     f"s_cselect_b32 {s(sP)}, 0, {s(sP)}", f"s_add_u32 {s(sQ)}, {s(sQ)}, 2048"]
    return slots, P

def fix_nomfma(slots):
    for i, sl in enumerate(slots):
        if sl.m is None and (sl.valu or sl.mem):
            sl.sal.insert(0, "s_nop 0")

def attention(A, nq):
    R = f"q{nq}"
    slots, P = attn_slots(nq)
    for i in range(8 * nq): slots[i].m = None
    A.label(f"L_attn_{R}")
    pro = slots[8 * nq:2 * P]; fix_nomfma(pro)
    for sl in slots[:8 * nq]:
        for f in sl.mem: f(A)
    emit_slots(A, pro)
    A.e(f"s_mov_b32 {s(sCNT)}, 15")
    stamp(A, "loop")
    texts = []
    for n in (1, 2, 15):
        B = Asm(); B.lds = list(A.lds); B.vm = list(A.vm)
        if n > 1: emit_slots(B, slots[2 * (n - 1) * P:2 * n * P]); B.lines = []
        emit_slots(B, slots[2 * n * P:2 * (n + 1) * P]); texts.append(B.text())
    if not (texts[0] == texts[1] == texts[2]):
        import difflib
        for x, y in ((0, 1), (1, 2)):
            print("".join(difflib.unified_diff(texts[x].splitlines(True), texts[y].splitlines(True), n=1)))
        raise SystemExit("steady state mismatch")
    A.raw(".p2align 6")
    A.label(f"L_loop_{R}")
    body = slots[2 * P:4 * P]
    body[-3].sal.append(f"s_sub_u32 {s(sCNT)}, {s(sCNT)}, 1")
    body[-2].sal.append(f"s_cmp_lg_u32 {s(sCNT)}, 0")
    if CFG["itst"]:
        body[P + 8*nq].sal += ["s_memrealtime s[68:69]"]
        body[P + 8*nq + 24].sal += ["s_waitcnt lgkmcnt(0)", f"v_cmp_eq_u32 vcc, {s(sCNT)}, {v(vLANE)}", "v_mov_b32 v61, s68", "s_nop 0", "v_cndmask_b32 v62, v62, v61, vcc"]
    emit_slots(A, body)
    A.e(f"s_cbranch_scc1 L_loop_{R}")
    stamp(A, "loopend")
    epi = slots[32 * P:]; fix_nomfma(epi)
    if CFG["gather"]:
        wo_gather_setup(A)
        place_ops(epi, [1 + k for k in range(40)], wo_gather_ops())
    emit_slots(A, epi)
    stamp(A, "pvdone")

def epilogue(A, nq):
    R = f"q{nq}"
    A.e("s_nop 7")
    for qt in range(nq): A.e(f"v_accvgpr_read_b32 {v(vT+qt)}, {a(aL+4*qt)}")
    A.e(f"s_mov_b32 {s(sT0)}, {f32hex(2.0**40)}")
    A.e(f"s_mov_b64 {s(sT2+1,2)}, 0") if False else None
    A.e(f"v_mov_b32 {v(vT+4)}, 0")
    for qt in range(nq):
        A.e(f"v_cmp_nlt_f32 vcc, {v(vT+qt)}, {v(vT+5)}") if False else None
        A.e(f"v_cmp_ngt_f32 vcc, {s(sT0)}, {v(vT+qt)}")
        A.e("s_nop 1")
        A.e(f"v_cndmask_b32 {v(vT+4)}, {v(vT+4)}, 1, vcc") if False else A.e(f"v_addc_co_u32 {v(vT+4)}, vcc, 0, {v(vT+4)}, vcc")
    A.e(f"v_lshlrev_b32 {v(vT+5)}, 2, v0")
    A.ds(f"ds_write_b32 {v(vT+5)}, {v(vT+4)} offset:{KRING}", "flag")
    for qt in range(nq): A.e(f"v_rcp_f32 {v(vT+qt)}, {v(vT+qt)}")
    for qt in range(nq):
        if qt: A.e(f"s_mov_b32 {s(sT1)}, {qt*131072}")
        for u in range(4):
            tb = vS + 8 * ((qt * 4 + u) % 8); pb = vP + 4 * ((qt * 4 + u) % 8)
            for j in range(8): A.e(f"v_accvgpr_read_b32 {v(tb+j)}, {a(aO + 32*qt + 8*u + j)}")
            for j in range(8): A.e(f"v_mul_f32 {v(tb+j)}, {v(tb+j)}, {v(vT+qt)}")
            for j in range(4): A.e(f"v_cvt_pk_bf16_f32 {v(pb+j)}, {v(tb+2*j)}, {v(tb+2*j+1)}")
            so = s(sT1) if qt else "0"
            A.vmem(f"buffer_store_dwordx4 {v(pb,4)}, {v(vOO)}, {s(sO,4)}, {so} offen offset:{1024*u}{CFG['nt_o'].replace('+',' ')}", "st")
    wo_store(A)
    A.e("s_waitcnt lgkmcnt(0)")
    A.e("s_barrier")
    A.e(f"v_lshlrev_b32 {v(vT+5)}, 4, {v(vLANE)}")
    A.e(f"ds_read_b128 {v(24,4)}, {v(vT+5)} offset:{KRING}")
    A.e("s_waitcnt lgkmcnt(0)")
    A.e(f"v_or_b32 v24, v24, v25")
    A.e(f"v_or3_b32 v24, v24, v26, v27")
    A.e(f"v_cmp_ne_u32 vcc, 0, v24")
    A.e(f"s_cmp_lg_u32 {s(sSECOND)}, 0")
    A.e(f"s_cbranch_scc1 L_done_{R}")
    A.e("s_nop 2")
    A.e(f"s_cbranch_vccnz L_fallback_{R}")
    A.label(f"L_done_{R}")

def fallback(A, nq):
    R = f"q{nq}"
    A.label(f"L_fallback_{R}")
    A.e(f"s_mov_b32 {s(sSECOND)}, 1")
    attn_addr_init(A)
    for qt in range(nq): A.e(f"v_mov_b32 {v(vC+4*qt)}, 0xff800000")
    A.e(f"s_mov_b32 {s(sT3)}, {s(sW4K)}")
    A.e(f"s_mov_b32 {s(sCNT)}, 16")
    A.e("s_waitcnt vmcnt(0)")
    A.label(f"L_fb_loop_{R}")
    A.e("s_barrier")
    g = kv_group("K", f"s_add_u32 m0, {s(sW4K)}, {KPOS(0)}", s(sT3), "fb")
    emit_ops(A, [("sal", g[0])] + [("mem", x) for x in g[1:]])
    A.e("s_waitcnt vmcnt(0)")
    A.e("s_barrier")
    for T in range(2):
        for f in range(8): k_read(T, f)(A)
        A.e("s_waitcnt lgkmcnt(0)")
        for m in qk_list(T, nq, czero=True): A.e(m)
        A.e("s_nop 7")
        for qt in range(nq):
            b = vS + 32 * T + 8 * qt; c = vC + 4 * qt
            for e in range(0, 8, 2): A.e(f"v_max3_f32 {v(c)}, {v(c)}, {v(b+e)}, {v(b+e+1)}")
    A.e(f"s_add_u32 {s(sT3)}, {s(sT3)}, {SLOT}")
    A.e(f"s_sub_u32 {s(sCNT)}, {s(sCNT)}, 1")
    A.e(f"s_cmp_lg_u32 {s(sCNT)}, 0")
    A.e(f"s_cbranch_scc1 L_fb_loop_{R}")
    crosslane_max(A, [vC + 4 * qt for qt in range(nq)], vT)
    for qt in range(nq):
        c = vC + 4 * qt
        for e in (3, 2, 1, 0): A.e(f"v_sub_f32 {v(c+e)}, 0, {v(c)}")
    A.e("s_barrier")
    for kind, n in (("K", 0), ("K", 1), ("V", 0), ("K", 2), ("V", 1), ("K", 3), ("V", 2), ("K", 4), ("V", 3)):
        emit_ops(A, kv_ops(kind, n))
    zero_acc(A, nq)
    A.e("s_waitcnt vmcnt(0)")
    A.e("s_barrier")
    for f in range(8): k_read(0, f)(A)
    A.e("s_waitcnt lgkmcnt(0)")
    for m in qk_list(0, nq): A.e(m)
    A.e("s_nop 7")
    A.e(f"s_branch L_attn_{R}")

def write_stamps(A):
    if not CFG["stamps"]: return
    A.e("s_waitcnt vmcnt(0)")
    if CFG["wbl2"]:
        A.e("s_barrier")
        A.e(f"s_cmp_lg_u32 {s(sW)}, 0")
        nstamp[0] += 1
        A.e(f"s_cbranch_scc1 L_nowb{nstamp[0]}")
        A.e("buffer_wbl2 sc1")
        A.e("s_waitcnt vmcnt(0)")
        A.label(f"L_nowb{nstamp[0]}")
    stamp(A, "end")
    A.e(f"s_add_u32 {s(sST)}, s94, {WS_STAMP}")
    A.e(f"s_addc_u32 {s(sST+1)}, s95, 0")
    A.e(f"s_mov_b32 {s(sST+2)}, 0x100000")
    A.e(f"s_mov_b32 {s(sST+3)}, 0x20000")
    A.e(f"s_lshl_b32 {s(sT0)}, s2, 2")
    A.e(f"s_add_u32 {s(sT0)}, {s(sT0)}, {s(sW)}")
    A.e(f"s_lshl_b32 {s(sT0)}, {s(sT0)}, 8")
    A.e(f"v_lshlrev_b32 v2, 2, {v(vLANE)}")
    A.e(f"buffer_store_dword v63, v2, {s(sST,4)}, {s(sT0)} offen")
    A.e(f"s_cmp_eq_u32 {s(sT0)}, {CFG.get('dbgwg', 0)}")
    A.e(f"s_cselect_b32 {s(sT1)}, 0, 256")
    A.e(f"s_mov_b32 s96, s92")
    A.e(f"s_mov_b32 s97, s93")
    A.e(f"s_mov_b32 s98, 256")
    A.e(f"s_mov_b32 s99, 0x20000")
    A.e(f"v_readlane_b32 s64, v63, 0")
    A.e("s_nop 1")
    A.e(f"v_subrev_u32 v61, s64, v63")
    A.e(f"buffer_store_dword v61, v2, s[96:99], {s(sT1)} offen")
    A.e(f"s_add_u32 {s(sT0)}, {s(sT0)}, 0x40000")
    A.e(f"buffer_store_dword v62, v2, {s(sST,4)}, {s(sT0)} offen")

def k1():
    A = Asm()
    A.raw(".globl attn_kernel\n.p2align 8\n.type attn_kernel,@function\nattn_kernel:")
    setup(A)
    A.e(f"s_cmp_eq_u32 {s(sW)}, 3")
    A.e("s_cbranch_scc1 L_role_q3")
    out = A.text()
    for nq in (4, 3):
        A = Asm()
        A.label(f"L_role_q{nq}")
        rest = qproj(A, nq)
        stamp(A, "qdone")
        def mid(A):
            qconvert(A, nq)
            attn_addr_init(A)
            stamp(A, "qconv")
            first_tile(A, nq)
        weave(A, mid, rest)
        attention(A, nq)
        epilogue(A, nq)
        write_stamps(A)
        A.e("s_endpgm")
        fallback(A, nq)
        out += A.text()
    out += "L_k1_end:\n    s_endpgm\n"
    return out

def k2():
    A = Asm()
    A.raw(".globl oproj_kernel\n.p2align 8\n.type oproj_kernel,@function\noproj_kernel:")
    D = 6
    A.e("s_cmp_ge_u32 s2, 240")
    A.e("s_cbranch_scc1 L_k2_end")
    if CFG["stamps"]: A.e("s_memrealtime s[40:41]")
    A.e("s_load_dwordx2 s[4:5], s[0:1], 56")
    A.e("s_load_dwordx2 s[6:7], s[0:1], 40")
    if CFG["stamps"]: A.e("s_load_dwordx2 s[44:45], s[0:1], 48")
    A.e("v_and_b32 v1, 63, v0")
    A.e("v_lshrrev_b32 v2, 6, v0")
    A.e("s_and_b32 s20, s2, 7")
    A.e("v_readfirstlane_b32 s19, v2")
    A.e("s_lshr_b32 s21, s2, 3")
    A.e("s_mul_i32 s22, s21, 43")
    A.e("s_lshr_b32 s22, s22, 8")
    A.e("s_mul_i32 s23, s22, 6")
    A.e("s_sub_u32 s23, s21, s23")
    A.e("s_lshr_b32 s24, s20, 1")
    A.e("s_mul_i32 s24, s24, 5")
    A.e("s_add_u32 s22, s22, s24")
    A.e("s_and_b32 s24, s20, 1")
    A.e("s_mul_i32 s24, s24, 6")
    A.e("s_add_u32 s23, s23, s24")
    A.e("v_lshlrev_b32 v3, 4, v0")
    for i in range(1, 6): A.e(f"v_add_u32 v{3+i}, {i*131072}, v3")
    A.e("s_waitcnt lgkmcnt(0)")
    A.e(f"s_mul_i32 s24, s22, {6*131072}")
    A.e("s_add_u32 s8, s4, s24"); A.e("s_addc_u32 s9, s5, 0"); A.e(f"s_mov_b32 s10, {6*131072}"); A.e("s_mov_b32 s11, 0x20000")
    A.e(f"s_mul_i32 s24, s23, {3*131072}")
    A.e(f"s_add_u32 s24, s24, {WS_WO}")
    A.e("s_add_u32 s12, s4, s24"); A.e("s_addc_u32 s13, s5, 0"); A.e(f"s_mov_b32 s14, {3*131072}"); A.e("s_mov_b32 s15, 0x20000")
    FB = 16
    def loads(st):
        b = FB + 36 * (st % D)
        ops = [lambda A: A.e(f"s_mov_b32 s25, {st*4096}")]
        for j in range(3): ops.append(lambda A, j=j: A.vmem(f"buffer_load_dwordx4 {v(b+4*j,4)}, v{3+j}, s[12:15], s25 offen", st))
        for i in range(6): ops.append(lambda A, i=i: A.vmem(f"buffer_load_dwordx4 {v(b+12+4*i,4)}, v{3+i}, s[8:11], s25 offen", st))
        return ops
    for st in range(D):
        for o in loads(st): o(A)
    for st in range(32):
        b = FB + 36 * (st % D)
        A.wait_vm(st)
        prev = loads(st - 1 + D) if 1 <= st and st - 1 + D < 32 else []
        k = 0
        for i in range(6):
            for j in range(3):
                d = a(4 * (3 * i + j), 4)
                A.e(mfma(d, v(b + 4 * j, 4), v(b + 12 + 4 * i, 4), d if st else "0"))
                if k < len(prev): prev[k](A); k += 1
                if k == 1: prev[k](A); k += 1
    if CFG["stamps"]: A.e("s_memrealtime s[52:53]")
    A.e("s_nop 7")
    A.e("v_lshlrev_b32 v10, 4, v1")
    A.e(f"s_mul_i32 s24, s19, {18*1024}")
    A.e("v_add_u32 v11, s24, v10")
    for t in range(18): A.e(f"ds_write_b128 v11, {a(4*t,4)} offset:{1024*t}")
    A.e("s_mov_b32 s16, s6"); A.e("s_mov_b32 s17, s7"); A.e(f"s_mov_b32 s18, {1920*1152}")
    A.e("s_lshl_b32 s24, s19, 10")
    A.e("v_add_u32 v11, s24, v10")
    A.e(f"v_add_u32 v14, {36*1024}, v11")
    A.e("s_mov_b32 s26, s19")
    A.e("s_mov_b32 s19, 0x20000")
    A.e("v_and_b32 v12, 15, v1")
    A.e("v_mul_u32_u24 v12, 1152, v12")
    A.e("v_lshrrev_b32 v13, 4, v1")
    A.e("v_lshl_add_u32 v12, v13, 3, v12")
    A.e(f"s_mul_i32 s27, s22, {96*1152}")
    A.e(f"s_mul_i32 s28, s23, 96")
    A.e("s_add_u32 s27, s27, s28")
    A.e("s_waitcnt lgkmcnt(0)")
    A.e("s_barrier")
    for r in range(5):
        for w in range(4): A.e(f"ds_read_b128 {v(16+16*r+4*w,4)}, v{11 if w < 2 else 14} offset:{4096*r + 18*1024*(w%2)}")
    for r in range(5):
        A.e(f"s_waitcnt lgkmcnt({min(15, 4*(4-r))})")
        b = 16 + 16 * r
        for e in range(4):
            A.e(f"v_add_f32 v{b+e}, v{b+e}, v{b+4+e}")
            A.e(f"v_add_f32 v{b+8+e}, v{b+8+e}, v{b+12+e}")
        for e in range(4): A.e(f"v_add_f32 v{b+e}, v{b+e}, v{b+8+e}")
        A.e(f"v_cvt_pk_bf16_f32 v{b}, v{b}, v{b+1}")
        A.e(f"v_cvt_pk_bf16_f32 v{b+1}, v{b+2}, v{b+3}")
        A.e(f"s_add_u32 s28, s26, {4*r}")
        A.e("s_mul_i32 s29, s28, 86")
        A.e("s_lshr_b32 s29, s29, 8")
        A.e("s_mul_i32 s30, s29, 3")
        A.e("s_sub_u32 s30, s28, s30")
        A.e(f"s_mul_i32 s29, s29, {16*1152}")
        A.e("s_lshl_b32 s30, s30, 5")
        A.e("s_add_u32 s29, s29, s30")
        A.e("s_add_u32 s29, s29, s27")
        if r == 4:
            A.e("s_cmp_ge_u32 s28, 18")
            A.e(f"s_cselect_b32 s29, {1920*1152}, s29")
        A.e(f"buffer_store_dwordx2 {v(b,2)}, v12, s[16:19], s29 offen")
    if CFG["stamps"]:
        A.e("s_waitcnt vmcnt(0)")
        A.e("s_memrealtime s[42:43]")
        A.e(f"s_add_u32 s48, s4, {WS_STAMP}"); A.e("s_addc_u32 s49, s5, 0"); A.e("s_mov_b32 s50, 0x100000"); A.e("s_mov_b32 s51, 0x20000")
        A.e("s_mov_b32 s46, 256"); A.e("s_mov_b32 s47, 0x20000")
        A.e("v_lshlrev_b32 v2, 2, v1")
        A.e("s_lshl_b32 s28, s2, 2"); A.e("s_add_u32 s28, s28, s26"); A.e("s_lshl_b32 s28, s28, 8")
        A.e("buffer_load_dword v63, v2, s[48:51], s28 offen")
        A.e("s_waitcnt vmcnt(0) lgkmcnt(0)")
        A.e("v_writelane_b32 v63, s40, 13"); A.e("v_writelane_b32 v63, s52, 14"); A.e("v_writelane_b32 v63, s42, 15")
        A.e("buffer_store_dword v63, v2, s[48:51], s28 offen")
        A.e("v_readlane_b32 s40, v63, 0"); A.e("s_nop 1"); A.e("v_subrev_u32 v62, s40, v63")
        A.e("s_cmp_eq_u32 s28, 0"); A.e("s_cselect_b32 s28, 0, 256")
        A.e("buffer_store_dword v62, v2, s[44:47], s28 offen")
    A.label("L_k2_end")
    A.e("s_endpgm")
    return A.text()

hdr = open("standalone__mha_block_cached__near_ridge.s.ref").read().split("; Override launch")[0]
txt = hdr + "; @launch kernel=attn_kernel grid=(256,1,1) block=(256,1,1) lds=163840\n" \
          + "; @launch kernel=oproj_kernel grid=(240,1,1) block=(256,1,1) lds=81920\n" \
          + '.amdgcn_target "amdgcn-amd-amdhsa--gfx950"\n.text\n' + k1() + k2() \
          + '.section .rodata,"a"\n' + descriptor("attn_kernel") + descriptor("oproj_kernel", 328, 256)
open(sys.argv[1], "w").write(txt)
```

```python
import sys, struct, math
from asmlib import *

CFG = dict(nt_kv=" nt", nt_x="", stamps=False, qkorder="A", itst=False, rot="rot8", mulh=1, mulb=2, rmask=7,
           kvq="0,0,0,8,8,8,12,12", kv8=20, kvpos="end", vmw=36, spin=400000)
for arg in sys.argv[2:]:
    k, val = arg.split("=")
    CFG[k] = {"True": True, "False": False}.get(val, int(val) if val.lstrip("-").isdigit() else val)
    if k.startswith("nt_"): CFG[k] = (" " + val.replace("+", " ")) if val not in ("", "none") else ""
KNAME = "standalone__mha_block_cached__near_ridge_kernel"

def f32hex(x): return "0x%08x" % struct.unpack("<I", struct.pack("<f", x))[0]
SCALE = math.log2(math.e) / math.sqrt(128.0)

SLOT = 16384
VRING = 5 * SLOT
def KPOS(n): return SLOT * ((n + 3) % 5)
def VPOS(n): return VRING + SLOT * ((n + 4) % 5)
WS0 = 0
XS0 = VRING
def XS(kc): return XS0 + 32768 * ((kc + 1) % 2)
def WS(kc): return WS0 + SLOT * (kc % 3)
WOW = 36864
OVF = 9 * SLOT
RSTR = 400; RREG = 48 * RSTR
WS_O = 0
WS_FLAG = 16 << 20
WS_PFLAG = WS_FLAG + 65536
WS_PART = 20 << 20
WS_STAMP = 40 << 20
WS_SIZE = 48 << 20
sX, sWQ, sK, sV, sK1, sWS, sWO, sOUT, sDBG = 4, 8, 12, 16, 20, 24, 28, 32, 36
sW, sB, sH = 40, 41, 42
sT0, sT1, sT2, sT3 = 43, 44, 45, 46
sWQO = 47
sKOFF, sDK, sM4, sP, sQ = 48, 49, 50, 51, 52
sCNT, sW4K, sSECOND = 53, 54, 55
sSC = 56
sXB, sXE, sWB = 58, 59, 60
sOST = 61
sOLD = 62
sHG, sIDX = 63, 68
sCH = 70
sPO = 96
sPS = 3
sWOW = 69
sPL = 79
vLANE = 1
vKA = 2; vVA = 6; vVD = 14; vOO = 16; vONE = 20
vT = 24
vWA = 32; vXA = 40
vWD2 = 42
vWT = 44
vO2 = 17
vRW = 19
vRR = 46
vOUT = 51
vNON = 56
vFO = 58
vFP = 59
vFA = 60
vXD = 192; vWD = 202
vS = 64; vP = 128; vC = 160; vQ = 192; vACC = 64
aO = 0; aK = 128; aV = 160; aL = 192
aQA = 128; aQB = 192

class Slot:
    def __init__(self, m=None):
        self.m = m; self.sal = []; self.mem = []; self.valu = []
def emit_slots(A, slots):
    for sl in slots:
        if sl.m: A.e(sl.m)
        for f in sl.sal + sl.mem + sl.valu:
            if isinstance(f, str): A.e(f)
            else: f(A)

STAMPS = ["start", "bm1", "b3", "qdone", "loop", "loopend", "pvdone", "barX", "barY", "oready", "p1", "p2", "p3", "mmdone", "pready", "end"]
def stamp(A, name):
    if not CFG["stamps"] or name not in STAMPS: return
    i = STAMPS.index(name)
    A.e("s_memrealtime s[64:65]")
    A.e("s_memtime s[66:67]")
    A.e("s_waitcnt lgkmcnt(0)")
    A.e(f"v_writelane_b32 v63, s64, {i}")
    A.e(f"v_writelane_b32 v63, s66, {32+i}")

def dma(A, voff, srd, soff, imm, tag, flag):
    A.vmem(f"buffer_load_dwordx4 {v(voff)}, {s(srd,4)}, {soff} offen offset:{imm}{flag} lds", tag)
def lines(fn):
    B = Asm(); fn(B); return [l.strip() for l in B.lines]

def emit_ops(A, ops):
    prev = None
    for kind, o in ops:
        if kind == "mem" and prev == "m0": A.e("s_nop 0")
        if isinstance(o, str): A.e(o)
        else: o(A)
        prev = "m0" if isinstance(o, str) and " m0," in o else kind
def place_ops(slots, positions, ops):
    pend = []; k = 0
    for kind, o in ops:
        if kind == "sal": pend.append(o)
        else:
            p = positions[k]; k += 1
            if pend:
                if k > 1 and positions[k-2] == p: slots[p].mem += pend + ["s_nop 0"]
                elif slots[p-1].mem: slots[p-1].valu += pend
                else: slots[p-1].sal += pend
                pend = []
            slots[p].mem.append(o)
def nmem(ops): return sum(1 for k, _ in ops if k == "mem")
def split_ops(ops, counts):
    out = []; cur = []; k = 0; n = 0
    for o in ops:
        while k < len(counts) and n == counts[k]:
            out.append(cur); cur = []; n = 0; k += 1
        cur.append(o)
        if o[0] == "mem": n += 1
    out.append(cur)
    while len(out) < len(counts) + 1: out.append([])
    return out
def weave(A, fn, ops):
    B = Asm(); B.lds = A.lds; B.vm = A.vm
    fn(B)
    groups = []; cur = []
    for o in ops:
        cur.append(o)
        if o[0] == "mem": groups.append(cur); cur = []
    pos = [(k + 1) * len(B.lines) // (len(groups) + 1) for k in range(len(groups))]
    k = 0
    for i, l in enumerate(B.lines):
        while k < len(groups) and pos[k] == i:
            emit_ops(A, groups[k]); k += 1
        A.lines.append(l)

def kv_quarter(kind, m0, soffset, tag):
    srd = sK if kind == "K" else sV
    return [("sal", soffset), ("sal", m0)] + \
           [("mem", lambda A, i=i: dma(A, vVD + (i & 1), srd, s(sT3), 1024 * i, tag, CFG["nt_kv"])) for i in range(4)]
def kv_full(kind, n):
    ops = []
    for w in range(4):
        base = (KPOS(n) if kind == "K" else VPOS(n)) + 4096 * w
        ops += kv_quarter(kind, f"s_mov_b32 m0, {base}", f"s_mov_b32 {s(sT3)}, {n*SLOT + 4096*w}", (kind, n))
    return ops
def kv_own(kind, n):
    base = KPOS(n) if kind == "K" else VPOS(n)
    return kv_quarter(kind, f"s_add_u32 m0, {s(sW4K)}, {base}", f"s_add_u32 {s(sT3)}, {s(sW4K)}, {n*SLOT}", (kind, n))
def x_own(kc):
    ops = []
    for j in range(8):
        if j % 4 == 0: ops.append(("sal", f"s_add_u32 m0, {s(sXB)}, {XS(kc) + 1024*j}"))
        ops.append(("mem", lambda A, j=j: dma(A, vXD + j, sX, s(sCH + kc), 1024 * (j % 4), ("x", kc), CFG["nt_x"])))
    return ops
def x_extra(kc):
    ops = [("sal", f"s_add_u32 m0, {s(sXE)}, {XS(kc)}")]
    for j in range(2):
        ops.append(("mem", lambda A, j=j: dma(A, vXD + 8 + j, sX, s(sCH + kc), 1024 * j, ("xe", kc), CFG["nt_x"])))
    return ops
def wq_ops(kc):
    ops = [("sal", f"s_lshl_b32 {s(sWQO)}, {s(sCH + kc)}, 12")]
    for j in range(6):
        if j % 3 == 0: ops.append(("sal", f"s_add_u32 m0, {s(sWB)}, {WS(kc) + 1024*j}"))
        ops.append(("mem", lambda A, j=j: dma(A, vWD + j, sWQ, s(sWQO), 1024 * (j % 3), ("wq", kc), CFG["nt_x"])))
    return ops
def wo_group(m0, soffset, tag):
    return [("sal", soffset), ("sal", m0)] + \
           [("mem", lambda A, i=i: dma(A, vWD2 + i, sWO, s(sT3), 1024 * i, tag, "")) for i in range(2)]

def srd(A, r, lo, hi, off, size):
    if off is None:
        A.e(f"s_mov_b32 {s(r)}, {lo}"); A.e(f"s_mov_b32 {s(r+1)}, {hi}")
    else:
        A.e(f"s_add_u32 {s(r)}, {lo}, {off}"); A.e(f"s_addc_u32 {s(r+1)}, {hi}, 0")
    A.e(size if " " in str(size) else f"s_mov_b32 {s(r+2)}, {size}")
    A.e(f"s_mov_b32 {s(r+3)}, 0x20000")

def setup(A):
    A.e("s_cmp_ge_u32 s2, 256")
    A.e("s_cbranch_scc1 L_end")
    stamp(A, "start")
    A.e("s_load_dwordx8 s[80:87], s[0:1], 0")
    A.e("s_load_dwordx8 s[88:95], s[0:1], 32")
    A.e(f"v_and_b32 {v(vLANE)}, 63, v0")
    A.e(f"v_lshrrev_b32 {v(vT)}, 6, v0")
    A.e(f"s_lshr_b32 {s(sIDX)}, s2, 3")
    A.e(f"v_readfirstlane_b32 {s(sW)}, {v(vT)}")
    A.e(f"s_and_b32 {s(sB)}, s2, 1")
    A.e(f"s_lshl_b32 {s(sB)}, {s(sB)}, 2")
    A.e(f"s_and_b32 {s(sT2)}, {s(sIDX)}, 3")
    A.e(f"s_add_u32 {s(sB)}, {s(sB)}, {s(sT2)}")
    A.e(f"s_bfe_u32 {s(sHG)}, s2, 0x20001")
    A.e(f"s_lshl_b32 {s(sH)}, {s(sHG)}, 3")
    A.e(f"s_lshr_b32 {s(sT2)}, {s(sIDX)}, 2")
    A.e(f"s_add_u32 {s(sH)}, {s(sH)}, {s(sT2)}")
    A.e(f"s_lshl_b32 {s(sW4K)}, {s(sW)}, 12")
    if CFG["rot"] == "lock":
        for t in range(9): A.e(f"s_movk_i32 {s(sCH+t)}, {128*t}")
    else:
        A.e(f"s_mul_i32 {s(sT0)}, {s(sH)}, {CFG['mulh']}")
        A.e(f"s_mul_i32 {s(sT1)}, {s(sB)}, {CFG['mulb']}")
        A.e(f"s_add_u32 {s(sT0)}, {s(sT0)}, {s(sT1)}")
        A.e(f"s_and_b32 {s(sT0)}, {s(sT0)}, {CFG['rmask']}")
        A.e(f"s_lshl_b32 {s(sT0)}, {s(sT0)}, 7")
        pos = {"rot8": 0, "rot8l": 8}[CFG["rot"]]
        k = 0
        for t in range(9):
            if t == pos: A.e(f"s_movk_i32 {s(sCH+t)}, 1024"); continue
            A.e(f"s_add_u32 {s(sCH+t)}, {s(sT0)}, {128*k}")
            A.e(f"s_and_b32 {s(sCH+t)}, {s(sCH+t)}, 1023")
            k += 1
    L = v(vLANE); t0, t1, t2, t3, t4 = [v(vT + i) for i in range(5)]
    A.e(f"v_lshrrev_b32 {t0}, 4, {L}")
    A.e(f"v_and_b32 {t1}, 15, {L}")
    A.e(f"v_lshrrev_b32 {t2}, 3, {L}")
    A.e(f"v_mul_u32_u24 {t2}, 1152, {t2}")
    A.e(f"v_and_b32 {t3}, 7, {L}")
    A.e(f"v_xor_b32 {t3}, {t3}, {t0}")
    A.e(f"v_xor_b32 {t4}, 4, {t3}")
    A.e(f"v_lshl_add_u32 {t3}, {t3}, 4, {t2}")
    A.e(f"v_lshl_add_u32 {t4}, {t4}, 4, {t2}")
    A.e(f"s_mul_i32 {s(sT0)}, {s(sW)}, {8*9216}")
    for j in range(8):
        A.e(f"s_add_u32 {s(sT1)}, {s(sT0)}, {j*9216 - 1024*(j%4)}")
        A.e(f"v_add_u32 {v(vXD+j)}, {s(sT1)}, {t3 if j%2==0 else t4}")
    A.e(f"s_mul_i32 {s(sT0)}, {s(sW)}, {2*9216}")
    for j in range(2):
        A.e(f"s_add_u32 {s(sT1)}, {s(sT0)}, {(24+j)*9216 - 1024*j}")
        A.e(f"v_add_u32 {v(vXD+8+j)}, {s(sT1)}, {t3 if j%2==0 else t4}")
    A.e(f"s_lshl_b32 {s(sXB)}, {s(sW)}, 13")
    A.e(f"s_lshl_b32 {s(sXE)}, {s(sW)}, 11")
    A.e(f"s_add_u32 {s(sXE)}, {s(sXE)}, {24*1024}")
    A.e(f"s_mul_i32 {s(sWB)}, {s(sW)}, {5*1024}")
    A.e(f"v_lshlrev_b32 {t2}, 1, {t0}")
    A.e(f"v_xor_b32 {t2}, {t2}, {t1}")
    A.e(f"v_lshlrev_b32 {t3}, 4, {t2}")
    A.e(f"v_lshl_add_u32 {t3}, {t0}, 13, {t3}")
    A.e(f"s_mul_i32 {s(sT0)}, {s(sW)}, 5")
    for j in range(6):
        A.e(f"s_add_u32 {s(sT1)}, {s(sT0)}, {j}")
        A.e(f"s_lshl_b32 {s(sT2)}, {s(sT1)}, 6")
        A.e(f"s_and_b32 {s(sT2)}, {s(sT2)}, 128")
        A.e(f"s_lshl_b32 {s(sT1)}, {s(sT1)}, 15")
        if j % 3: A.e(f"s_sub_u32 {s(sT1)}, {s(sT1)}, {1024*(j%3)}")
        A.e(f"v_xor_b32 {v(vWD+j)}, {s(sT2)}, {t3}")
        A.e(f"v_add_u32 {v(vWD+j)}, {s(sT1)}, {v(vWD+j)}")
    for i in range(2):
        A.e(f"v_xor_b32 {t3}, {8*i}, {t2}")
        A.e(f"v_lshlrev_b32 {t3}, 4, {t3}")
        A.e(f"v_lshl_add_u32 {v(vVD+i)}, {t0}, 8, {t3}")
    A.e("s_waitcnt lgkmcnt(0)")
    A.e(f"s_mul_i32 {s(sT0)}, {s(sB)}, 276480")
    srd(A, sX, "s80", "s81", s(sT0), 276480)
    A.e(f"s_lshl_b32 {s(sT0)}, {s(sH)}, 8")
    srd(A, sWQ, "s86", "s87", s(sT0), f"s_sub_u32 {s(sWQ+2)}, {576*8192}, {s(sT0)}")

def setup_kv(A):
    A.e(f"s_lshl_b32 {s(sT0)}, {s(sB)}, 5")
    A.e(f"s_add_u32 {s(sT0)}, {s(sT0)}, {s(sH)}")
    A.e(f"s_lshl_b32 {s(sT0)}, {s(sT0)}, 18")
    srd(A, sK, "s82", "s83", s(sT0), 262144)
    srd(A, sV, "s84", "s85", s(sT0), 262144)
    srd(A, sK1, s(sK), s(sK+1), SLOT, 262144 - SLOT)
    srd(A, sDBG, "s92", "s93", None, 256)

def setup_q(A):
    L = v(vLANE); t0, t1, t2, t3, t4, tw, tv = [v(vT + i) for i in range(7)]
    A.e(f"v_lshrrev_b32 {t0}, 4, {L}")
    A.e(f"v_and_b32 {t1}, 15, {L}")
    A.e(f"v_lshrrev_b32 {t2}, 1, {t1}")
    A.e(f"v_xor_b32 {t2}, {t2}, {t0}")
    A.e(f"s_add_u32 {s(sT0)}, {s(sXB)}, {XS0}")
    for s2 in range(2):
        A.e(f"v_xor_b32 {t3}, {4*s2}, {t2}")
        A.e(f"v_lshlrev_b32 {t3}, 4, {t3}")
        A.e(f"v_lshl_add_u32 {t3}, {t1}, 7, {t3}")
        A.e(f"v_add_u32 {v(vXA+s2)}, {s(sT0)}, {t3}")
    A.e(f"v_lshrrev_b32 {t2}, 2, {t1}")
    A.e(f"v_and_b32 {t3}, 1, {t0}")
    A.e(f"v_lshl_add_u32 {t3}, {t3}, 2, {t2}")
    A.e(f"v_and_b32 {t4}, 3, {L}")
    A.e(f"v_lshlrev_b32 {t4}, 3, {t4}")
    A.e(f"v_lshl_add_u32 {tw}, {t0}, 3, {t2}")
    A.e(f"v_lshl_add_u32 {tw}, {tw}, 8, {t4}")
    if WS0: A.e(f"v_add_u32 {tw}, {WS0}, {tw}")
    for t in range(8):
        A.e(f"v_xor_b32 {tv}, {t}, {t3}")
        A.e(f"v_lshl_add_u32 {v(vWA+t)}, {tv}, 5, {tw}")

def attn_init(A):
    L = v(vLANE); t0, t1, t2, t3, t4, tw, tv = [v(vT + i) for i in range(7)]
    A.e(f"v_lshrrev_b32 {t0}, 4, {L}")
    A.e(f"v_and_b32 {t1}, 15, {L}")
    A.e(f"v_and_b32 {t2}, 7, {t1}")
    A.e(f"v_lshlrev_b32 {t2}, 1, {t2}")
    A.e(f"v_xor_b32 {t2}, {t0}, {t2}")
    A.e(f"v_lshlrev_b32 {t4}, 8, {t1}")
    A.e(f"v_add_u32 {t4}, {KPOS(0)}, {t4}")
    for s_ in range(4):
        A.e(f"v_xor_b32 {t3}, {4*s_}, {t2}")
        A.e(f"v_lshl_add_u32 {v(vKA+s_)}, {t3}, 4, {t4}")
    A.e(f"v_lshrrev_b32 {t2}, 2, {t1}")
    A.e(f"v_and_b32 {t3}, 1, {t0}")
    A.e(f"v_lshl_add_u32 {t3}, {t3}, 2, {t2}")
    A.e(f"v_and_b32 {t4}, 3, {L}")
    A.e(f"v_cmp_eq_u32 vcc, 0, {t4}")
    A.e(f"v_lshlrev_b32 {t4}, 3, {t4}")
    A.e(f"v_lshl_add_u32 {tw}, {t0}, 2, {t2}")
    A.e(f"v_lshl_add_u32 {tw}, {tw}, 8, {t4}")
    A.e(f"v_add_u32 {tw}, {VPOS(-1)}, {tw}")
    for t in range(8):
        A.e(f"v_xor_b32 {tv}, {t}, {t3}")
        A.e(f"v_lshl_add_u32 {v(vVA+t)}, {tv}, 5, {tw}")
    A.e(f"v_mov_b32 {t3}, 0x3f803f80")
    for i in range(4): A.e(f"v_cndmask_b32 {v(vONE+i)}, 0, {t3}, vcc")
    A.e(f"s_mov_b32 {s(sKOFF)}, {KPOS(0)}")
    A.e(f"s_mov_b32 {s(sM4)}, {-4*SLOT}")
    A.e(f"s_mov_b32 {s(sP)}, {KPOS(5)}")
    A.e(f"s_mov_b32 {s(sQ)}, {4*SLOT}")

def zero_acc(A, nq):
    for r in range(32 * nq): A.e(f"v_accvgpr_write_b32 {a(aO+r)}, 0")
def zero_l(A, nq):
    for r in range(4 * nq): A.e(f"v_accvgpr_write_b32 {a(aL+r)}, 0")

def setup_p2(A):
    L = v(vLANE); t0, t1, t2, t3, t4, t5, t6 = [v(vT + i) for i in range(7)]
    T0, T1, T2 = s(sT0), s(sT1), s(sT2)
    srd(A, sWS, "s94", "s95", None, WS_SIZE)
    srd(A, sOUT, "s90", "s91", None, 1920 * 1152)
    A.e(f"s_mov_b32 {s(sSC)}, {f32hex(SCALE)}")
    A.e(f"s_mov_b32 {s(sSC+1)}, {f32hex(SCALE)}")
    A.e(f"s_mov_b32 {s(sSECOND)}, 0")
    A.e(f"v_lshlrev_b32 {v(vOO)}, 4, {L}")
    A.e(f"v_add_u32 {v(vO2)}, 131072, {v(vOO)}")
    A.e(f"v_add_u32 {v(vO2+1)}, 262144, {v(vOO)}")
    A.e(f"s_mul_i32 {T0}, {s(sB)}, 15")
    A.e(f"s_lshl_b32 {T1}, {s(sW)}, 2")
    A.e(f"s_add_u32 {T0}, {T0}, {T1}")
    A.e(f"s_lshl_b32 {T0}, {T0}, 17")
    A.e(f"s_lshl_b32 {T1}, {s(sH)}, 12")
    A.e(f"s_add_u32 {s(sOST)}, {T0}, {T1}")
    A.e(f"s_min_u32 {T0}, {s(sIDX)}, 29")
    A.e(f"s_mul_i32 {T1}, {T0}, 43")
    A.e(f"s_lshr_b32 {T1}, {T1}, 8")
    A.e(f"s_mul_i32 {T2}, {T1}, 6")
    A.e(f"s_sub_u32 {T0}, {T0}, {T2}")
    A.e(f"s_mul_i32 {T0}, {T0}, 192")
    A.e(f"s_mul_i32 {T1}, {T1}, 12")
    A.e(f"s_and_b32 {T2}, s2, 1")
    A.e(f"s_mul_i32 {T2}, {T2}, 60")
    A.e(f"s_add_u32 {T1}, {T1}, {T2}")
    A.e(f"s_mul_i32 {T2}, {s(sHG)}, {1024*1152}")
    A.e(f"s_add_u32 {T2}, {T2}, {T0}")
    srd(A, sWO, "s88", "s89", T2, f"s_sub_u32 {s(sWO+2)}, {4096*1152}, {T2}")
    A.e(f"s_lshl_b32 {s(sOLD)}, {T1}, 17")
    A.e(f"s_lshl_b32 {T2}, {s(sHG)}, 15")
    A.e(f"s_add_u32 {s(sOLD)}, {s(sOLD)}, {T2}")
    A.e(f"s_lshl_b32 {T2}, {s(sW)}, 13")
    A.e(f"s_add_u32 {s(sOLD)}, {s(sOLD)}, {T2}")
    for q in range(4):
        A.e(f"s_add_u32 {T2}, {s(sHG)}, {q+1}")
        A.e(f"s_and_b32 {T2}, {T2}, 3")
        A.e(f"s_mul_i32 {T2}, {T2}, {3*131072}")
        A.e(f"s_add_u32 {s(sPO+q)}, {T2}, {s(sOLD)}")
    A.e(f"v_and_b32 {t0}, 2, {L}")
    A.e(f"v_mul_u32_u24 {t0}, 5, {t0}")
    A.e(f"v_add_u32 {t0}, {T1}, {t0}")
    A.e(f"v_mul_u32_u24 {t0}, 137, {t0}")
    A.e(f"v_lshrrev_b32 {t0}, 11, {t0}")
    A.e(f"v_and_b32 {t1}, 1, {L}")
    A.e(f"v_lshl_add_u32 {t0}, {t0}, 5, {t1}")
    A.e(f"s_lshl_b32 {T2}, {s(sHG)}, 3")
    A.e(f"s_lshl_b32 {s(sPS)}, {s(sW)}, 1")
    A.e(f"s_add_u32 {T2}, {T2}, {s(sPS)}")
    A.e(f"v_add_u32 {t0}, {T2}, {t0}")
    A.e(f"v_lshlrev_b32 {t0}, 7, {t0}")
    A.e(f"v_add_u32 {v(vFO)}, {WS_FLAG}, {t0}")
    A.e(f"s_mul_i32 {T2}, {s(sHG)}, 3")
    A.e(f"s_add_u32 {T1}, {T1}, {T2}")
    A.e(f"s_lshl_b32 {T1}, {T1}, 4")
    A.e(f"s_mul_i32 {T2}, {s(sW)}, 12")
    A.e(f"s_add_u32 {T1}, {T1}, {T2}")
    A.e(f"s_mul_i32 {T1}, {T1}, 1152")
    A.e(f"s_add_u32 {T1}, {T1}, {T0}")
    A.e(f"s_mul_i32 {T2}, {T2}, {RSTR}")
    for r in range(5):
        A.e(f"v_add_u32 {t0}, {64*r}, {L}")
        if r == 4: A.e(f"v_min_u32 {t0}, 287, {t0}")
        A.e(f"v_mul_u32_u24 {t1}, 171, {t0}")
        A.e(f"v_lshrrev_b32 {t1}, 12, {t1}")
        A.e(f"v_mul_u32_u24 {t2}, 24, {t1}")
        A.e(f"v_sub_u32 {t2}, {t0}, {t2}")
        A.e(f"v_mul_u32_u24 {t3}, {RSTR}, {t1}")
        A.e(f"v_lshl_add_u32 {t3}, {t2}, 4, {t3}")
        A.e(f"v_add_u32 {v(vRR+r)}, {T2}, {t3}")
        A.e(f"v_mul_u32_u24 {t3}, 1152, {t1}")
        A.e(f"v_lshl_add_u32 {t3}, {t2}, 3, {t3}")
        A.e(f"v_add_u32 {v(vOUT+r)}, {T1}, {t3}")
    A.e(f"v_cmp_gt_u32 vcc, 32, {L}")
    A.e(f"v_mov_b32 {t0}, 0x7ffffff0")
    A.e(f"v_lshrrev_b32 {t1}, 4, {L}")
    A.e(f"v_cndmask_b32 {v(vOUT+4)}, {t0}, {v(vOUT+4)}, vcc")
    A.e(f"v_cmp_eq_u32 vcc, 0, v0")
    A.e(f"v_and_b32 {t2}, 15, {L}")
    A.e(f"s_mul_i32 {T2}, {s(sW)}, {RREG}")
    A.e(f"v_cndmask_b32 {v(vFP)}, {t0}, 0, vcc")
    A.e(f"v_mul_u32_u24 {t3}, {RSTR}, {t2}")
    A.e(f"v_lshl_add_u32 {t3}, {t1}, 4, {t3}")
    A.e(f"v_add_u32 {v(vRW)}, {T2}, {t3}")
    A.e(f"s_mul_i32 {s(sWOW)}, {s(sW)}, {WOW}")
    A.e(f"v_lshrrev_b32 {t3}, 2, {L}")
    A.e(f"v_and_b32 {t4}, 3, {L}")
    A.e(f"v_lshlrev_b32 {t5}, 3, {t4}")
    A.e(f"v_lshl_add_u32 {t5}, {t3}, 6, {t5}")
    A.e(f"v_and_b32 {t6}, 1, {t1}")
    A.e(f"v_lshl_add_u32 {t5}, {t6}, 5, {t5}")
    A.e(f"v_add_u32 {v(vWT)}, {s(sWOW)}, {t5}")
    A.e(f"v_xor_b32 {v(vWT+1)}, 32, {v(vWT)}")
    A.e(f"v_lshlrev_b32 {t6}, 1, {t6}")
    A.e(f"v_xor_b32 {t4}, {t4}, {t6}")
    A.e(f"v_mul_u32_u24 {t3}, 1152, {t3}")
    A.e(f"v_lshl_add_u32 {v(vWD2)}, {t4}, 4, {t3}")
    A.e(f"v_add_u32 {v(vWD2+1)}, {16*1152 - 1024}, {v(vWD2)}")
    A.e(f"s_lshl_b32 {T2}, s2, 9")
    A.e(f"s_add_u32 {T2}, {T2}, {WS_PFLAG}")
    A.e(f"v_and_b32 {t0}, 1, {L}")
    A.e(f"v_lshlrev_b32 {t0}, 7, {t0}")
    A.e(f"v_add_u32 {v(vFA)}, {T2}, {t0}")
    A.e(f"s_mul_i32 {T2}, s2, {12*5120}")
    A.e(f"s_mul_i32 {s(sPL)}, {s(sW)}, 5120")
    A.e(f"s_add_u32 {s(sPL)}, {s(sPL)}, {T2}")
    A.e(f"s_add_u32 {s(sPL)}, {s(sPL)}, {WS_PART}")

def write_nonce(A):
    A.e("s_memrealtime s[64:65]")
    A.e("s_cmp_eq_u32 s2, 0")
    A.e(f"s_cselect_b32 {s(sT0)}, 0, 256")
    A.e(f"v_lshlrev_b32 {v(vT+2)}, 8, {v(vLANE)}")
    A.e("s_waitcnt lgkmcnt(0)")
    A.e(f"v_mov_b32 {v(vT)}, s64")
    A.e(f"v_mov_b32 {v(vT+1)}, s65")
    A.vmem(f"buffer_store_dwordx2 {v(vT,2)}, {v(vT+2)}, {s(sDBG,4)}, {s(sT0)} offen offset:128 sc1", "nonce")

def qproj(A, nq):
    main = nq == 4
    if main: emit_ops(A, wq_ops(0) + x_own(0) + x_extra(0))
    setup_kv(A)
    if not main: write_nonce(A)
    setup_q(A)
    if main: emit_ops(A, wq_ops(1) + x_own(1) + x_extra(1))
    kvq = [int(x) for x in str(CFG["kvq"]).split(",")]
    assert len(kvq) == 8 and sum(kvq) == 48
    kvp = split_ops(kv_full("K", 0) + kv_full("K", 1) + kv_full("V", 0), kvq[:-1])
    if not main: emit_ops(A, kvp[0])
    kvrest = split_ops(kv_full("V", 1) + kv_full("K", 3) + kv_full("V", 2) + kv_full("K", 4) + kv_full("V", 3), [CFG["kv8"]])
    NS = 16 * nq; BAR = 12 * nq; LEAD = NS - BAR
    slots = [Slot() for _ in range(LEAD + 9 * NS)]
    def G(kc, i): return LEAD + kc * NS + i
    for kc in range(9):
        bb = aQB + 32 * ((kc + 1) % 2)
        for i in range(NS):
            f, qt = i // nq, i % nq
            s2, t = f // 8, f % 8
            d = v(vACC + 32 * qt + 4 * t, 4)
            slots[G(kc, i)].m = mfma(d, a(aQA + 4 * f, 4), a(bb + 8 * qt + 4 * s2, 4), d if (kc or s2) else "0")
        def rdA(f, j, kc=kc):
            s2, t = f // 8, f % 8
            off = WS(kc) - WS0 + (32 * s2 + 4 * j) * 256
            return lambda A: A.ds(f"ds_read_b64_tr_b16 {a(aQA + 4*f + 2*j, 2)}, {v(vWA+t)} offset:{off}", ("A", kc, f, j))
        def rdB(qt, s2, kc=kc, bb=bb):
            off = XS(kc) - XS0 + 2048 * qt
            return lambda A: A.ds(f"ds_read_b128 {a(bb + 8*qt + 4*s2, 4)}, {v(vXA+s2)} offset:{off}", ("B", kc, qt, s2))
        head = [rdB(0, 0), rdA(0, 0), rdA(0, 1)] + [rdB(q, 0) for q in range(1, nq)] + [rdA(1, 0), rdA(1, 1), rdA(2, 0), rdA(2, 1)] \
             + [rdB(q, 1) for q in range(nq)] + [rdA(3, 0), rdA(3, 1)]
        p0 = G(kc, -LEAD)
        for k, r in enumerate(head): slots[p0 + k * LEAD // len(head)].mem.append(r)
        tail = [rdA(f, j) for f in range(4, 16) for j in range(2)]
        span = BAR - 2 * nq
        for k, r in enumerate(tail): slots[G(kc, k * span // len(tail))].mem.append(r)
        slots[G(kc, -1)].valu.append(lambda A, kc=kc: A.wait_lds(("B", kc, nq - 1, 0)))
        for f in range(1, 13):
            slots[G(kc, f * nq - 1)].sal.append(lambda A, tag=("A", kc, f, 1): A.wait_lds(tag))
        def bar(A, kc=kc):
            if main: A.wait_vm(("xe", kc))
            A.e("s_waitcnt lgkmcnt(0)")
            A.e("s_barrier")
            stamp(A, "bm1" if kc == 0 else f"b{kc-1}")
        slots[p0].sal.insert(0, bar)
        if main:
            early = []; late = []
            if 1 <= kc <= 7: early += x_extra(kc + 1)
            if kc <= 6: early += wq_ops(kc + 2)
            if kc <= 6: late += x_own(kc + 2)
            pe = [(G(0, 1) if kc == 0 else p0 + 1) + 2 * k for k in range(nmem(early))]
            pl = [G(kc, 3 * nq + 1 + 3 * k) for k in range(nmem(late))]
            place_ops(slots, pe, early); place_ops(slots, pl, late)
        else:
            ops = kvp[kc + 1] if kc <= 6 else kv_full("K", 2) if kc == 7 else kvrest[0]
            ne = nmem(ops)
            if kc <= 6: pe = [G(kc, BAR - 2 - ne + k) if CFG["kvpos"] == "end" else p0 + 1 + k for k in range(ne)]
            else: pe = [p0 + 1 + k * (NS - 4) // ne for k in range(ne)]
            place_ops(slots, pe, ops)
    def bar8(A):
        if not main: A.wait_vm(("K", 0))
        A.e("s_waitcnt lgkmcnt(0)")
        A.e("s_barrier")
    p8 = G(8, BAR)
    slots[p8].sal.insert(0, bar8)
    for f in range(8): slots[p8 + 1 + f].mem.append(k_read(0, f))
    bg = lines(setup_p2) + lines(attn_init) + lines(lambda B: zero_acc(B, nq))
    p = G(0, 4); i = 0
    while i < len(bg):
        slots[p].valu.append(bg[i])
        if bg[i].startswith("s_add_u32") and i + 1 < len(bg) and bg[i+1].startswith("s_addc"):
            i += 1; slots[p].valu.append(bg[i])
        i += 1; p += 1
    assert p < G(8, 0), p
    for k, l in enumerate(lines(lambda B: zero_l(B, nq))): slots[G(8, 2 + k)].valu.append(l)
    emit_slots(A, slots)
    return [] if main else kvrest[1]

def qconvert(A, nq):
    A.e("s_nop 7")
    for qt in range(nq):
        for u in range(4):
            src = vACC + 32 * qt + 8 * u; dst = vQ + 16 * qt + 4 * u
            for j in range(4): A.e(f"v_pk_mul_f32 {v(src+2*j,2)}, {v(src+2*j,2)}, {s(sSC,2)}")
            for j in range(4): A.e(f"v_cvt_pk_bf16_f32 {v(dst+j)}, {v(src+2*j)}, {v(src+2*j+1)}")
        for sw in ("v_permlane32_swap_b32", "v_permlane16_swap_b32"):
            for u in range(4):
                dst = vQ + 16 * qt + 4 * u
                A.e(f"{sw} {v(dst)}, {v(dst+2)}")
                A.e(f"{sw} {v(dst+1)}, {v(dst+3)}")

def k_read(T, f):
    kt, s_ = f // 4, f % 4
    off = 8192 * (T % 2) + 4096 * kt
    return lambda A: A.ds(f"ds_read_b128 {a(aK+4*f,4)}, {v(vKA+s_)} offset:{off}", ("K", f))
def v_read(T, i):
    t, j = i // 2, i % 2
    off = 8192 * (T % 2) + 4096 * j
    return lambda A: A.ds(f"ds_read_b64_tr_b16 {a(aV+4*t+2*j,2)}, {v(vVA+t)} offset:{off}", ("V", i))
def qk_list(T, nq, czero=False):
    if CFG["qkorder"] == "A": order = [(kt, s_, qt) for kt in range(2) for s_ in range(4) for qt in range(nq)]
    else: order = [(kt, s_, qt) for qt in range(nq) for kt in range(2) for s_ in range(4)]
    out = []
    for kt, s_, qt in order:
        d = v(vS + 32 * (T % 2) + 8 * qt + 4 * kt, 4)
        c = d if s_ else ("0" if czero else v(vC + 4 * qt, 4))
        out.append(mfma(d, a(aK + 4 * (4 * kt + s_), 4), v(vQ + 16 * qt + 4 * s_, 4), c))
    return out
def crosslane_max(A, regs, tmp):
    for sw in ("v_permlane32_swap_b32", "v_permlane16_swap_b32"):
        for i, r in enumerate(regs): A.e(f"v_mov_b32 {v(tmp+i)}, {v(r)}")
        A.e("s_nop 1")
        for i, r in enumerate(regs): A.e(f"{sw} {v(tmp+i)}, {v(r)}")
        A.e("s_nop 1")
        for i, r in enumerate(regs): A.e(f"v_max_f32 {v(r)}, {v(r)}, {v(tmp+i)}")
def first_tile(A, nq):
    A.e("s_waitcnt lgkmcnt(0)")
    A.e("s_nop 0")
    for m in qk_list(0, nq, czero=True): A.e(m)
    A.e("s_nop 7")
    for qt in range(nq):
        b = vS + 8 * qt; c = vC + 4 * qt
        A.e(f"v_max3_f32 {v(c)}, {v(b)}, {v(b+1)}, {v(b+2)}")
        A.e(f"v_max3_f32 {v(c+1)}, {v(b+3)}, {v(b+4)}, {v(b+5)}")
        A.e(f"v_max3_f32 {v(c)}, {v(c)}, {v(b+6)}, {v(b+7)}")
        A.e(f"v_max_f32 {v(c)}, {v(c)}, {v(c+1)}")
    crosslane_max(A, [vC + 4 * qt for qt in range(nq)], vT)
    for qt in range(nq):
        b = vS + 8 * qt; c = vC + 4 * qt
        for e in range(8): A.e(f"v_sub_f32 {v(b+e)}, {v(b+e)}, {v(c)}")
        for e in (3, 2, 1, 0): A.e(f"v_sub_f32 {v(c+e)}, 0, {v(c)}")

NLOOP = {4: 15, 3: 13}
def attn_slots(nq):
    P = 17 * nq; NT = 34
    slots = [Slot() for _ in range(NT * P)]
    E = [2 * e - 4 for e in range(8 * nq)]
    Em = set(x % P for x in E)
    others = [j for j in range(P) if j not in Em]
    BARP = 8 * nq - 2
    aft = [j for j in others if j > BARP]
    kpos = aft[:8]
    seq = aft[12:] + [j + P for j in others if j < BARP]
    vpos = [x for x in seq if x % 2 == 1][:16] if nq == 4 else [seq[i // 2] for i in range(16)]
    assert vpos[-1] + 6 <= P + BARP, vpos
    peel = 2 * (NLOOP[nq] + 1) * P
    unit = 0
    for T in range(NT):
        g = T * P
        if T < 32:
            for i, m in enumerate(qk_list(T, nq)): slots[g + i].m = m
        if 0 < T <= 32: slots[g - 1].sal.append(lambda A: A.wait_lds(("K", 7)))
        Tp = T - 2
        if 0 <= Tp < 32:
            pb = vP + 16 * (Tp % 2); k = 8 * nq
            for t in range(8):
                for qt in range(nq):
                    d = a(aO + 32 * qt + 4 * t, 4)
                    slots[g + k].m = mfma(d, a(aV + 4 * t, 4), v(pb + 4 * qt, 4), d); k += 1
            for qt in range(nq):
                d = a(aL + 4 * qt, 4)
                slots[g + k].m = mfma(d, v(vONE, 4), v(pb + 4 * qt, 4), d); k += 1
            for i in range(16): slots[g - P + vpos[i]].mem.append(v_read(Tp, i))
            slots[g + BARP].sal.append(lambda A: A.wait_lds(("V", 15)))
        Ts = T - 1
        if 0 <= Ts < 32:
            sb = vS + 32 * (Ts % 2); pb = vP + 16 * (Ts % 2)
            for e in range(8 * nq):
                slots[g + E[e]].valu.append(f"v_exp_f32 {v(sb+e)}, {v(sb+e)}")
                if e % 2: slots[g + E[e] + 1].valu.append(f"v_cvt_pk_bf16_f32 {v(pb+e//2)}, {v(sb+e-1)}, {v(sb+e)}")
        if T < 32:
            for f in range(8): slots[g + kpos[f]].mem.append(k_read(T + 1, f))
        if T < 32 and T % 2 == 1:
            n = T // 2
            if nq == 3:
                if g < peel: slots[g + BARP].sal.append(f"s_waitcnt vmcnt({CFG['vmw']})")
                else: slots[g + BARP].sal.append(lambda A, n=n: A.wait_vm(("u", 8 * (n - 3) - 1)))
            slots[g + BARP].sal.append("s_barrier")
            slots[g].sal += [f"s_cmp_eq_u32 {s(sKOFF)}, {4*SLOT}", f"s_cselect_b32 {s(sDK)}, {s(sM4)}, {SLOT}"]
            slots[g + 1].sal.append(f"s_add_u32 {s(sKOFF)}, {s(sKOFF)}, {s(sDK)}")
            cv = set((x + 1) % P for k, x in enumerate(E) if k % 2)
            free = [j for j in others if j not in cv]
            kfree = [j for j in free if 2 < j < kpos[0]][:4]
            for i in range(4): slots[g + kfree[i]].valu.append(f"v_add_u32 {v(vKA+i)}, {s(sDK)}, {v(vKA+i)}")
            vfree = [j for j in free if vpos[-1] - P < j < vpos[0] and j not in kfree]
            while len(vfree) < 8: vfree = sorted(vfree + vfree[:8 - len(vfree)])
            for i in range(8): slots[g + vfree[i]].valu.append(f"v_add_u32 {v(vVA+i)}, {s(sDK)}, {v(vVA+i)}")
            if nq == 3:
                for u in range(7):
                    p = g + BARP + 2 + u * (2 * P - 4) // 7
                    if p >= peel: break
                    st = (2 * P - 4) // 7 // 5
                    def dm(srd_, i, unit=unit): return lambda A: dma(A, vVD + i, srd_, s(sQ), 1024 * i, ("u", unit), CFG["nt_kv"])
                    q = [p + k * st for k in range(5)]
                    q = [x + 1 if (x % P) in Em else x for x in q]
                    slots[q[0] - 1].sal.append(f"s_mov_b32 m0, {s(sP)}")
                    slots[q[0]].mem.append(dm(sK1, 0)); slots[q[1]].mem.append(dm(sK1, 1))
                    slots[q[1]].valu.append(f"s_add_u32 m0, {s(sP)}, {VRING}")
                    slots[q[2]].mem.append(dm(sV, 0)); slots[q[3]].mem.append(dm(sV, 1))
                    r = q[4]
                    while r % (2 * P) >= 2 * P - 3 or r % (2 * P) == P: r += 1
                    assert (r // (2 * P)) == ((q[0] - 1) // (2 * P))
                    slots[r].sal += [f"s_add_u32 {s(sP)}, {s(sP)}, 2048", f"s_cmp_eq_u32 {s(sP)}, {5*SLOT}",
                                     f"s_cselect_b32 {s(sP)}, 0, {s(sP)}", f"s_add_u32 {s(sQ)}, {s(sQ)}, 2048"]
                    unit += 1
    if nq == 3:
        ops = []
        for u in range(unit, 96):
            off = 4 * SLOT + 2048 * u
            ops += [("sal", f"s_mov_b32 {s(sT3)}, {off}"), ("sal", f"s_mov_b32 m0, {VPOS(15) + off - 15*SLOT}")] + \
                   [("mem", lambda A, i=i, u=u: dma(A, vVD + i, sV, s(sT3), 1024 * i, ("u", u), CFG["nt_kv"])) for i in range(2)]
        freeat = {0: 12, 1: 13, 2: 14, 3: 15, 4: 11, 5: 12, 6: 13, 7: 14, 8: 15}
        byb = {13: [], 14: [], 15: []}
        for gidx in range(72):
            w, gi = gidx // 18, gidx % 18
            ks, j = 8 * w + gi // 3, gi % 3
            byb[max(13, freeat[gidx * 2048 // SLOT])] += wo_group(f"s_mov_b32 m0, {gidx*2048}", f"s_mov_b32 {s(sT3)}, {ks*36864 + 64*j}", "wo1")
        b14 = 29 * P + BARP; b15 = 31 * P + BARP
        cand = [p for p in range(peel + 1, b15 - 1) if (p % P) not in Em]
        o1 = ops + byb[13] + byb[14]
        n1 = nmem(o1)
        pos = [cand[k * len(cand) // n1] for k in range(n1)]
        assert pos[n1 - nmem(byb[14])] > b14 + 1
        place_ops(slots, pos, o1)
        place_ops(slots, [b15 + 2 + k for k in range(nmem(byb[15]))], byb[15])
    return slots, P

def fix_nomfma(slots):
    for sl in slots:
        if sl.m is None and (sl.valu or sl.mem): sl.sal.insert(0, "s_nop 0")

def attention(A, nq):
    R = f"q{nq}"
    slots, P = attn_slots(nq)
    for i in range(8 * nq): slots[i].m = None
    A.label(f"L_attn_{R}")
    pro = slots[8 * nq:2 * P]; fix_nomfma(pro)
    for sl in slots[:8 * nq]:
        for f in sl.mem: f(A)
    emit_slots(A, pro)
    NL = NLOOP[nq]
    A.e(f"s_mov_b32 {s(sCNT)}, {NL}")
    stamp(A, "loop")
    B = Asm(); B.lds = list(A.lds); B.vm = list(A.vm); texts = []
    for n in range(1, NL + 1):
        B.lines = []; emit_slots(B, slots[2 * n * P:2 * (n + 1) * P]); texts.append(B.text())
    assert all(t == texts[0] for t in texts), "steady state mismatch"
    A.raw(".p2align 6")
    A.label(f"L_loop_{R}")
    body = slots[2 * P:4 * P]
    body[-3].sal.append(f"s_sub_u32 {s(sCNT)}, {s(sCNT)}, 1")
    body[-2].sal.append(f"s_cmp_lg_u32 {s(sCNT)}, 0")
    if CFG["itst"] and nq == 4:
        body[P + 8*nq].sal += ["s_memrealtime s[100:101]"]
        body[P + 8*nq + 24].sal += ["s_waitcnt lgkmcnt(0)", f"v_cmp_eq_u32 vcc, {s(sCNT)}, {v(vLANE)}", "v_mov_b32 v61, s100", "s_nop 0", "v_cndmask_b32 v62, v62, v61, vcc"]
    emit_slots(A, body)
    A.e(f"s_cbranch_scc1 L_loop_{R}")
    A.lds = B.lds; A.vm = B.vm
    emit_slots(A, slots[2 * (NL + 1) * P:32 * P])
    stamp(A, "loopend")
    epi = slots[32 * P:]; fix_nomfma(epi)
    epi[P].mem.append(lambda A: A.vmem(f"buffer_load_dwordx2 {v(vNON,2)}, off, {s(sDBG,4)}, 0 offset:128 sc1", "nonce"))
    emit_slots(A, epi)
    stamp(A, "pvdone")

def wo_read(ksl, n, jj):
    gi = ksl * 3 + n // 2
    off = 2048 * (gi if gi < 18 else gi - 18) + 1024 * jj
    return lambda A: A.ds(f"ds_read_b64_tr_b16 {a((ksl*6+n)*4 + 2*jj, 2)}, {v(vWT + n % 2)} offset:{off}", ("W", ksl))

def epilogue(A, nq):
    R = f"q{nq}"
    A.e("s_nop 7")
    for qt in range(nq): A.e(f"v_accvgpr_read_b32 {v(vT+qt)}, {a(aL+4*qt)}")
    A.e(f"s_mov_b32 {s(sT0)}, {f32hex(2.0**40)}")
    A.e(f"v_mov_b32 {v(vT+4)}, 0")
    for qt in range(nq):
        A.e(f"v_cmp_ngt_f32 vcc, {s(sT0)}, {v(vT+qt)}")
        A.e(f"v_rcp_f32 {v(vT+qt)}, {v(vT+qt)}")
        A.e("s_nop 0")
        A.e(f"v_addc_co_u32 {v(vT+4)}, vcc, 0, {v(vT+4)}, vcc")
    for qt in range(nq):
        A.e(f"s_add_u32 {s(sT1)}, {s(sOST)}, {qt*131072}")
        for u in range(4):
            tb = vS + 8 * ((qt * 4 + u) % 8); pb = vP + 4 * ((qt * 4 + u) % 8)
            for j in range(8): A.e(f"v_accvgpr_read_b32 {v(tb+j)}, {a(aO + 32*qt + 8*u + j)}")
            for j in range(8): A.e(f"v_mul_f32 {v(tb+j)}, {v(tb+j)}, {v(vT+qt)}")
            for j in range(4): A.e(f"v_cvt_pk_bf16_f32 {v(pb+j)}, {v(tb+2*j)}, {v(tb+2*j+1)}")
            A.vmem(f"buffer_store_dwordx4 {v(pb,4)}, {v(vOO)}, {s(sWS,4)}, {s(sT1)} offen offset:{1024*u} sc1", "st")
    if nq == 3: A.wait_vm("wo1")
    A.e("s_barrier")
    stamp(A, "barX")
    A.e(f"v_lshlrev_b32 {v(vT+5)}, 2, v0")
    A.e(f"v_add_u32 {v(vT+5)}, {OVF}, {v(vT+5)}")
    A.ds(f"ds_write_b32 {v(vT+5)}, {v(vT+4)}", "flag")
    for ksl in range(6):
        for n in range(6):
            for jj in range(2): wo_read(ksl, n, jj)(A)
    A.e(f"v_add_u32 {v(vT+5)}, {OVF}, {v(vOO)}")
    A.e("s_waitcnt vmcnt(0) lgkmcnt(0)")
    A.e("s_barrier")
    stamp(A, "barY")
    A.e(f"ds_read_b128 {v(vT,4)}, {v(vT+5)}")
    A.e("s_waitcnt lgkmcnt(0)")
    A.e(f"v_or_b32 {v(vT)}, {v(vT)}, {v(vT+1)}")
    A.e(f"v_or3_b32 {v(vT)}, {v(vT)}, {v(vT+2)}, {v(vT+3)}")
    A.e(f"v_cmp_ne_u32 vcc, 0, {v(vT)}")
    A.e(f"s_cmp_lg_u32 {s(sSECOND)}, 0")
    A.e("s_cbranch_scc1 L_phase2")
    A.e("s_nop 2")
    A.e(f"s_cbranch_vccnz L_fallback_{R}")
    if nq == 4: A.e("s_branch L_phase2")

def fallback(A, nq):
    R = f"q{nq}"
    A.label(f"L_fallback_{R}")
    A.e(f"s_mov_b32 {s(sSECOND)}, 1")
    attn_init(A)
    for qt in range(nq): A.e(f"v_mov_b32 {v(vC+4*qt)}, 0xff800000")
    A.e(f"s_mov_b32 {s(sT2)}, {s(sW4K)}")
    A.e(f"s_mov_b32 {s(sCNT)}, 16")
    A.label(f"L_fb_loop_{R}")
    A.e("s_barrier")
    emit_ops(A, kv_quarter("K", f"s_add_u32 m0, {s(sW4K)}, {KPOS(0)}", f"s_mov_b32 {s(sT3)}, {s(sT2)}", "fb"))
    A.e("s_waitcnt vmcnt(0)")
    A.e("s_barrier")
    for T in range(2):
        for f in range(8): k_read(T, f)(A)
        A.e("s_waitcnt lgkmcnt(0)")
        for m in qk_list(T, nq, czero=True): A.e(m)
        A.e("s_nop 7")
        for qt in range(nq):
            b = vS + 32 * T + 8 * qt; c = vC + 4 * qt
            for e in range(0, 8, 2): A.e(f"v_max3_f32 {v(c)}, {v(c)}, {v(b+e)}, {v(b+e+1)}")
    A.e(f"s_add_u32 {s(sT2)}, {s(sT2)}, {SLOT}")
    A.e(f"s_sub_u32 {s(sCNT)}, {s(sCNT)}, 1")
    A.e(f"s_cmp_lg_u32 {s(sCNT)}, 0")
    A.e(f"s_cbranch_scc1 L_fb_loop_{R}")
    crosslane_max(A, [vC + 4 * qt for qt in range(nq)], vT)
    for qt in range(nq):
        c = vC + 4 * qt
        for e in (3, 2, 1, 0): A.e(f"v_sub_f32 {v(c+e)}, 0, {v(c)}")
    A.e("s_barrier")
    for kind, n in (("K", 0), ("K", 1), ("V", 0), ("K", 2), ("V", 1), ("K", 3), ("V", 2), ("K", 4), ("V", 3)):
        emit_ops(A, kv_own(kind, n))
    zero_acc(A, nq); zero_l(A, nq)
    A.e("s_waitcnt vmcnt(0)")
    A.e("s_barrier")
    for f in range(8): k_read(0, f)(A)
    A.e("s_waitcnt lgkmcnt(0)")
    for m in qk_list(0, nq): A.e(m)
    A.e("s_nop 7")
    A.e(f"s_branch L_attn_{R}")

def spin(A, name, load, cmp_):
    A.label(f"L_{name}_spin")
    A.e(f"s_mov_b32 {s(sCNT)}, {CFG['spin']}")
    A.label(f"L_{name}_again")
    A.e(load)
    A.e("s_waitcnt vmcnt(0)")
    A.e(cmp_)
    A.e(f"s_sub_u32 {s(sCNT)}, {s(sCNT)}, 1")
    A.e("s_nop 2")
    A.e(f"s_cbranch_vccz L_{name}_ok")
    A.e("s_sleep 1")
    A.e(f"s_cmp_lg_u32 {s(sCNT)}, 0")
    A.e(f"s_cbranch_scc1 L_{name}_again")
    A.e(f"s_branch L_{name}_ok")

def phase2(A):
    vF = vT
    vAC = 64
    vPA = 208
    aOF = 192
    ld_non = f"buffer_load_dwordx2 {v(vNON,2)}, off, {s(sDBG,4)}, 0 offset:128 sc1"
    cmp_non = f"v_cmp_eq_u64 vcc, 0, {v(vNON,2)}"
    ld_fo = f"buffer_load_dwordx2 {v(vF,2)}, {v(vFO)}, {s(sWS,4)}, 0 offen sc1"
    ld_fa = f"buffer_load_dwordx2 {v(vF,2)}, {v(vFA)}, {s(sWS,4)}, 0 offen sc1"
    ld_fb = f"buffer_load_dwordx2 {v(vF,2)}, {v(vFA+1)}, {s(sWS,4)}, 0 offen sc1"
    cmp_f = f"v_cmp_ne_u64 vcc, {v(vF,2)}, {v(vNON,2)}"
    def check(A, name, cmp_):
        A.e(cmp_); A.e("s_nop 4"); A.e(f"s_cbranch_vccnz L_{name}_spin"); A.label(f"L_{name}_ok")
    A.label("L_phase2")
    check(A, "non", cmp_non)
    A.e(f"s_lshl_b32 {s(sT0)}, {s(sB)}, 5")
    A.e(f"s_add_u32 {s(sT0)}, {s(sT0)}, {s(sH)}")
    A.e(f"s_lshl_b32 {s(sT0)}, {s(sT0)}, 7")
    A.e(f"s_add_u32 {s(sT0)}, {s(sT0)}, {WS_FLAG}")
    A.vmem(f"buffer_store_dwordx2 {v(vNON,2)}, {v(vFP)}, {s(sWS,4)}, {s(sT0)} offen sc1", "pub")
    A.e(f"s_cmp_ge_u32 {s(sIDX)}, 30")
    A.e("s_cbranch_scc1 L_fin")
    A.e(f"s_mul_i32 {s(sT2)}, {s(sW)}, {8*36864}")
    for gi in range(18, 24):
        emit_ops(A, wo_group(f"s_add_u32 m0, {s(sWOW)}, {2048*(gi-18)}", f"s_add_u32 {s(sT3)}, {s(sT2)}, {(gi//3)*36864 + 64*(gi%3)}", "wo2"))
    A.vmem(ld_fo, "fo")
    A.e(f"v_and_b32 {v(vFA+1)}, 0xffffff00, {v(vFA)}")
    A.e(f"v_add_u32 {v(vFA+1)}, 256, {v(vFA+1)}")
    A.e("s_waitcnt vmcnt(0)")
    for ksl in (6, 7):
        for n in range(6):
            for jj in range(2): wo_read(ksl, n, jj)(A)
    check(A, "fo", cmp_f)
    stamp(A, "oready")
    D = 4
    slots = [Slot() for _ in range(32 * 18)]
    def loads(st):
        q, ksl = st // 8, st % 8
        ops = []
        if ksl % 4 == 0: ops.append(("sal", f"s_add_u32 {s(sT1)}, {s(sPO+q)}, {1024*ksl}"))
        for i in range(3):
            vo = vOO if i == 0 else vO2 + i - 1
            ops.append(("mem", lambda A, i=i, vo=vo: A.vmem(
                f"buffer_load_dwordx4 {a(aOF + 12*(st%5) + 4*i, 4)}, {v(vo)}, {s(sWS,4)}, {s(sT1)} offen offset:{1024*(ksl%4)} sc1", ("o", st))))
        return ops
    for st in range(D): emit_ops(A, loads(st))
    A.wait_vm(("o", 0))
    for st in range(32):
        q, ksl = st // 8, st % 8
        for i in range(3):
            for n in range(6):
                d = v(vAC + 72 * (q % 2) + 4 * (6 * i + n), 4)
                slots[18 * st + 6 * i + n].m = mfma(d, a((ksl * 6 + n) * 4, 4), a(aOF + 12 * (st % 5) + 4 * i, 4), d if ksl else "0")
        if st: slots[18 * st - 1].sal.append(lambda A, st=st: A.wait_vm(("o", st)))
        if st + D < 32: place_ops(slots, [18 * st + 1 + 4 * k for k in range(3)], loads(st + D))
    slots[40].sal += ["s_waitcnt lgkmcnt(0)", "s_barrier"]
    def red_write(q, t):
        i, n = t // 6, t % 6
        return lambda A: A.ds(f"ds_write_b128 {v(vRW)}, {v(vAC + 72*(q%2) + 4*t, 4)} offset:{16*i*RSTR + 64*n}", ("rw", q))
    def treg(q, r, src):
        k = 4 * r + src
        return vAC + 72 * (q % 2) + 4 * k if k < 18 else 248 + 4 * (k - 18)
    def red_read(q, r, src):
        return lambda A: A.ds(f"ds_read_b128 {v(treg(q, r, src), 4)}, {v(vRR+r)} offset:{RREG*src}", ("rr", q, r))
    def red_adds(q, r):
        t = [treg(q, r, k) for k in range(4)]
        return [f"v_add_f32 {v(t[0]+e)}, {v(t[0]+e)}, {v(t[1]+e)}" for e in range(4)] + \
               [f"v_add_f32 {v(t[2]+e)}, {v(t[2]+e)}, {v(t[3]+e)}" for e in range(4)] + \
               [f"v_add_f32 {v(t[0]+e)}, {v(t[0]+e)}, {v(t[2]+e)}" for e in range(4)]
    for q in range(3):
        base = 144 * (q + 1)
        if CFG["stamps"]: slots[base].sal.append(lambda A, q=q: stamp(A, f"p{q+1}"))
        for t in range(18): slots[base - 8 + t].mem.append(red_write(q, t))
        slots[base + 16].sal += ["s_waitcnt lgkmcnt(0)", "s_barrier"]
        for k in range(20): slots[base + 17 + k // 2].mem.append(red_read(q, k // 4, k % 4))
        slots[base + 2].sal += [f"s_add_u32 {s(sT0)}, {s(sHG)}, {q+1}"]
        slots[base + 3].sal += [f"s_and_b32 {s(sT0)}, {s(sT0)}, 3"]
        slots[base + 4].sal += [f"s_sub_u32 {s(sT0)}, {s(sT0)}, {s(sHG)}"]
        slots[base + 6].sal += [f"s_mul_i32 {s(sPS)}, {s(sT0)}, {2*12*5120}"]
        slots[base + 7].sal += [f"s_add_u32 {s(sPS)}, {s(sPS)}, {s(sPL)}"]
        slots[base + 8].sal += [f"s_add_u32 {s(sPS)}, {s(sPS)}, {q*4*5120}"]
        slots[base + 10].sal += [f"s_lshl_b32 {s(sT0)}, {s(sT0)}, 1"]
        slots[base + 11].sal += [f"s_add_u32 {s(sT0)}, {s(sT0)}, s2"]
        slots[base + 12].sal += [f"s_lshl_b32 {s(sT0)}, {s(sT0)}, 9"]
        slots[base + 14].sal += [f"s_add_u32 {s(sT0)}, {s(sT0)}, {WS_PFLAG + 128*q}"]
        slots[base + 15].sal += [f"s_add_u32 {s(sT2)}, {s(sPS)}, 4096"]
        p = base + 28
        for r in range(5):
            slots[p].sal.append(lambda A, q=q, r=r: A.wait_lds(("rr", q, r)))
            for k, l in enumerate(red_adds(q, r)): slots[p + k // 2].valu.append(l)
            p += 6
            so = s(sPS) if r < 4 else s(sT2)
            slots[p].mem.append(lambda A, q=q, r=r, so=so: A.vmem(
                f"buffer_store_dwordx4 {v(treg(q, r, 0), 4)}, {v(vOO)}, {s(sWS,4)}, {so} offen offset:{1024*(r%4)} sc1", ("ps", q)))
        slots[base + 98].sal += [lambda A, q=q: A.wait_vm(("ps", q)), "s_barrier"]
        slots[base + 98].mem.append(lambda A: A.vmem(f"buffer_store_dwordx2 {v(vNON,2)}, {v(vFP)}, {s(sWS,4)}, {s(sT0)} offen sc1", "pub"))
    def pload(slot, r, reg):
        so = 4 * 5120 * slot + (4096 if r == 4 else 0)
        ops = [("sal", f"s_add_u32 {s(sT3)}, {s(sPL)}, {so}")] if r % 4 == 0 else []
        return ops + [("mem", lambda A: A.vmem(f"buffer_load_dwordx4 {v(reg, 4)}, {v(vOO)}, {s(sWS,4)}, {s(sT3)} offen offset:{1024*(r%4)} sc1", ("pl", slot)))]
    base = 432
    slots[base + 62].mem.append(lambda A: A.vmem(ld_fa, "fa"))
    slots[base + 102].valu += [lambda A: A.wait_vm("fa"), lambda A: check(A, "fa", cmp_f)]
    place_ops(slots, [base + 104 + 2 * k for k in range(10)], sum((pload(sl, r, vPA + 20 * sl + 4 * r) for sl in range(2) for r in range(5)), []))
    slots[base + 126].mem.append(lambda A: A.vmem(ld_fb, "fb"))
    for t in range(8): slots[576 - 8 + t].mem.append(red_write(3, t))
    emit_slots(A, slots)
    stamp(A, "mmdone")
    for t in range(8, 18): red_write(3, t)(A)
    A.wait_vm("fb")
    check(A, "fb", cmp_f)
    stamp(A, "pready")
    emit_ops(A, sum((pload(2, r, vAC + 4 * r) for r in range(5)), []))
    A.e("s_waitcnt lgkmcnt(0)")
    A.e("s_barrier")
    for k in range(20): red_read(3, k // 4, k % 4)(A)
    A.wait_vm(("pl", 1))
    for r in range(5):
        for e in range(4): A.e(f"v_add_f32 {v(vPA+4*r+e)}, {v(vPA+4*r+e)}, {v(vPA+20+4*r+e)}")
    for r in range(5):
        A.wait_lds(("rr", 3, r))
        for l in red_adds(3, r): A.e(l)
        t = treg(3, r, 0)
        for e in range(4): A.e(f"v_add_f32 {v(t+e)}, {v(t+e)}, {v(vPA+4*r+e)}")
    A.e("s_waitcnt vmcnt(0)")
    for r in range(5):
        t = treg(3, r, 0)
        for e in range(4): A.e(f"v_add_f32 {v(t+e)}, {v(t+e)}, {v(vAC+4*r+e)}")
        A.e(f"v_cvt_pk_bf16_f32 {v(t)}, {v(t)}, {v(t+1)}")
        A.e(f"v_cvt_pk_bf16_f32 {v(t+1)}, {v(t+2)}, {v(t+3)}")
        A.e(f"buffer_store_dwordx2 {v(t,2)}, {v(vOUT+r)}, {s(sOUT,4)}, 0 offen")
    A.label("L_fin")
    if CFG["stamps"]:
        A.e("s_waitcnt vmcnt(0)")
        stamp(A, "end")
        A.e(f"s_lshl_b32 {s(sT0)}, s2, 2")
        A.e(f"s_add_u32 {s(sT0)}, {s(sT0)}, {s(sW)}")
        A.e(f"s_lshl_b32 {s(sT0)}, {s(sT0)}, 8")
        A.e(f"s_cmp_eq_u32 {s(sT0)}, 0")
        A.e(f"s_cselect_b32 {s(sT1)}, 0, 256")
        A.e(f"s_add_u32 {s(sT0)}, {s(sT0)}, {WS_STAMP}")
        A.e(f"v_lshlrev_b32 v2, 2, {v(vLANE)}")
        A.e(f"buffer_store_dword v63, v2, {s(sWS,4)}, {s(sT0)} offen")
        A.e(f"s_add_u32 {s(sT0)}, {s(sT0)}, 0x40000")
        A.e(f"buffer_store_dword v62, v2, {s(sWS,4)}, {s(sT0)} offen")
        A.e("v_readlane_b32 s64, v63, 0")
        A.e(f"s_mov_b32 {s(sDBG+2)}, 64")
        A.e("s_nop 0")
        A.e("v_subrev_u32 v61, s64, v63")
        A.e(f"buffer_store_dword v61, v2, {s(sDBG,4)}, {s(sT1)} offen")
    A.label("L_end")
    A.e("s_endpgm")
    spin(A, "non", ld_non, cmp_non)
    spin(A, "fo", ld_fo, cmp_f)
    spin(A, "fa", ld_fa, cmp_f)
    spin(A, "fb", ld_fb, cmp_f)

def kernel():
    A = Asm()
    A.raw(f".globl {KNAME}\n.p2align 8\n.type {KNAME},@function\n{KNAME}:")
    setup(A)
    A.e(f"s_cmp_eq_u32 {s(sW)}, 3")
    A.e("s_cbranch_scc1 L_role_q3")
    out = A.text(); fb = ""
    for nq in (4, 3):
        A = Asm()
        A.label(f"L_role_q{nq}")
        rest = qproj(A, nq)
        stamp(A, "qdone")
        def mid(A):
            qconvert(A, nq)
            first_tile(A, nq)
        weave(A, mid, rest)
        attention(A, nq)
        epilogue(A, nq)
        out += A.text()
        F = Asm(); fallback(F, nq); fb += F.text()
    A = Asm(); phase2(A)
    return out + A.text() + fb

hdr = open("standalone__mha_block_cached__near_ridge.s.ref").read().split("; Override launch")[0]
txt = hdr + "; @launch grid=(256,1,1) block=(256,1,1) lds=163840\n" \
          + '.amdgcn_target "amdgcn-amd-amdhsa--gfx950"\n.text\n' + kernel() \
          + '.section .rodata,"a"\n' + descriptor(KNAME)
open(sys.argv[1], "w").write(txt)
```

```python
import sys, struct, math
from asmlib import *

CFG = dict(nt_kv=" nt", nt_x="", stamps=False, qkorder="A", itst=False, rot="rot8", mulh=1, mulb=2, rmask=7,
           kvq="0,0,0,8,8,8,12,12", kv8=16, npoll=6, vth=37, midpoll=9, kvpos="end", vmw=36, spin=400000, fast=False, warm=True, D=11, wotouch="loop", nt_wt="", nt_ol=" sc1", selft=False, x_nops=False, x_nored=False, x_nold=False, nt_st=" sc1")
for arg in sys.argv[2:]:
    k, val = arg.split("=")
    CFG[k] = {"True": True, "False": False}.get(val, int(val) if val.lstrip("-").isdigit() else val)
    if k.startswith("nt_"): CFG[k] = (" " + val.replace("+", " ")) if val not in ("", "none") else ""
KNAME = "standalone__mha_block_cached__near_ridge_kernel"

def f32hex(x): return "0x%08x" % struct.unpack("<I", struct.pack("<f", x))[0]
SCALE = math.log2(math.e) / math.sqrt(128.0)

SLOT = 16384
VRING = 5 * SLOT
def KPOS(n): return SLOT * ((n + 3) % 5)
def VPOS(n): return VRING + SLOT * ((n + 4) % 5)
WS0 = 0
XS0 = VRING
def XS(kc): return XS0 + 32768 * ((kc + 1) % 2)
def WS(kc): return WS0 + SLOT * (kc % 3)
WOW = 36864
OVF = 9 * SLOT
RSTR = 384; RHALF = 48 * RSTR
WS_O = 0
OM = 32768
WS_FLAG = 16 << 20
WS_PFLAG = WS_FLAG + 65536
WS_CENS = WS_FLAG + (1 << 20)
WS_PART = 20 << 20
WS_STAMP = 40 << 20
WS_SIZE = 48 << 20
sX, sWQ, sK, sV, sK1, sWS, sWO, sOUT, sDBG = 4, 8, 12, 16, 20, 24, 28, 32, 36
sW, sB, sH = 40, 41, 42
sT0, sT1, sT2, sT3 = 43, 44, 45, 46
sWQO = 47
sKOFF, sDK, sM4, sP, sQ = 48, 49, 50, 51, 52
sCNT, sW4K, sSECOND = 53, 54, 55
sSC = 56
sXB, sXE, sWB = 58, 59, 60
sOST = 61
sOLD = 62
sHG, sIDX = 63, 68
sCH = 70
sPO = 96
sPS = 3
sWOW = 69
sXE2 = 100
sLIM, sINC, sNEED, sVM = 58, 59, 60, 47
sPL = 79
vLANE = 1
vKA = 2; vVA = 6; vVD = 14; vOO = 16; vONE = 20
vT = 24
vWA = 32; vXA = 40
vWD2 = 42
vWT = 44
vFW = 17
vRW = 19
vRR = 46
vOUT = 51
vNON = 56
vFO = 58
vFP = 59
vFA = 60
vGRP = 30
vXD = 192; vWD = 202
vS = 64; vP = 128; vC = 160; vQ = 192; vACC = 64
aO = 0; aK = 128; aV = 160; aL = 192
aQA = 128; aQB = 192

class Slot:
    def __init__(self, m=None):
        self.m = m; self.sal = []; self.mem = []; self.valu = []
def emit_slots(A, slots):
    for sl in slots:
        if sl.m: A.e(sl.m)
        for f in sl.sal + sl.mem + sl.valu:
            if isinstance(f, str): A.e(f)
            else: f(A)

STAMPS = ["start", "bm1", "b3", "qdone", "loop", "loopend", "pvdone", "barX", "barY", "oready", "p1", "p2", "p3", "mmdone", "pready", "end"]
def stamp(A, name):
    if not CFG["stamps"] or name not in STAMPS: return
    i = STAMPS.index(name)
    A.e("s_memrealtime s[64:65]")
    A.e("s_memtime s[66:67]")
    A.e("s_waitcnt lgkmcnt(0)")
    A.e(f"v_writelane_b32 v63, s64, {i}")
    A.e(f"v_writelane_b32 v63, s66, {32+i}")

def dma(A, voff, srd, soff, imm, tag, flag):
    A.vmem(f"buffer_load_dwordx4 {v(voff)}, {s(srd,4)}, {soff} offen offset:{imm}{flag} lds", tag)
def lines(fn):
    B = Asm(); fn(B); return [l.strip() for l in B.lines]

def emit_ops(A, ops):
    prev = None
    for kind, o in ops:
        if kind == "mem" and prev == "m0": A.e("s_nop 0")
        if isinstance(o, str): A.e(o)
        else: o(A)
        prev = "m0" if isinstance(o, str) and " m0," in o else kind
def place_ops(slots, positions, ops):
    pend = []; k = 0
    for kind, o in ops:
        if kind == "sal": pend.append(o)
        else:
            p = positions[k]; k += 1
            if pend:
                if k > 1 and positions[k-2] == p: slots[p].mem += pend + ["s_nop 0"]
                elif slots[p-1].mem: slots[p-1].valu += pend
                else: slots[p-1].sal += pend
                pend = []
            slots[p].mem.append(o)
def nmem(ops): return sum(1 for k, _ in ops if k == "mem")
def split_ops(ops, counts):
    out = []; cur = []; k = 0; n = 0
    for o in ops:
        while k < len(counts) and n == counts[k]:
            out.append(cur); cur = []; n = 0; k += 1
        cur.append(o)
        if o[0] == "mem": n += 1
    out.append(cur)
    while len(out) < len(counts) + 1: out.append([])
    return out
def weave(A, fn, ops):
    B = Asm(); B.lds = A.lds; B.vm = A.vm
    fn(B)
    groups = []; cur = []
    for o in ops:
        cur.append(o)
        if o[0] == "mem": groups.append(cur); cur = []
    pos = [(k + 1) * len(B.lines) // (len(groups) + 1) for k in range(len(groups))]
    k = 0
    for i, l in enumerate(B.lines):
        while k < len(groups) and pos[k] == i:
            emit_ops(A, groups[k]); k += 1
        A.lines.append(l)

def kv_quarter(kind, m0, soffset, tag):
    srd = sK if kind == "K" else sV
    return [("sal", soffset), ("sal", m0)] + \
           [("mem", lambda A, i=i: dma(A, vVD + (i & 1), srd, s(sT3), 1024 * i, tag, CFG["nt_kv"])) for i in range(4)]
def kv_full(kind, n):
    ops = []
    for w in range(4):
        base = (KPOS(n) if kind == "K" else VPOS(n)) + 4096 * w
        ops += kv_quarter(kind, f"s_mov_b32 m0, {base}", f"s_mov_b32 {s(sT3)}, {n*SLOT + 4096*w}", (kind, n))
    return ops
def kv_own(kind, n):
    base = KPOS(n) if kind == "K" else VPOS(n)
    return kv_quarter(kind, f"s_add_u32 m0, {s(sW4K)}, {base}", f"s_add_u32 {s(sT3)}, {s(sW4K)}, {n*SLOT}", (kind, n))
REGION = ["p"]
def enc(n): return (n & 15) | ((n >> 4) << 22)
def dq_block(A):
    A.e(f"s_mov_b32 m0, {s(sP)}")
    A.e("s_nop 0")
    for i in range(4): dma(A, vVD + (i & 1), sK1, s(sQ), 1024 * i, "dq", CFG["nt_kv"])
    A.e(f"s_add_u32 m0, {s(sP)}, {VRING}")
    A.e("s_nop 0")
    for i in range(4): dma(A, vVD + (i & 1), sV, s(sQ), 1024 * i, "dq", CFG["nt_kv"])
def dq_pieces(name):
    def br(A):
        lab = f"L_dq_{REGION[0]}_{name}"
        A.e(f"s_cbranch_scc0 {lab}")
        dq_block(A)
        A.label(lab)
    return [[f"s_getreg_b32 {s(sVM)}, hwreg(HW_REG_IB_STS, 0, 24)", f"s_and_b32 {s(sVM)}, {s(sVM)}, 0xc0000f"],
            [f"s_cmp_le_u32 {s(sVM)}, {enc(CFG['vth'])}", f"s_cselect_b32 {s(sVM)}, {s(sLIM)}, 0"],
            [f"s_cmp_lt_u32 {s(sQ)}, {s(sVM)}", f"s_cselect_b32 {s(sINC)}, 4096, 0", br],
            [f"s_add_u32 {s(sQ)}, {s(sQ)}, {s(sINC)}", f"s_add_u32 {s(sP)}, {s(sP)}, {s(sINC)}"],
            [f"s_cmp_eq_u32 {s(sP)}, {5*SLOT}", f"s_cselect_b32 {s(sP)}, 0, {s(sP)}"]]
def dq_landed():
    return [[f"s_getreg_b32 {s(sVM)}, hwreg(HW_REG_IB_STS, 0, 24)", f"s_lshr_b32 {s(sINC)}, {s(sVM)}, 22"],
            [f"s_and_b32 {s(sVM)}, {s(sVM)}, 15", f"s_lshl4_add_u32 {s(sVM)}, {s(sINC)}, {s(sVM)}"],
            [f"s_lshl_b32 {s(sVM)}, {s(sVM)}, 9", f"s_add_u32 {s(sVM)}, {s(sVM)}, {s(sNEED)}"],
            [f"s_cmp_le_u32 {s(sVM)}, {s(sQ)}"]]
def emit_list(A, L):
    for grp in L:
        for x in grp:
            if isinstance(x, str): A.e(x)
            else: x(A)
def dq_slow(A, reg):
    REGION[0] = reg
    A.label(f"L_dqwait_{reg}")
    emit_list(A, dq_pieces("slow"))
    emit_list(A, dq_landed())
    A.e(f"s_cbranch_scc0 L_dqwait_{reg}")
    A.e(f"s_branch L_dqok_{reg}")

def x_own(kc):
    ops = []
    for j in range(8):
        if j % 4 == 0: ops.append(("sal", f"s_add_u32 m0, {s(sXB)}, {XS(kc) + 1024*j}"))
        ops.append(("mem", lambda A, j=j: dma(A, vXD + j, sX, s(sCH + kc), 1024 * (j % 4), ("x", kc), CFG["nt_x"])))
    return ops
def x_extra(kc):
    ops = [("sal", f"s_add_u32 m0, {s(sXE)}, {XS(kc)}")]
    for j in range(2):
        ops.append(("mem", lambda A, j=j: dma(A, vXD + 8 + j, sX, s(sCH + kc), 1024 * j, ("xe", kc), CFG["nt_x"])))
    return ops
def wq_ops(kc):
    ops = [("sal", f"s_lshl_b32 {s(sWQO)}, {s(sCH + kc)}, 12")]
    for j in range(6):
        if j % 3 == 0: ops.append(("sal", f"s_add_u32 m0, {s(sWB)}, {WS(kc) + 1024*j}"))
        ops.append(("mem", lambda A, j=j: dma(A, vWD + j, sWQ, s(sWQO), 1024 * (j % 3), ("wq", kc), CFG["nt_x"])))
    return ops
def wo_group(m0, soffset, tag):
    return [("sal", soffset), ("sal", m0)] + \
           [("mem", lambda A, i=i: dma(A, vWD2 + i, sWO, s(sT3), 1024 * i, tag, "")) for i in range(2)]

def srd(A, r, lo, hi, off, size):
    if off is None:
        A.e(f"s_mov_b32 {s(r)}, {lo}"); A.e(f"s_mov_b32 {s(r+1)}, {hi}")
    else:
        A.e(f"s_add_u32 {s(r)}, {lo}, {off}"); A.e(f"s_addc_u32 {s(r+1)}, {hi}, 0")
    A.e(size if " " in str(size) else f"s_mov_b32 {s(r+2)}, {size}")
    A.e(f"s_mov_b32 {s(r+3)}, 0x20000")

def setup(A):
    A.e("s_cmp_ge_u32 s2, 256")
    A.e("s_cbranch_scc1 L_end")
    stamp(A, "start")
    A.e("s_load_dwordx8 s[80:87], s[0:1], 0")
    A.e("s_load_dwordx8 s[88:95], s[0:1], 32")
    A.e(f"v_and_b32 {v(vLANE)}, 63, v0")
    A.e(f"v_lshrrev_b32 {v(vT)}, 6, v0")
    A.e(f"s_lshr_b32 {s(sIDX)}, s2, 3")
    A.e(f"v_readfirstlane_b32 {s(sW)}, {v(vT)}")
    A.e(f"s_and_b32 {s(sB)}, s2, 1")
    A.e(f"s_lshl_b32 {s(sB)}, {s(sB)}, 2")
    A.e(f"s_and_b32 {s(sT2)}, {s(sIDX)}, 3")
    A.e(f"s_add_u32 {s(sB)}, {s(sB)}, {s(sT2)}")
    A.e(f"s_bfe_u32 {s(sHG)}, s2, 0x20001")
    A.e(f"s_lshl_b32 {s(sH)}, {s(sHG)}, 3")
    A.e(f"s_lshr_b32 {s(sT2)}, {s(sIDX)}, 2")
    A.e(f"s_add_u32 {s(sH)}, {s(sH)}, {s(sT2)}")
    A.e(f"s_lshl_b32 {s(sW4K)}, {s(sW)}, 12")
    if CFG["rot"] == "lock":
        for t in range(9): A.e(f"s_movk_i32 {s(sCH+t)}, {128*t}")
    else:
        A.e(f"s_mul_i32 {s(sT0)}, {s(sH)}, {CFG['mulh']}")
        A.e(f"s_mul_i32 {s(sT1)}, {s(sB)}, {CFG['mulb']}")
        A.e(f"s_add_u32 {s(sT0)}, {s(sT0)}, {s(sT1)}")
        A.e(f"s_and_b32 {s(sT0)}, {s(sT0)}, {CFG['rmask']}")
        A.e(f"s_lshl_b32 {s(sT0)}, {s(sT0)}, 7")
        pos = {"rot8": 0, "rot8l": 8}[CFG["rot"]]
        k = 0
        for t in range(9):
            if t == pos: A.e(f"s_movk_i32 {s(sCH+t)}, 1024"); continue
            A.e(f"s_add_u32 {s(sCH+t)}, {s(sT0)}, {128*k}")
            A.e(f"s_and_b32 {s(sCH+t)}, {s(sCH+t)}, 1023")
            k += 1
    L = v(vLANE); t0, t1, t2, t3, t4 = [v(vT + i) for i in range(5)]
    A.e(f"v_lshrrev_b32 {t0}, 4, {L}")
    A.e(f"v_and_b32 {t1}, 15, {L}")
    A.e(f"v_lshrrev_b32 {t2}, 3, {L}")
    A.e(f"v_mul_u32_u24 {t2}, 1152, {t2}")
    A.e(f"v_and_b32 {t3}, 7, {L}")
    A.e(f"v_xor_b32 {t3}, {t3}, {t0}")
    A.e(f"v_xor_b32 {t4}, 4, {t3}")
    A.e(f"v_lshl_add_u32 {t3}, {t3}, 4, {t2}")
    A.e(f"v_lshl_add_u32 {t4}, {t4}, 4, {t2}")
    A.e(f"s_mul_i32 {s(sT0)}, {s(sW)}, {8*9216}")
    for j in range(8):
        A.e(f"s_add_u32 {s(sT1)}, {s(sT0)}, {j*9216 - 1024*(j%4)}")
        A.e(f"v_add_u32 {v(vXD+j)}, {s(sT1)}, {t3 if j%2==0 else t4}")
    A.e(f"s_mul_i32 {s(sT0)}, {s(sW)}, {2*9216}")
    for j in range(2):
        A.e(f"s_add_u32 {s(sT1)}, {s(sT0)}, {(24+j)*9216 - 1024*j}")
        A.e(f"v_add_u32 {v(vXD+8+j)}, {s(sT1)}, {t3 if j%2==0 else t4}")
    A.e(f"s_lshl_b32 {s(sXB)}, {s(sW)}, 13")
    A.e(f"s_lshl_b32 {s(sXE)}, {s(sW)}, 11")
    A.e(f"s_add_u32 {s(sXE)}, {s(sXE)}, {24*1024}")
    A.e(f"s_mul_i32 {s(sWB)}, {s(sW)}, {5*1024}")
    A.e(f"v_lshlrev_b32 {t2}, 1, {t0}")
    A.e(f"v_xor_b32 {t2}, {t2}, {t1}")
    A.e(f"v_lshlrev_b32 {t3}, 4, {t2}")
    A.e(f"v_lshl_add_u32 {t3}, {t0}, 13, {t3}")
    A.e(f"s_mul_i32 {s(sT0)}, {s(sW)}, 5")
    for j in range(6):
        A.e(f"s_add_u32 {s(sT1)}, {s(sT0)}, {j}")
        A.e(f"s_lshl_b32 {s(sT2)}, {s(sT1)}, 6")
        A.e(f"s_and_b32 {s(sT2)}, {s(sT2)}, 128")
        A.e(f"s_lshl_b32 {s(sT1)}, {s(sT1)}, 15")
        if j % 3: A.e(f"s_sub_u32 {s(sT1)}, {s(sT1)}, {1024*(j%3)}")
        A.e(f"v_xor_b32 {v(vWD+j)}, {s(sT2)}, {t3}")
        A.e(f"v_add_u32 {v(vWD+j)}, {s(sT1)}, {v(vWD+j)}")
    for i in range(2):
        A.e(f"v_xor_b32 {t3}, {8*i}, {t2}")
        A.e(f"v_lshlrev_b32 {t3}, 4, {t3}")
        A.e(f"v_lshl_add_u32 {v(vVD+i)}, {t0}, 8, {t3}")
    A.e("s_waitcnt lgkmcnt(0)")
    A.e(f"s_mul_i32 {s(sT0)}, {s(sB)}, 276480")
    srd(A, sX, "s80", "s81", s(sT0), 276480)
    A.e(f"s_lshl_b32 {s(sT0)}, {s(sH)}, 8")
    srd(A, sWQ, "s86", "s87", s(sT0), f"s_sub_u32 {s(sWQ+2)}, {576*8192}, {s(sT0)}")

def setup_kv(A):
    A.e(f"s_lshl_b32 {s(sT0)}, {s(sB)}, 5")
    A.e(f"s_add_u32 {s(sT0)}, {s(sT0)}, {s(sH)}")
    A.e(f"s_lshl_b32 {s(sT0)}, {s(sT0)}, 18")
    srd(A, sK, "s82", "s83", s(sT0), 262144)
    srd(A, sV, "s84", "s85", s(sT0), 262144)
    srd(A, sK1, s(sK), s(sK+1), SLOT, 262144 - SLOT)
    srd(A, sDBG, "s92", "s93", None, 256)
    A.e(f"s_getreg_b32 {s(sXE2)}, hwreg(HW_REG_XCC_ID, 0, 4)")
    A.e(f"s_lshl_b32 {s(sXE2)}, {s(sXE2)}, 28")
    A.e(f"s_and_b32 {s(sXE2+1)}, s2, 7")
    A.e(f"s_lshl_b32 {s(sXE2+1)}, {s(sXE2+1)}, 8")
    A.e(f"s_add_u32 {s(sXE2+1)}, {s(sXE2+1)}, {WS_CENS}")

def setup_q(A):
    L = v(vLANE); t0, t1, t2, t3, t4, tw, tv = [v(vT + i) for i in range(7)]
    A.e(f"v_lshrrev_b32 {t0}, 4, {L}")
    A.e(f"v_and_b32 {t1}, 15, {L}")
    A.e(f"v_lshrrev_b32 {t2}, 1, {t1}")
    A.e(f"v_xor_b32 {t2}, {t2}, {t0}")
    A.e(f"s_add_u32 {s(sT0)}, {s(sXB)}, {XS0}")
    for s2 in range(2):
        A.e(f"v_xor_b32 {t3}, {4*s2}, {t2}")
        A.e(f"v_lshlrev_b32 {t3}, 4, {t3}")
        A.e(f"v_lshl_add_u32 {t3}, {t1}, 7, {t3}")
        A.e(f"v_add_u32 {v(vXA+s2)}, {s(sT0)}, {t3}")
    A.e(f"v_lshrrev_b32 {t2}, 2, {t1}")
    A.e(f"v_and_b32 {t3}, 1, {t0}")
    A.e(f"v_lshl_add_u32 {t3}, {t3}, 2, {t2}")
    A.e(f"v_and_b32 {t4}, 3, {L}")
    A.e(f"v_lshlrev_b32 {t4}, 3, {t4}")
    A.e(f"v_lshl_add_u32 {tw}, {t0}, 3, {t2}")
    A.e(f"v_lshl_add_u32 {tw}, {tw}, 8, {t4}")
    if WS0: A.e(f"v_add_u32 {tw}, {WS0}, {tw}")
    for t in range(8):
        A.e(f"v_xor_b32 {tv}, {t}, {t3}")
        A.e(f"v_lshl_add_u32 {v(vWA+t)}, {tv}, 5, {tw}")

def attn_init(A):
    L = v(vLANE); t0, t1, t2, t3, t4, tw, tv = [v(vT + i) for i in range(7)]
    A.e(f"v_lshrrev_b32 {t0}, 4, {L}")
    A.e(f"v_and_b32 {t1}, 15, {L}")
    A.e(f"v_and_b32 {t2}, 7, {t1}")
    A.e(f"v_lshlrev_b32 {t2}, 1, {t2}")
    A.e(f"v_xor_b32 {t2}, {t0}, {t2}")
    A.e(f"v_lshlrev_b32 {t4}, 8, {t1}")
    A.e(f"v_add_u32 {t4}, {KPOS(0)}, {t4}")
    for s_ in range(4):
        A.e(f"v_xor_b32 {t3}, {4*s_}, {t2}")
        A.e(f"v_lshl_add_u32 {v(vKA+s_)}, {t3}, 4, {t4}")
    A.e(f"v_lshrrev_b32 {t2}, 2, {t1}")
    A.e(f"v_and_b32 {t3}, 1, {t0}")
    A.e(f"v_lshl_add_u32 {t3}, {t3}, 2, {t2}")
    A.e(f"v_and_b32 {t4}, 3, {L}")
    A.e(f"v_cmp_eq_u32 vcc, 0, {t4}")
    A.e(f"v_lshlrev_b32 {t4}, 3, {t4}")
    A.e(f"v_lshl_add_u32 {tw}, {t0}, 2, {t2}")
    A.e(f"v_lshl_add_u32 {tw}, {tw}, 8, {t4}")
    A.e(f"v_add_u32 {tw}, {VPOS(-1)}, {tw}")
    for t in range(8):
        A.e(f"v_xor_b32 {tv}, {t}, {t3}")
        A.e(f"v_lshl_add_u32 {v(vVA+t)}, {tv}, 5, {tw}")
    A.e(f"v_mov_b32 {t3}, 0x3f803f80")
    for i in range(4): A.e(f"v_cndmask_b32 {v(vONE+i)}, 0, {t3}, vcc")
    A.e(f"s_mov_b32 {s(sKOFF)}, {KPOS(0)}")
    A.e(f"s_mov_b32 {s(sM4)}, {-4*SLOT}")
    A.e(f"s_mov_b32 {s(sP)}, {KPOS(3)}")
    A.e(f"s_mov_b32 {s(sQ)}, {2*SLOT}")

def zero_acc(A, nq):
    for r in range(32 * nq): A.e(f"v_accvgpr_write_b32 {a(aO+r)}, 0")
def zero_l(A, nq):
    for r in range(4 * nq): A.e(f"v_accvgpr_write_b32 {a(aL+r)}, 0")

def setup_p2(A):
    L = v(vLANE); t0, t1, t2, t3, t4, t5, t6 = [v(vT + i) for i in range(7)]
    T0, T1, T2 = s(sT0), s(sT1), s(sT2)
    srd(A, sWS, "s94", "s95", None, WS_SIZE)
    srd(A, sOUT, "s90", "s91", None, 1920 * 1152)
    A.e(f"s_mov_b32 {s(sSC)}, {f32hex(SCALE)}")
    A.e(f"s_mov_b32 {s(sSC+1)}, {f32hex(SCALE)}")
    A.e(f"s_mov_b32 {s(sSECOND)}, 0")
    A.e(f"v_lshlrev_b32 {v(vOO)}, 4, {L}")
    A.e(f"s_and_b32 {T2}, s2, 7")
    A.e(f"s_mul_i32 {s(sOLD)}, {T2}, {60*OM}")
    A.e(f"s_and_b32 {T0}, {s(sB)}, 3")
    A.e(f"s_mul_i32 {T0}, {T0}, 15")
    A.e(f"s_lshl_b32 {T1}, {s(sW)}, 2")
    A.e(f"s_add_u32 {T0}, {T0}, {T1}")
    A.e(f"s_lshl_b32 {T0}, {T0}, 15")
    A.e(f"s_and_b32 {T1}, {s(sH)}, 7")
    A.e(f"s_lshl_b32 {T1}, {T1}, 12")
    A.e(f"s_add_u32 {T0}, {T0}, {T1}")
    A.e(f"s_add_u32 {s(sOST)}, {T0}, {s(sOLD)}")
    A.e(f"s_min_u32 {T0}, {s(sIDX)}, 29")
    A.e(f"s_mul_i32 {T1}, {T0}, 43")
    A.e(f"s_lshr_b32 {T1}, {T1}, 8")
    A.e(f"s_mul_i32 {T2}, {T1}, 6")
    A.e(f"s_sub_u32 {T0}, {T0}, {T2}")
    A.e(f"s_mul_i32 {T0}, {T0}, 192")
    A.e(f"s_mul_i32 {T1}, {T1}, 12")
    A.e(f"s_lshl_b32 {T2}, {T1}, 15")
    A.e(f"s_add_u32 {s(sOLD)}, {s(sOLD)}, {T2}")
    A.e(f"s_and_b32 {T2}, s2, 1")
    A.e(f"s_mul_i32 {T2}, {T2}, 60")
    A.e(f"s_add_u32 {T1}, {T1}, {T2}")
    A.e(f"s_mul_i32 {T2}, {s(sHG)}, {1024*1152}")
    A.e(f"s_add_u32 {T2}, {T2}, {T0}")
    srd(A, sWO, "s88", "s89", T2, f"s_sub_u32 {s(sWO+2)}, {4096*1152}, {T2}")
    A.e(f"s_lshl_b32 {T2}, {s(sW)}, 13")
    A.e(f"s_add_u32 {s(sOLD)}, {s(sOLD)}, {T2}")
    for q in range(4):
        A.e(f"s_add_u32 {T2}, {s(sHG)}, {q+1}")
        A.e(f"s_and_b32 {T2}, {T2}, 3")
        A.e(f"s_mul_i32 {T2}, {T2}, {3*OM}")
        A.e(f"s_add_u32 {s(sPO+q)}, {T2}, {s(sOLD)}")
    A.e(f"v_and_b32 {t0}, 2, {L}")
    A.e(f"v_mul_u32_u24 {t0}, 5, {t0}")
    A.e(f"v_add_u32 {t0}, {T1}, {t0}")
    A.e(f"v_mul_u32_u24 {t0}, 137, {t0}")
    A.e(f"v_lshrrev_b32 {t0}, 11, {t0}")
    A.e(f"v_and_b32 {t1}, 1, {L}")
    A.e(f"v_lshl_add_u32 {t0}, {t0}, 5, {t1}")
    A.e(f"s_lshl_b32 {T2}, {s(sHG)}, 3")
    A.e(f"s_lshl_b32 {s(sPS)}, {s(sW)}, 1")
    A.e(f"s_add_u32 {T2}, {T2}, {s(sPS)}")
    A.e(f"v_add_u32 {t0}, {T2}, {t0}")
    A.e(f"v_lshlrev_b32 {t0}, 7, {t0}")
    A.e(f"v_add_u32 {v(vFO)}, {WS_FLAG}, {t0}")
    A.e(f"s_mul_i32 {T2}, {s(sHG)}, 3")
    A.e(f"s_add_u32 {T1}, {T1}, {T2}")
    A.e(f"s_lshl_b32 {T1}, {T1}, 4")
    A.e(f"s_mul_i32 {T2}, {s(sW)}, 12")
    A.e(f"s_add_u32 {T1}, {T1}, {T2}")
    A.e(f"s_mul_i32 {T1}, {T1}, 1152")
    A.e(f"s_add_u32 {T1}, {T1}, {T0}")
    A.e(f"s_mul_i32 {T2}, {T2}, {RSTR}")
    A.e(f"s_lshl_b32 {s(sPS)}, {s(sW)}, 2")
    for r in range(5):
        A.e(f"v_add_u32 {t0}, {64*r}, {L}")
        if r == 4: A.e(f"v_min_u32 {t0}, 287, {t0}")
        A.e(f"v_mul_u32_u24 {t1}, 171, {t0}")
        A.e(f"v_lshrrev_b32 {t1}, 12, {t1}")
        A.e(f"v_mul_u32_u24 {t2}, 24, {t1}")
        A.e(f"v_sub_u32 {t2}, {t0}, {t2}")
        A.e(f"v_add_u32 {t4}, {s(sPS)}, {t1}")
        A.e(f"v_and_b32 {t4}, 7, {t4}")
        A.e(f"v_xor_b32 {t4}, {t4}, {t2}")
        A.e(f"v_mul_u32_u24 {t3}, {RSTR}, {t1}")
        A.e(f"v_lshl_add_u32 {t3}, {t4}, 4, {t3}")
        A.e(f"v_add_u32 {v(vRR+r)}, {T2}, {t3}")
        A.e(f"v_mul_u32_u24 {t3}, 1152, {t1}")
        A.e(f"v_lshl_add_u32 {t3}, {t2}, 3, {t3}")
        A.e(f"v_add_u32 {v(vOUT+r)}, {T1}, {t3}")
    A.e(f"v_cmp_gt_u32 vcc, 32, {L}")
    A.e(f"v_mov_b32 {t0}, 0x7ffffff0")
    A.e(f"v_lshrrev_b32 {t1}, 4, {L}")
    A.e(f"v_cndmask_b32 {v(vOUT+4)}, {t0}, {v(vOUT+4)}, vcc")
    A.e(f"v_cmp_eq_u32 vcc, 0, v0")
    A.e(f"v_and_b32 {t2}, 15, {L}")
    A.e(f"s_mul_i32 {T2}, {s(sW)}, {WOW}")
    A.e(f"v_cndmask_b32 {v(vFP)}, {t0}, 0, vcc")
    A.e(f"v_mul_u32_u24 {t3}, {RSTR}, {t2}")
    A.e(f"v_and_b32 {t4}, 7, {t2}")
    A.e(f"v_xor_b32 {t4}, {t4}, {t1}")
    A.e(f"v_lshl_add_u32 {t3}, {t4}, 4, {t3}")
    A.e(f"v_add_u32 {v(vRW)}, {T2}, {t3}")
    A.e(f"v_xor_b32 {v(vRW-1)}, 64, {v(vRW)}")
    A.e(f"v_lshlrev_b32 {v(vFW)}, 26, {L}")
    A.e(f"s_mul_i32 {s(sWOW)}, {s(sW)}, {WOW}")
    A.e(f"v_lshrrev_b32 {t3}, 2, {L}")
    A.e(f"v_and_b32 {t4}, 3, {L}")
    A.e(f"v_lshlrev_b32 {t5}, 3, {t4}")
    A.e(f"v_lshl_add_u32 {t5}, {t3}, 6, {t5}")
    A.e(f"v_and_b32 {t6}, 1, {t1}")
    A.e(f"v_lshl_add_u32 {t5}, {t6}, 5, {t5}")
    A.e(f"v_add_u32 {v(vWT)}, {s(sWOW)}, {t5}")
    A.e(f"v_xor_b32 {v(vWT+1)}, 32, {v(vWT)}")
    A.e(f"v_lshlrev_b32 {t6}, 1, {t6}")
    A.e(f"v_xor_b32 {t4}, {t4}, {t6}")
    A.e(f"v_mul_u32_u24 {t3}, 1152, {t3}")
    A.e(f"v_lshl_add_u32 {v(vWD2)}, {t4}, 4, {t3}")
    A.e(f"v_add_u32 {v(vWD2+1)}, {16*1152 - 1024}, {v(vWD2)}")
    A.e(f"s_lshl_b32 {T2}, s2, 9")
    A.e(f"s_add_u32 {T2}, {T2}, {WS_PFLAG}")
    A.e(f"s_lshl_b32 {s(sPL)}, {s(sW)}, 5")
    A.e(f"s_add_u32 {T2}, {T2}, {s(sPL)}")
    A.e(f"v_and_b32 {t0}, 1, {L}")
    A.e(f"v_lshlrev_b32 {t0}, 7, {t0}")
    A.e(f"v_add_u32 {v(vFA)}, {T2}, {t0}")
    A.e(f"s_mul_i32 {T2}, s2, {12*5120}")
    A.e(f"s_mul_i32 {s(sPL)}, {s(sW)}, 5120")
    A.e(f"s_add_u32 {s(sPL)}, {s(sPL)}, {T2}")
    A.e(f"s_add_u32 {s(sPL)}, {s(sPL)}, {WS_PART}")

LD_NON = f"buffer_load_dwordx2 {v(vNON,2)}, off, {s(sDBG,4)}, 0 offset:128 sc1"
CMP_NON = f"v_cmp_eq_u64 vcc, 0, {v(vNON,2)}"
def census(A):
    if CFG["fast"]:
        A.wait_vm("non0")
        A.e(f"v_xor_b32 {v(vNON+1)}, {s(sXE2)}, {v(vNON+1)}")
        A.e(f"s_lshl_b32 {s(sT0)}, {s(sIDX)}, 3")
        A.e(f"s_add_u32 {s(sT0)}, {s(sT0)}, {s(sXE2+1)}")
        A.e(f"v_lshlrev_b32 v254, 26, {v(vLANE)}")
        A.vmem(f"buffer_store_dwordx2 {v(vNON,2)}, v254, {s(sWS,4)}, {s(sT0)} offen sc1", "cens")
    if CFG["wotouch"] == "pro": wotouch(A)
def wotouch(A):
    A.e(f"s_mul_i32 {s(sT0)}, {s(sHG)}, {1024*1152}")
    A.e(f"s_mul_i32 {s(sT1)}, {s(sIDX)}, 36864")
    A.e(f"s_add_u32 {s(sT0)}, {s(sT0)}, {s(sT1)}")
    A.e(f"v_lshlrev_b32 v254, 7, {v(vLANE)}")
    A.e(f"v_add_u32 v254, {s(sT0)}, v254")
    for k in range(5):
        A.vmem(f"global_load_dword v255, v254, s[88:89]{CFG['nt_wt']}", "wot")
        if k < 4: A.e(f"v_add_u32 v254, {8192 if k < 3 else 4096}, v254")

def write_nonce(A):
    A.e("s_memrealtime s[64:65]")
    A.e("s_cmp_eq_u32 s2, 0")
    A.e(f"s_cselect_b32 {s(sT0)}, 0, 256")
    A.e(f"v_lshlrev_b32 {v(vT+2)}, 8, {v(vLANE)}")
    A.e("s_waitcnt lgkmcnt(0)")
    A.e(f"v_mov_b32 {v(vT)}, s64")
    A.e(f"v_mov_b32 {v(vT+1)}, s65")
    A.vmem(f"buffer_store_dwordx2 {v(vT,2)}, {v(vT+2)}, {s(sDBG,4)}, {s(sT0)} offen offset:128 sc1", "nonce")
    if CFG["warm"]:
        A.e("s_getpc_b64 s[64:65]")
        A.label("L_pc")
        A.e(f"s_sub_u32 s64, s64, L_pc-{KNAME}")
        A.e("s_subb_u32 s65, s65, 0")
        A.e(f"s_and_b32 {s(sT0)}, {s(sIDX)}, 7")
        A.e(f"s_lshl_b32 {s(sT0)}, {s(sT0)}, 13")
        A.e(f"v_lshlrev_b32 {v(vT+3)}, 7, {v(vLANE)}")
        A.e(f"v_add_u32 {v(vT+3)}, {s(sT0)}, {v(vT+3)}")
        A.e(f"v_min_u32 {v(vT+3)}, L_code_end-{KNAME}-4, {v(vT+3)}")
        A.vmem(f"global_load_dword v255, {v(vT+3)}, s[64:65]", "warm")

def qproj(A, nq):
    main = nq == 4
    if main: emit_ops(A, wq_ops(0) + x_own(0) + x_extra(0))
    setup_kv(A)
    if not main: write_nonce(A)
    setup_q(A)
    if main: emit_ops(A, wq_ops(1) + x_own(1) + x_extra(1))
    kvq = [int(x) for x in str(CFG["kvq"]).split(",")]
    assert len(kvq) == 8 and sum(kvq) == 48
    kvp = split_ops(kv_full("K", 0) + kv_full("K", 1) + kv_full("V", 0), kvq[:-1])
    if not main: emit_ops(A, kvp[0])
    kvrest = [kv_full("V", 1)]
    NS = 16 * nq; BAR = 12 * nq; LEAD = NS - BAR
    slots = [Slot() for _ in range(LEAD + 9 * NS)]
    def G(kc, i): return LEAD + kc * NS + i
    for kc in range(9):
        bb = aQB + 32 * ((kc + 1) % 2)
        for i in range(NS):
            f, qt = i // nq, i % nq
            s2, t = f // 8, f % 8
            d = v(vACC + 32 * qt + 4 * t, 4)
            slots[G(kc, i)].m = mfma(d, a(aQA + 4 * f, 4), a(bb + 8 * qt + 4 * s2, 4), d if (kc or s2) else "0")
        def rdA(f, j, kc=kc):
            s2, t = f // 8, f % 8
            off = WS(kc) - WS0 + (32 * s2 + 4 * j) * 256
            return lambda A: A.ds(f"ds_read_b64_tr_b16 {a(aQA + 4*f + 2*j, 2)}, {v(vWA+t)} offset:{off}", ("A", kc, f, j))
        def rdB(qt, s2, kc=kc, bb=bb):
            off = XS(kc) - XS0 + 2048 * qt
            return lambda A: A.ds(f"ds_read_b128 {a(bb + 8*qt + 4*s2, 4)}, {v(vXA+s2)} offset:{off}", ("B", kc, qt, s2))
        head = [rdB(0, 0), rdA(0, 0), rdA(0, 1)] + [rdB(q, 0) for q in range(1, nq)] + [rdA(1, 0), rdA(1, 1), rdA(2, 0), rdA(2, 1)] \
             + [rdB(q, 1) for q in range(nq)] + [rdA(3, 0), rdA(3, 1)]
        p0 = G(kc, -LEAD)
        for k, r in enumerate(head): slots[p0 + k * LEAD // len(head)].mem.append(r)
        tail = [rdA(f, j) for f in range(4, 16) for j in range(2)]
        span = BAR - 2 * nq
        for k, r in enumerate(tail): slots[G(kc, k * span // len(tail))].mem.append(r)
        slots[G(kc, -1)].valu.append(lambda A, kc=kc: A.wait_lds(("B", kc, nq - 1, 0)))
        for f in range(1, 13):
            slots[G(kc, f * nq - 1)].sal.append(lambda A, tag=("A", kc, f, 1): A.wait_lds(tag))
        def bar(A, kc=kc):
            if main: A.wait_vm(("xe", kc))
            A.e("s_waitcnt lgkmcnt(0)")
            A.e("s_barrier")
            stamp(A, "bm1" if kc == 0 else f"b{kc-1}")
        slots[p0].sal.insert(0, bar)
        if main:
            early = []; late = []
            if 1 <= kc <= 7: early += x_extra(kc + 1)
            if kc <= 6: early += wq_ops(kc + 2)
            if kc <= 6: late += x_own(kc + 2)
            pe = [(G(0, 1) if kc == 0 else p0 + 1) + 2 * k for k in range(nmem(early))]
            pl = [G(kc, 3 * nq + 1 + 3 * k) for k in range(nmem(late))]
            place_ops(slots, pe, early); place_ops(slots, pl, late)
        else:
            ops = kvp[kc + 1] if kc <= 6 else kv_full("K", 2) if kc == 7 else kvrest[0]
            ne = nmem(ops)
            if kc <= 6: pe = [G(kc, BAR - 2 - ne + k) if CFG["kvpos"] == "end" else p0 + 1 + k for k in range(ne)]
            else: pe = [p0 + 1 + k * (NS - 4) // ne for k in range(ne)]
            place_ops(slots, pe, ops)
    def bar8(A):
        if not main: A.wait_vm(("K", 0))
        A.e("s_waitcnt lgkmcnt(0)")
        A.e("s_barrier")
    p8 = G(8, BAR)
    slots[p8].sal.insert(0, bar8)
    for f in range(8): slots[p8 + 1 + f].mem.append(k_read(0, f))
    if not main and CFG["fast"]: slots[G(7, 0)].mem.append(lambda A: A.vmem(LD_NON, "non0"))
    bg = lines(setup_p2) + lines(attn_init) + lines(lambda B: zero_acc(B, nq))
    p = G(0, 4); i = 0
    while i < len(bg):
        slots[p].valu.append(bg[i])
        if bg[i].startswith("s_add_u32") and i + 1 < len(bg) and bg[i+1].startswith("s_addc"):
            i += 1; slots[p].valu.append(bg[i])
        i += 1; p += 1
    assert p < G(8, 0), p
    for k, l in enumerate(lines(lambda B: zero_l(B, nq))): slots[G(8, 2 + k)].valu.append(l)
    emit_slots(A, slots)
    if not main:
        A.e(f"s_mov_b32 {s(sLIM)}, {4*SLOT}")
        A.e(f"s_mov_b32 {s(sNEED)}, {SLOT}")
    return [] if main else [("mem", lambda A, k=k: emit_list(A, dq_pieces(f"m{k}"))) for k in range(CFG["midpoll"])]

def qconvert(A, nq):
    A.e("s_nop 7")
    for qt in range(nq):
        for u in range(4):
            src = vACC + 32 * qt + 8 * u; dst = vQ + 16 * qt + 4 * u
            for j in range(4): A.e(f"v_pk_mul_f32 {v(src+2*j,2)}, {v(src+2*j,2)}, {s(sSC,2)}")
            for j in range(4): A.e(f"v_cvt_pk_bf16_f32 {v(dst+j)}, {v(src+2*j)}, {v(src+2*j+1)}")
        for sw in ("v_permlane32_swap_b32", "v_permlane16_swap_b32"):
            for u in range(4):
                dst = vQ + 16 * qt + 4 * u
                A.e(f"{sw} {v(dst)}, {v(dst+2)}")
                A.e(f"{sw} {v(dst+1)}, {v(dst+3)}")

def k_read(T, f):
    kt, s_ = f // 4, f % 4
    off = 8192 * (T % 2) + 4096 * kt
    return lambda A: A.ds(f"ds_read_b128 {a(aK+4*f,4)}, {v(vKA+s_)} offset:{off}", ("K", f))
def v_read(T, i):
    t, j = i // 2, i % 2
    off = 8192 * (T % 2) + 4096 * j
    return lambda A: A.ds(f"ds_read_b64_tr_b16 {a(aV+4*t+2*j,2)}, {v(vVA+t)} offset:{off}", ("V", i))
def qk_list(T, nq, czero=False):
    if CFG["qkorder"] == "A": order = [(kt, s_, qt) for kt in range(2) for s_ in range(4) for qt in range(nq)]
    else: order = [(kt, s_, qt) for qt in range(nq) for kt in range(2) for s_ in range(4)]
    out = []
    for kt, s_, qt in order:
        d = v(vS + 32 * (T % 2) + 8 * qt + 4 * kt, 4)
        c = d if s_ else ("0" if czero else v(vC + 4 * qt, 4))
        out.append(mfma(d, a(aK + 4 * (4 * kt + s_), 4), v(vQ + 16 * qt + 4 * s_, 4), c))
    return out
def crosslane_max(A, regs, tmp):
    for sw in ("v_permlane32_swap_b32", "v_permlane16_swap_b32"):
        for i, r in enumerate(regs): A.e(f"v_mov_b32 {v(tmp+i)}, {v(r)}")
        A.e("s_nop 1")
        for i, r in enumerate(regs): A.e(f"{sw} {v(tmp+i)}, {v(r)}")
        A.e("s_nop 1")
        for i, r in enumerate(regs): A.e(f"v_max_f32 {v(r)}, {v(r)}, {v(tmp+i)}")
def first_tile(A, nq):
    A.e("s_waitcnt lgkmcnt(0)")
    A.e("s_nop 0")
    for m in qk_list(0, nq, czero=True): A.e(m)
    A.e("s_nop 7")
    for qt in range(nq):
        b = vS + 8 * qt; c = vC + 4 * qt
        A.e(f"v_max3_f32 {v(c)}, {v(b)}, {v(b+1)}, {v(b+2)}")
        A.e(f"v_max3_f32 {v(c+1)}, {v(b+3)}, {v(b+4)}, {v(b+5)}")
        A.e(f"v_max3_f32 {v(c)}, {v(c)}, {v(b+6)}, {v(b+7)}")
        A.e(f"v_max_f32 {v(c)}, {v(c)}, {v(c+1)}")
    crosslane_max(A, [vC + 4 * qt for qt in range(nq)], vT)
    for qt in range(nq):
        b = vS + 8 * qt; c = vC + 4 * qt
        for e in range(8): A.e(f"v_sub_f32 {v(b+e)}, {v(b+e)}, {v(c)}")
        for e in (3, 2, 1, 0): A.e(f"v_sub_f32 {v(c+e)}, 0, {v(c)}")

NLOOP = {4: 15, 3: 13}
def attn_slots(nq):
    P = 17 * nq; NT = 34
    slots = [Slot() for _ in range(NT * P)]
    E = [2 * e - 4 for e in range(8 * nq)]
    Em = set(x % P for x in E)
    others = [j for j in range(P) if j not in Em]
    BARP = 8 * nq - 2
    aft = [j for j in others if j > BARP]
    kpos = aft[:8]
    seq = aft[12:] + [j + P for j in others if j < BARP]
    vpos = [x for x in seq if x % 2 == 1][:16] if nq == 4 else [seq[i // 2] for i in range(16)]
    assert vpos[-1] + 6 <= P + BARP, vpos
    peel = 2 * (NLOOP[nq] + 1) * P
    unit = 0
    for T in range(NT):
        g = T * P
        if T < 32:
            for i, m in enumerate(qk_list(T, nq)): slots[g + i].m = m
        if 0 < T <= 32: slots[g - 1].sal.append(lambda A: A.wait_lds(("K", 7)))
        Tp = T - 2
        if 0 <= Tp < 32:
            pb = vP + 16 * (Tp % 2); k = 8 * nq
            for t in range(8):
                for qt in range(nq):
                    d = a(aO + 32 * qt + 4 * t, 4)
                    slots[g + k].m = mfma(d, a(aV + 4 * t, 4), v(pb + 4 * qt, 4), d); k += 1
            for qt in range(nq):
                d = a(aL + 4 * qt, 4)
                slots[g + k].m = mfma(d, v(vONE, 4), v(pb + 4 * qt, 4), d); k += 1
            for i in range(16): slots[g - P + vpos[i]].mem.append(v_read(Tp, i))
            slots[g + BARP].sal.append(lambda A: A.wait_lds(("V", 15)))
        Ts = T - 1
        if 0 <= Ts < 32:
            sb = vS + 32 * (Ts % 2); pb = vP + 16 * (Ts % 2)
            for e in range(8 * nq):
                slots[g + E[e]].valu.append(f"v_exp_f32 {v(sb+e)}, {v(sb+e)}")
                if e % 2: slots[g + E[e] + 1].valu.append(f"v_cvt_pk_bf16_f32 {v(pb+e//2)}, {v(sb+e-1)}, {v(sb+e)}")
        if T < 32:
            for f in range(8): slots[g + kpos[f]].mem.append(k_read(T + 1, f))
        if T < 32 and T % 2 == 1:
            n = T // 2
            if nq == 3:
                if g < peel:
                    for k, grp in enumerate(dq_landed()): slots[g + BARP - 3 + k].sal += grp
                    def chk(A):
                        A.e(f"s_cbranch_scc0 L_dqwait_{REGION[0]}")
                        A.label(f"L_dqok_{REGION[0]}")
                    slots[g + BARP].sal.append(chk)
                    slots[g + BARP + 1].sal += [f"s_add_u32 {s(sNEED)}, {s(sNEED)}, {SLOT}", f"s_add_u32 {s(sLIM)}, {s(sLIM)}, {SLOT}"]
                    slots[g + BARP + 2].sal += [f"s_min_u32 {s(sLIM)}, {s(sLIM)}, {16*SLOT}"]
                else: slots[g + BARP].sal.append(lambda A, n=n: A.wait_vm(("u", 8 * (n - 3) - 1)))
            slots[g + BARP].sal.append("s_barrier")
            slots[g].sal += [f"s_cmp_eq_u32 {s(sKOFF)}, {4*SLOT}", f"s_cselect_b32 {s(sDK)}, {s(sM4)}, {SLOT}"]
            slots[g + 1].sal.append(f"s_add_u32 {s(sKOFF)}, {s(sKOFF)}, {s(sDK)}")
            cv = set((x + 1) % P for k, x in enumerate(E) if k % 2)
            free = [j for j in others if j not in cv]
            kfree = [j for j in free if 2 < j < kpos[0]][:4]
            for i in range(4): slots[g + kfree[i]].valu.append(f"v_add_u32 {v(vKA+i)}, {s(sDK)}, {v(vKA+i)}")
            vfree = [j for j in free if vpos[-1] - P < j < vpos[0] and j not in kfree]
            while len(vfree) < 8: vfree = sorted(vfree + vfree[:8 - len(vfree)])
            for i in range(8): slots[g + vfree[i]].valu.append(f"v_add_u32 {v(vVA+i)}, {s(sDK)}, {v(vVA+i)}")
            if nq == 3:
                NP = CFG["npoll"]
                for u in range(NP):
                    p = g + BARP + 3 + u * (2 * P - 8) // NP
                    while any((p + k) % (2 * P) in (P, P + 1, 2 * P - 3, 2 * P - 2, 2 * P - 1) for k in range(5)): p += 1
                    if p >= peel: break
                    assert p + 5 <= g + 2 * P + BARP - 3
                    for k, grp in enumerate(dq_pieces(f"{u}")): slots[p + k].sal += grp
    if nq == 3:
        freeat = {0: 12, 1: 13, 2: 14, 3: 15, 4: 11, 5: 12, 6: 13, 7: 14, 8: 15}
        byb = {13: [], 14: [], 15: []}
        for gidx in range(72):
            w, gi = gidx // 18, gidx % 18
            ks, j = 8 * w + gi // 3, gi % 3
            byb[max(13, freeat[gidx * 2048 // SLOT])] += wo_group(f"s_mov_b32 m0, {gidx*2048}", f"s_mov_b32 {s(sT3)}, {ks*36864 + 64*j}", "wo1")
        b14 = 29 * P + BARP; b15 = 31 * P + BARP
        cand = [p for p in range(peel + CFG.get("wostart", 2), b15 - 1)]
        o1 = byb[13] + byb[14]
        n1 = nmem(o1)
        pos = [cand[k * len(cand) // n1] for k in range(n1)]
        assert pos[n1 - nmem(byb[14])] > b14 + 1
        place_ops(slots, pos, o1)
        place_ops(slots, [b15 + 2 + k for k in range(nmem(byb[15]))], byb[15])
    return slots, P

def fix_nomfma(slots):
    for sl in slots:
        if sl.m is None and (sl.valu or sl.mem): sl.sal.insert(0, "s_nop 0")

def attention(A, nq):
    R = f"q{nq}"
    slots, P = attn_slots(nq)
    for i in range(8 * nq): slots[i].m = None
    A.label(f"L_attn_{R}")
    pro = slots[8 * nq:2 * P]; fix_nomfma(pro)
    for sl in slots[:8 * nq]:
        for f in sl.mem: f(A)
    REGION[0] = "p"
    emit_slots(A, pro)
    REGION[0] = "l"
    NL = NLOOP[nq]
    A.e(f"s_mov_b32 {s(sCNT)}, {NL}")
    stamp(A, "loop")
    B = Asm(); B.lds = list(A.lds); B.vm = list(A.vm); texts = []
    for n in range(1, NL + 1):
        B.lines = []; emit_slots(B, slots[2 * n * P:2 * (n + 1) * P]); texts.append(B.text())
    assert all(t == texts[0] for t in texts), "steady state mismatch"
    A.raw(".p2align 6")
    A.label(f"L_loop_{R}")
    body = slots[2 * P:4 * P]
    body[-3].sal.append(f"s_sub_u32 {s(sCNT)}, {s(sCNT)}, 1")
    body[-2].sal.append(f"s_cmp_lg_u32 {s(sCNT)}, 0")
    if nq == 3 and CFG["wotouch"] == "loop":
        def tb(A):
            A.e(f"s_cmp_eq_u32 {s(sCNT)}, {CFG.get('wtit', 2)}")
            A.e("s_cbranch_scc0 L_nowt")
            wotouch(A)
            A.label("L_nowt")
        body[2].sal.append(tb)
    if CFG["itst"] and nq == 4:
        body[P + 8*nq].sal += ["s_memrealtime s[64:65]"]
        body[P + 8*nq + 24].sal += ["s_waitcnt lgkmcnt(0)", f"v_cmp_eq_u32 vcc, {s(sCNT)}, {v(vLANE)}", "v_mov_b32 v61, s64", "s_nop 0", "v_cndmask_b32 v62, v62, v61, vcc"]
    emit_slots(A, body)
    A.e(f"s_cbranch_scc1 L_loop_{R}")
    A.lds = B.lds; A.vm = B.vm
    if nq == 3:
        A.label("L_dqrest")
        A.e(f"s_cmp_lt_u32 {s(sQ)}, {16*SLOT}")
        A.e("s_cbranch_scc0 L_dqdone")
        dq_block(A)
        A.e(f"s_add_u32 {s(sQ)}, {s(sQ)}, 4096")
        A.e(f"s_add_u32 {s(sP)}, {s(sP)}, 4096")
        A.e(f"s_cmp_eq_u32 {s(sP)}, {5*SLOT}")
        A.e(f"s_cselect_b32 {s(sP)}, 0, {s(sP)}")
        A.e("s_branch L_dqrest")
        A.label("L_dqdone")
        A.vm = [("u", 87)] + [("u", 95)] * 32
    if nq == 3 and CFG["wotouch"] == "t28": wotouch(A)
    emit_slots(A, slots[2 * (NL + 1) * P:32 * P])
    stamp(A, "loopend")
    epi = slots[32 * P:]; fix_nomfma(epi)
    epi[2].valu += [f"v_and_b32 {v(vT)}, 31, {v(vLANE)}", f"v_lshlrev_b32 {v(vT)}, 3, {v(vT)}"]
    epi[8*nq].mem.append(lambda A: A.vmem(LD_NON, "nonce"))
    if CFG["fast"]: epi[8*nq+1].mem.append(lambda A: A.vmem(f"buffer_load_dwordx2 {v(vGRP,2)}, {v(vT)}, {s(sWS,4)}, {s(sXE2+1)} offen sc1", "grp"))
    emit_slots(A, epi)
    stamp(A, "pvdone")

def wo_read(ksl, n, jj):
    gi = ksl * 3 + n // 2
    off = 2048 * (gi if gi < 18 else gi - 18) + 1024 * jj
    return lambda A: A.ds(f"ds_read_b64_tr_b16 {a((ksl*6+n)*4 + 2*jj, 2)}, {v(vWT + n % 2)} offset:{off}", ("W", ksl))

def epilogue(A, nq):
    R = f"q{nq}"
    A.e("s_nop 7")
    for qt in range(nq): A.e(f"v_accvgpr_read_b32 {v(vT+qt)}, {a(aL+4*qt)}")
    A.e(f"s_mov_b32 {s(sT0)}, {f32hex(2.0**40)}")
    A.e(f"v_mov_b32 {v(vT+4)}, 0")
    for qt in range(nq):
        A.e(f"v_cmp_ngt_f32 vcc, {s(sT0)}, {v(vT+qt)}")
        A.e(f"v_rcp_f32 {v(vT+qt)}, {v(vT+qt)}")
        A.e("s_nop 0")
        A.e(f"v_addc_co_u32 {v(vT+4)}, vcc, 0, {v(vT+4)}, vcc")
    def ostores(A, flag):
        for qt in range(nq):
            A.e(f"s_add_u32 {s(sT1)}, {s(sOST)}, {qt*OM}")
            for u in range(4):
                tb = vS + 8 * ((qt * 4 + u) % 8); pb = vP + 4 * ((qt * 4 + u) % 8)
                for j in range(8): A.e(f"v_accvgpr_read_b32 {v(tb+j)}, {a(aO + 32*qt + 8*u + j)}")
                for j in range(8): A.e(f"v_mul_f32 {v(tb+j)}, {v(tb+j)}, {v(vT+qt)}")
                for j in range(4): A.e(f"v_cvt_pk_bf16_f32 {v(pb+j)}, {v(tb+2*j)}, {v(tb+2*j+1)}")
                A.vmem(f"buffer_store_dwordx4 {v(pb,4)}, {v(vOO)}, {s(sWS,4)}, {s(sT1)} offen offset:{1024*u}{flag}", "st")
    slow = Asm()
    A.wait_vm("grp" if CFG["fast"] else "nonce")
    A.e(CMP_NON); A.e("s_nop 4"); A.e(f"s_cbranch_vccnz L_non{nq}_spin"); A.label(f"L_non{nq}_ok")
    spin(slow, f"non{nq}", LD_NON, CMP_NON)
    if CFG["fast"]:
        A.e(f"v_xor_b32 {v(vGRP+1)}, {s(sXE2)}, {v(vGRP+1)}")
        A.e(f"v_cmp_ne_u64 vcc, {v(vNON,2)}, {v(vGRP,2)}")
        A.e("s_nop 4")
        A.e(f"s_cbranch_vccnz L_ostore_far_{R}")
        ostores(A, "")
        A.label(f"L_ostore_done_{R}")
        slow.label(f"L_ostore_far_{R}")
        ostores(slow, " sc1")
        slow.e(f"s_branch L_ostore_done_{R}")
    else: ostores(A, " sc1")
    if nq == 3: A.wait_vm("wo1")
    A.e("s_barrier")
    stamp(A, "barX")
    A.e(f"v_lshlrev_b32 {v(vT+5)}, 2, v0")
    A.e(f"v_add_u32 {v(vT+5)}, {OVF}, {v(vT+5)}")
    A.ds(f"ds_write_b32 {v(vT+5)}, {v(vT+4)}", "flag")
    for ksl in range(6):
        for n in range(6):
            for jj in range(2): wo_read(ksl, n, jj)(A)
        if ksl == 3:
            A.wait_lds(("W", 1))
            A.e(f"s_mul_i32 {s(sT2)}, {s(sW)}, {8*36864}")
            for gi in range(18, 24):
                emit_ops(A, wo_group(f"s_add_u32 m0, {s(sWOW)}, {2048*(gi-18)}", f"s_add_u32 {s(sT3)}, {s(sT2)}, {(gi//3)*36864 + 64*(gi%3)}", "wo2"))
    A.e(f"v_add_u32 {v(vT+5)}, {OVF}, {v(vOO)}")
    A.wait_vm("st")
    A.e("s_waitcnt lgkmcnt(0)")
    A.e("s_barrier")
    stamp(A, "barY")
    A.e(f"ds_read_b128 {v(vT,4)}, {v(vT+5)}")
    A.e("s_waitcnt lgkmcnt(0)")
    A.e(f"v_or_b32 {v(vT)}, {v(vT)}, {v(vT+1)}")
    A.e(f"v_or3_b32 {v(vT)}, {v(vT)}, {v(vT+2)}, {v(vT+3)}")
    A.e(f"v_cmp_ne_u32 vcc, 0, {v(vT)}")
    A.e(f"s_cmp_lg_u32 {s(sSECOND)}, 0")
    A.e("s_cbranch_scc1 L_phase2")
    A.e("s_nop 2")
    A.e(f"s_cbranch_vccnz L_fallback_{R}")
    if nq == 4: A.e("s_branch L_phase2")
    return slow.text()

def fallback(A, nq):
    R = f"q{nq}"
    A.label(f"L_fallback_{R}")
    A.e(f"s_mov_b32 {s(sSECOND)}, 1")
    attn_init(A)
    for qt in range(nq): A.e(f"v_mov_b32 {v(vC+4*qt)}, 0xff800000")
    A.e(f"s_mov_b32 {s(sT2)}, {s(sW4K)}")
    A.e(f"s_mov_b32 {s(sCNT)}, 16")
    A.e("s_waitcnt vmcnt(0)")
    A.label(f"L_fb_loop_{R}")
    A.e("s_barrier")
    emit_ops(A, kv_quarter("K", f"s_add_u32 m0, {s(sW4K)}, {KPOS(0)}", f"s_mov_b32 {s(sT3)}, {s(sT2)}", "fb"))
    A.e("s_waitcnt vmcnt(0)")
    A.e("s_barrier")
    for T in range(2):
        for f in range(8): k_read(T, f)(A)
        A.e("s_waitcnt lgkmcnt(0)")
        for m in qk_list(T, nq, czero=True): A.e(m)
        A.e("s_nop 7")
        for qt in range(nq):
            b = vS + 32 * T + 8 * qt; c = vC + 4 * qt
            for e in range(0, 8, 2): A.e(f"v_max3_f32 {v(c)}, {v(c)}, {v(b+e)}, {v(b+e+1)}")
    A.e(f"s_add_u32 {s(sT2)}, {s(sT2)}, {SLOT}")
    A.e(f"s_sub_u32 {s(sCNT)}, {s(sCNT)}, 1")
    A.e(f"s_cmp_lg_u32 {s(sCNT)}, 0")
    A.e(f"s_cbranch_scc1 L_fb_loop_{R}")
    crosslane_max(A, [vC + 4 * qt for qt in range(nq)], vT)
    for qt in range(nq):
        c = vC + 4 * qt
        for e in (3, 2, 1, 0): A.e(f"v_sub_f32 {v(c+e)}, 0, {v(c)}")
    A.e("s_barrier")
    for kind, n in (("K", 0), ("K", 1), ("V", 0), ("K", 2), ("V", 1), ("K", 3), ("V", 2), ("K", 4), ("V", 3)):
        emit_ops(A, kv_own(kind, n))
    zero_acc(A, nq); zero_l(A, nq)
    A.e(f"s_mov_b32 {s(sP)}, {KPOS(5)}")
    A.e(f"s_mov_b32 {s(sQ)}, {4*SLOT}")
    A.e(f"s_mov_b32 {s(sLIM)}, {4*SLOT}")
    A.e(f"s_mov_b32 {s(sNEED)}, {SLOT}")
    A.e("s_waitcnt vmcnt(0)")
    A.e("s_barrier")
    for f in range(8): k_read(0, f)(A)
    A.e("s_waitcnt lgkmcnt(0)")
    for m in qk_list(0, nq): A.e(m)
    A.e("s_nop 7")
    A.e(f"s_branch L_attn_{R}")

def spin(A, name, load, cmp_):
    A.label(f"L_{name}_spin")
    A.e(f"s_mov_b32 {s(sCNT)}, {CFG['spin']}")
    A.label(f"L_{name}_again")
    A.e(load)
    A.e("s_waitcnt vmcnt(0)")
    A.e(cmp_)
    A.e(f"s_sub_u32 {s(sCNT)}, {s(sCNT)}, 1")
    A.e("s_nop 2")
    A.e(f"s_cbranch_vccz L_{name}_ok")
    A.e("s_sleep 1")
    A.e(f"s_cmp_lg_u32 {s(sCNT)}, 0")
    A.e(f"s_cbranch_scc1 L_{name}_again")
    A.e(f"s_branch L_{name}_ok")

def phase2(A):
    vF = vT
    vAC = 64
    vTR = 112
    vPA = 192
    vRR2 = 32
    sPS2 = sCH; sPF2 = sCH + 2
    aOF = 192
    ld_non = f"buffer_load_dwordx2 {v(vNON,2)}, off, {s(sDBG,4)}, 0 offset:128 sc1"
    cmp_non = f"v_cmp_eq_u64 vcc, 0, {v(vNON,2)}"
    ld_fo = f"buffer_load_dwordx2 {v(vF,2)}, {v(vFO)}, {s(sWS,4)}, 0 offen sc1"
    ld_fa = f"buffer_load_dwordx2 {v(vF,2)}, {v(vFA)}, {s(sWS,4)}, 0 offen sc1"
    ld_fb = f"buffer_load_dwordx2 {v(vF,2)}, {v(vFA+1)}, {s(sWS,4)}, 0 offen sc1"
    cmp_f = f"v_cmp_ne_u64 vcc, {v(vF,2)}, {v(vNON,2)}"
    def check(A, name, cmp_):
        A.e(cmp_); A.e("s_nop 4"); A.e(f"s_cbranch_vccnz L_{name}_spin"); A.label(f"L_{name}_ok")
    A.label("L_phase2")
    A.e(f"s_lshl_b32 {s(sT0)}, {s(sB)}, 5")
    A.e(f"s_add_u32 {s(sT0)}, {s(sT0)}, {s(sH)}")
    A.e(f"s_lshl_b32 {s(sT0)}, {s(sT0)}, 7")
    A.e(f"s_add_u32 {s(sT0)}, {s(sT0)}, {WS_FLAG}")
    A.vmem(f"buffer_store_dwordx2 {v(vNON,2)}, {v(vFP)}, {s(sWS,4)}, {s(sT0)} offen sc1", "pub")
    if CFG["selft"]:
        A.e(f"v_and_b32 {v(vT+2)}, 31, {v(vLANE)}")
        A.e(f"v_lshlrev_b32 {v(vT+2)}, 7, {v(vT+2)}")
        A.e(f"v_lshrrev_b32 {v(vT+3)}, 5, {v(vLANE)}")
        A.e(f"v_lshl_add_u32 {v(vT+2)}, {v(vT+3)}, 15, {v(vT+2)}")
        A.e(f"s_cmp_eq_u32 {s(sW)}, 3")
        A.e(f"s_cselect_b32 {s(sT1)}, 1, 2")
        A.e(f"s_lshl_b32 {s(sT1)}, {s(sT1)}, 15")
        A.e(f"s_add_u32 {s(sT1)}, {s(sT1)}, {s(sOST)}")
        A.vmem(f"buffer_load_dword {v(vT+4)}, {v(vT+2)}, {s(sWS,4)}, {s(sOST)} offen{CFG['nt_st']}", "selft")
        A.vmem(f"buffer_load_dword {v(vT+5)}, {v(vT+2)}, {s(sWS,4)}, {s(sT1)} offen{CFG['nt_st']}", "selft")
    A.e(f"s_cmp_ge_u32 {s(sIDX)}, 30")
    A.e("s_cbranch_scc1 L_fin")
    A.vmem(ld_fo, "fo")
    A.e(f"v_and_b32 {v(vFA+1)}, 0xffffff7f, {v(vFA)}")
    A.e(f"v_add_u32 {v(vFA+1)}, 256, {v(vFA+1)}")
    for r in range(5): A.e(f"v_add_u32 {v(vRR2+r)}, {2*WOW}, {v(vRR+r)}")
    A.e("s_waitcnt vmcnt(0)")
    check(A, "fo", cmp_f)
    stamp(A, "oready")
    D = CFG["D"]; NB = 16
    NST = 96
    slots = [Slot() for _ in range(NST * 6)]
    def load(st):
        q, i, ksl = st // 24, (st // 8) % 3, st % 8
        ops = []
        if ksl % 4 == 0: ops.append(("sal", f"s_add_u32 {s(sT1)}, {s(sPO+q)}, {OM*i + 1024*ksl}"))
        ops.append(("mem", lambda A: A.vmem(
            f"buffer_load_dwordx4 {a(aOF + 4*(st%NB), 4)}, {v(vOO)}, {s(sWS,4)}, {s(sT1)} offen offset:{1024*(ksl%4)}{CFG['nt_ol']}", ("o", st))))
        return ops
    for st in range(D): emit_ops(A, load(st))
    for ksl in (6, 7):
        for n in range(6):
            for jj in range(2): wo_read(ksl, n, jj)(A)
    A.wait_vm(("o", 0))
    def acc(blk, n): return vAC + 24 * (blk % 2) + 4 * n
    for st in range(NST):
        blk, ksl = st // 8, st % 8
        for n in range(6):
            d = v(acc(blk, n), 4)
            slots[6 * st + n].m = mfma(d, a((ksl * 6 + n) * 4, 4), a(aOF + 4 * (st % NB), 4), d if ksl else "0")
        if st: slots[6 * st - 1].sal.append(lambda A, st=st: A.wait_vm(("o", st)))
    LE = CFG.get("le", 15)
    nxt = D
    for st in range(NST):
        want = min(NST, st + 1 + (D if st < 62 else min(LE, D + (st - 62) // 2)))
        k = 0
        while nxt < want:
            place_ops(slots, [6 * st + 1 + 3 * k], load(nxt)); nxt += 1; k += 1
    slots[34].sal.append("s_waitcnt lgkmcnt(0)")
    def red_write(blk, n):
        return lambda A: A.ds(f"ds_write_b128 {v(vRW - n % 2)}, {v(acc(blk, n), 4)} offset:{RHALF*((blk//3)%2) + 16*(blk%3)*RSTR + 128*(n//2)}", ("rw", blk))
    def treg(r, src): return vTR + 16 * r + 4 * src
    def red_read(q, r, src):
        return lambda A: A.ds(f"ds_read_b128 {v(treg(r, src), 4)}, {v((vRR if src < 2 else vRR2)+r)} offset:{WOW*(src%2) + RHALF*(q%2)}", ("rr", q, r))
    def red_adds(r):
        t = [treg(r, k) for k in range(4)]
        return [f"v_add_f32 {v(t[0]+e)}, {v(t[0]+e)}, {v(t[1]+e)}" for e in range(4)] + \
               [f"v_add_f32 {v(t[2]+e)}, {v(t[2]+e)}, {v(t[3]+e)}" for e in range(4)] + \
               [f"v_add_f32 {v(t[0]+e)}, {v(t[0]+e)}, {v(t[2]+e)}" for e in range(4)]
    WSP = CFG.get("wsp", 4); R1 = 4 + 6 * WSP; R2 = CFG.get("r2", 130)
    for blk in range(11):
        first = 48 * (blk + 1) + (3 if (blk % 3 or blk == 0) else 14)
        for n in range(1 if CFG.get("x_now") else 6): slots[first + WSP * n].mem.append(red_write(blk, n))
        slots[48 * (blk + 2) - 2].sal.append(lambda A, blk=blk: A.wait_lds(("rw", blk)))
    for q in range(3):
        base = 144 * (q + 1)
        if CFG["stamps"]: slots[base].sal.append(lambda A, q=q: stamp(A, f"p{q+1}"))
        slots[base + R1].sal += ["s_waitcnt lgkmcnt(0)", "s_barrier"]
        for k in range(20):
            if not CFG.get("x_nor") or k % 4 == 0: slots[base + R1 + 1 + k].mem.append(red_read(q, k // 4, k % 4))
        sal = [f"s_add_u32 {s(sT0)}, {s(sHG)}, {q+1}", f"s_and_b32 {s(sT0)}, {s(sT0)}, 3", f"s_sub_u32 {s(sT0)}, {s(sT0)}, {s(sHG)}",
               f"s_mul_i32 {s(sPS)}, {s(sT0)}, {2*12*5120}", f"s_add_u32 {s(sPS)}, {s(sPS)}, {s(sPL)}", f"s_add_u32 {s(sPS2 + q % 2)}, {s(sPS)}, {q*4*5120}",
               f"s_lshl_b32 {s(sT0)}, {s(sT0)}, 1", f"s_add_u32 {s(sT0)}, {s(sT0)}, s2", f"s_lshl_b32 {s(sT0)}, {s(sT0)}, 9",
               f"s_add_u32 {s(sT0)}, {s(sT0)}, {WS_PFLAG + 128*q}", f"s_lshl_b32 {s(sT2)}, {s(sW)}, 5",
               f"s_add_u32 {s(sPF2 + q % 2)}, {s(sT0)}, {s(sT2)}"]
        for k, x in enumerate(sal): slots[base + 2 + 2 * k].sal.append(x)
        p = base + R1 + 12
        SSP = CFG.get("ssp", 0) if q < 2 else 0
        for r in range(5):
            slots[p].sal.append(lambda A, q=q, r=r: A.wait_lds(("rr", q, r)))
            for l in red_adds(r):
                while len(slots[p].valu) + len(slots[p].mem) >= 2: p += 1
                slots[p].valu.append(l)
            p += 1
            ps = max(p, base + 52 + SSP * r)
            if CFG["x_nops"] and r: continue
            slots[ps].mem.append(lambda A, q=q, r=r: A.vmem(
                f"buffer_store_dwordx4 {v(treg(r, 0), 4)}, {v(vFW if CFG['x_nops'] else vOO)}, {s(sWS,4)}, {s(sPS2 + q % 2)} offen offset:{1024*(r%4)}{CFG.get('nt_ps', ' sc1')}", ("ps", q)))
            if r == 3: slots[ps].valu.append(f"s_add_u32 {s(sPS2 + q % 2)}, {s(sPS2 + q % 2)}, 4096")
        pf = ps + CFG.get("ackd", 70) if q < 2 else base + R2
        slots[pf].sal += [lambda A, q=q: A.wait_vm(("ps", q))]
        slots[pf].mem.append(lambda A, q=q: A.vmem(f"buffer_store_dwordx2 {v(vNON,2)}, {v(vFW)}, {s(sWS,4)}, {s(sPF2 + q % 2)} offen sc1", "pub"))
    def pload(slot, r):
        so = 4 * 5120 * slot + (4096 if r == 4 else 0)
        ops = [("sal", f"s_add_u32 {s(sT3)}, {s(sPL)}, {so}")] if r % 4 == 0 else []
        return ops + [("mem", lambda A: A.vmem(f"buffer_load_dwordx4 {v(vPA + 20*slot + 4*r, 4)}, {v(vOO)}, {s(sWS,4)}, {s(sT3)} offen offset:{1024*(r%4)} sc1", ("pl", slot)))]
    base = 432
    FA = CFG.get("fa", 96)
    slots[base + FA].mem.append(lambda A: A.vmem(ld_fa, "fa"))
    slots[base + R2 + 1].valu += [lambda A: A.wait_vm("fa"), lambda A: check(A, "fa", cmp_f)]
    place_ops(slots, [base + R2 + 3 + k for k in range(10)], sum((pload(sl, r) for sl in range(2) for r in range(5)), []))
    if CFG.get("x_nobar"):
        for sl in slots: sl.sal = [x for x in sl.sal if x != "s_barrier"]
    emit_slots(A, slots)
    stamp(A, "mmdone")
    A.vmem(ld_fb, "fb")
    A.e("s_nop 1")
    for n in range(6): red_write(11, n)(A)
    A.wait_vm(("pl", 1))
    for r in range(5):
        for e in range(4): A.e(f"v_add_f32 {v(vPA+4*r+e)}, {v(vPA+4*r+e)}, {v(vPA+20+4*r+e)}")
    A.e("s_waitcnt lgkmcnt(0)")
    A.e("s_barrier")
    for k in range(20): red_read(3, k // 4, k % 4)(A)
    A.wait_vm("fb")
    check(A, "fb", cmp_f)
    stamp(A, "pready")
    emit_ops(A, sum((pload(2, r) for r in range(5)), []))
    for r in range(5):
        A.wait_lds(("rr", 3, r))
        for l in red_adds(r): A.e(l)
        t = treg(r, 0)
        for e in range(4): A.e(f"v_add_f32 {v(t+e)}, {v(t+e)}, {v(vPA+4*r+e)}")
    for r in range(5):
        t = treg(r, 0)
        A.e(f"s_waitcnt vmcnt(4)")
        for e in range(4): A.e(f"v_add_f32 {v(t+e)}, {v(t+e)}, {v(vPA+40+4*r+e)}")
        A.e(f"v_cvt_pk_bf16_f32 {v(t)}, {v(t)}, {v(t+1)}")
        A.e(f"v_cvt_pk_bf16_f32 {v(t+1)}, {v(t+2)}, {v(t+3)}")
        A.e(f"buffer_store_dwordx2 {v(t,2)}, {v(vOUT+r)}, {s(sOUT,4)}, 0 offen")
    A.label("L_fin")
    if CFG["stamps"]:
        A.e("s_waitcnt vmcnt(0)")
        stamp(A, "end")
        A.e(f"s_lshl_b32 {s(sT0)}, s2, 2")
        A.e(f"s_add_u32 {s(sT0)}, {s(sT0)}, {s(sW)}")
        A.e(f"s_lshl_b32 {s(sT0)}, {s(sT0)}, 8")
        A.e(f"s_cmp_eq_u32 {s(sT0)}, 0")
        A.e(f"s_cselect_b32 {s(sT1)}, 0, 256")
        A.e(f"s_add_u32 {s(sT0)}, {s(sT0)}, {WS_STAMP}")
        A.e(f"v_lshlrev_b32 v2, 2, {v(vLANE)}")
        A.e(f"buffer_store_dword v63, v2, {s(sWS,4)}, {s(sT0)} offen")
        A.e(f"s_add_u32 {s(sT0)}, {s(sT0)}, 0x40000")
        A.e(f"buffer_store_dword v62, v2, {s(sWS,4)}, {s(sT0)} offen")
        A.e("v_readlane_b32 s64, v63, 0")
        A.e(f"s_mov_b32 {s(sDBG+2)}, 64")
        A.e("s_nop 0")
        A.e("v_subrev_u32 v61, s64, v63")
        A.e(f"buffer_store_dword v61, v2, {s(sDBG,4)}, {s(sT1)} offen")
    A.label("L_end")
    A.e("s_endpgm")
    spin(A, "fo", ld_fo, cmp_f)
    spin(A, "fa", ld_fa, cmp_f)
    spin(A, "fb", ld_fb, cmp_f)

def kernel():
    A = Asm()
    A.raw(f".globl {KNAME}\n.p2align 8\n.type {KNAME},@function\n{KNAME}:")
    setup(A)
    A.e(f"s_cmp_eq_u32 {s(sW)}, 3")
    A.e("s_cbranch_scc1 L_role_q3")
    out = A.text(); fb = ""
    for nq in (4, 3):
        A = Asm()
        A.label(f"L_role_q{nq}")
        rest = qproj(A, nq)
        stamp(A, "qdone")
        def mid(A):
            qconvert(A, nq)
            first_tile(A, nq)
        REGION[0] = "p"
        weave(A, mid, rest)
        if nq == 3: census(A)
        attention(A, nq)
        fb += epilogue(A, nq)
        out += A.text()
        F = Asm(); fallback(F, nq)
        if nq == 3: dq_slow(F, "p"); dq_slow(F, "l")
        fb += F.text()
    A = Asm(); phase2(A)
    return out + A.text() + "L_code_end:\n" + fb

hdr = open("standalone__mha_block_cached__near_ridge.s.ref").read().split("; Override launch")[0]
txt = hdr + "; @launch grid=(256,1,1) block=(256,1,1) lds=163840\n" \
          + '.amdgcn_target "amdgcn-amd-amdhsa--gfx950"\n.text\n' + kernel() \
          + '.section .rodata,"a"\n' + descriptor(KNAME)
open(sys.argv[1], "w").write(txt)
```

```python
import sys, struct, math
from asmlib import *

CFG = dict(nt_kv=" nt", nt_x="", stamps=False, qkorder="A", itst=False, rot="rot8", touch="", mulh=1, mulb=2, rmask=7,
           kvq="0,0,0,4,8,12,12,12", kv7=8, pre=2, wo2early=True, woq="0,0,6,6,6,6,6,6", npoll=4, bl=8, pb=True, tag=False, prio=True, fline=True, fwarm=2, pubA=15, early=True, lim0=53248, limr=15360, lim1=16384, lim1n=0, vth=16, midpoll=5, kvpos="end", vmw=36, spin=400000, fast=False, warm="v", D=11, wotouch="dyn", nt_wt="", nt_ol=" sc1", selft=False, x_nops=False, x_nored=False, x_nold=False, nt_st=" sc1")
for arg in sys.argv[2:]:
    k, val = arg.split("=")
    CFG[k] = {"True": True, "False": False}.get(val, int(val) if val.lstrip("-").isdigit() else val)
    if k.startswith("nt_"): CFG[k] = (" " + val.replace("+", " ")) if val not in ("", "none") else ""
KNAME = "standalone__mha_block_cached__near_ridge_kernel"

def f32hex(x): return "0x%08x" % struct.unpack("<I", struct.pack("<f", x))[0]
SCALE = math.log2(math.e) / math.sqrt(128.0)

SLOT = 16384
VRING = 5 * SLOT
def KPOS(n): return SLOT * ((n + 3) % 5)
def VPOS(n): return VRING + SLOT * ((n + 4) % 5)
WS0 = 0
XS0 = VRING
def XS(kc): return XS0 + 32768 * ((kc + 1) % 2)
def WS(kc): return WS0 + SLOT * (kc % 3)
WOW = 36864
OVF = 9 * SLOT
RSTR = 384; RHALF = 48 * RSTR
WS_O = 0
OM = 32768
FSH = CFG.get("fsh", 8)
WS_FLAG = 16 << 20
WS_PFLAG = WS_FLAG + (512 << 10)
WS_CENS = WS_FLAG + (1 << 20)
WS_PART = 20 << 20
WS_STAMP = 40 << 20
WS_SIZE = 48 << 20
sX, sWQ, sK, sV, sK1, sWS, sWO, sOUT, sDBG = 4, 8, 12, 16, 20, 24, 28, 32, 36
sW, sB, sH = 40, 41, 42
sT0, sT1, sT2, sT3 = 43, 44, 45, 46
sWQO = 47
sKOFF, sDK, sM4, sP, sQ = 48, 49, 50, 51, 52
sCNT, sW4K, sSECOND = 53, 54, 55
sSC = 56
sXB, sXE, sWB = 58, 59, 60
sOST = 61
sOLD = 62
sHG, sIDX = 63, 68
sCH = 70
sPO = 96
sPS = 3
sWOW = 69
sXE2 = 100
sLIM, sINC, sNEED, sVM = 58, 59, 60, 47
sOS = 80
sFL = 84
sOV = 86
sPL = 79
vLANE = 1
vKA = 2; vVA = 6; vVD = 14; vOO = 16; vONE = 20
vT = 24
vWA = 32; vXA = 208
vWD2 = 42
vWT = 44
vFW = 17
vRW = 19
vRR = 46
vOUT = 51
vNON = 56
vFO = 58
vFP = 59
vFA = 60
vGRP = 30
vXD = 192; vWD = 202
vS = 64; vP = 128; vC = 160; vQ = 192; vACC = 64
aO = 0; aK = 128; aV = 160; aL = 192
aQA = 128; aQB = 192

class Slot:
    def __init__(self, m=None):
        self.m = m; self.sal = []; self.mem = []; self.valu = []
def emit_slots(A, slots):
    for sl in slots:
        if sl.m: A.e(sl.m)
        for f in sl.sal + sl.mem + sl.valu:
            if isinstance(f, str): A.e(f)
            else: f(A)

class Op:
    def __init__(self, x, units=1, deps=(), name=None):
        self.x = x; self.units = units; self.deps = list(deps); self.name = name
def merge(A, M, V, X):
    pos = {}; cur = [0]
    def ready(o): return all(n in pos and cur[0] - pos[n] - 1 >= d for n, d in o.deps)
    def put(o):
        n0 = len(A.lines)
        if isinstance(o.x, str): A.e(o.x)
        else: o.x(A)
        cur[0] += 1 if len(A.lines) > n0 else 0
        if o.name: pos[o.name] = cur[0] - 1
    M, V, X = list(M), list(V), list(X)
    while M or V or X:
        did = False; budget = 2
        if M and ready(M[0]): put(M.pop(0)); did = True
        while X and ready(X[0]) and budget > 0:
            o = X.pop(0); put(o); budget -= o.units; did = True
            if o.units: break
        while V and ready(V[0]) and budget > 0:
            o = V.pop(0); put(o); budget -= o.units; did = True
        if not did:
            heads = [q[0] for q in (M, V, X) if q]
            assert any(all(n in pos for n, _ in o.deps) for o in heads), [(o.x, o.deps) for o in heads]
            A.e("s_nop 0"); cur[0] += 1

STAMPS = CFG["stlist"].split(",") if CFG.get("stlist") else ["start", "bm1", "b3", "qdone", "loop", "loopend", "pvdone", "barX", "barY", "oready", "p1", "p2", "p3", "mmdone", "pready", "end"]
def stamp(A, name):
    if not CFG["stamps"] or name not in STAMPS: return
    i = STAMPS.index(name)
    A.e("s_memrealtime s[64:65]")
    A.e("s_memtime s[66:67]")
    A.e("s_waitcnt lgkmcnt(0)")
    A.e(f"v_writelane_b32 v63, s64, {i}")
    A.e(f"v_writelane_b32 v63, s66, {32+i}")

def dma(A, voff, srd, soff, imm, tag, flag):
    A.vmem(f"buffer_load_dwordx4 {v(voff)}, {s(srd,4)}, {soff} offen offset:{imm}{flag} lds", tag)
def lines(fn):
    B = Asm(); fn(B); return [l.strip() for l in B.lines]

def emit_ops(A, ops):
    prev = None
    for kind, o in ops:
        if kind == "mem" and prev == "m0": A.e("s_nop 0")
        if isinstance(o, str): A.e(o)
        else: o(A)
        prev = "m0" if isinstance(o, str) and " m0," in o else kind
def place_ops(slots, positions, ops):
    pend = []; k = 0
    for kind, o in ops:
        if kind == "sal": pend.append(o)
        else:
            p = positions[k]; k += 1
            if pend:
                if k > 1 and positions[k-2] == p: slots[p].mem += pend + ["s_nop 0"]
                elif k > 1 and positions[k-2] == p - 1: slots[p-1].valu += pend
                elif len(pend) == 2 and not (k > 1 and positions[k-2] == p - 2): slots[p-2].sal.append(pend[0]); slots[p-1].sal.append(pend[1])
                else: slots[p-1].sal += pend
                pend = []
            slots[p].mem.append(o)
def nmem(ops): return sum(1 for k, _ in ops if k == "mem")
def split_ops(ops, counts):
    out = []; cur = []; k = 0; n = 0
    for o in ops:
        while k < len(counts) and n == counts[k]:
            out.append(cur); cur = []; n = 0; k += 1
        cur.append(o)
        if o[0] == "mem": n += 1
    out.append(cur)
    while len(out) < len(counts) + 1: out.append([])
    return out
def weave(A, fn, ops):
    B = Asm(); B.lds = A.lds; B.vm = A.vm
    fn(B)
    groups = []; cur = []
    for o in ops:
        cur.append(o)
        if o[0] == "mem": groups.append(cur); cur = []
    pos = [(k + 1) * len(B.lines) // (len(groups) + 1) for k in range(len(groups))]
    k = 0
    for i, l in enumerate(B.lines):
        while k < len(groups) and pos[k] == i:
            emit_ops(A, groups[k]); k += 1
        A.lines.append(l)

def kv_quarter(kind, m0, soffset, tag):
    srd = sK if kind == "K" else sV
    return [("sal", soffset), ("sal", m0)] + \
           [("mem", lambda A, i=i: dma(A, vVD + (i & 1), srd, s(sT3), 1024 * i, tag, CFG["nt_kv"])) for i in range(4)]
def kv_full(kind, n):
    ops = []
    for w in range(4):
        base = (KPOS(n) if kind == "K" else VPOS(n)) + 4096 * w
        ops += kv_quarter(kind, f"s_mov_b32 m0, {base}", f"s_mov_b32 {s(sT3)}, {n*SLOT + 4096*w}", (kind, n))
    return ops
def kv_own(kind, n):
    base = KPOS(n) if kind == "K" else VPOS(n)
    return kv_quarter(kind, f"s_add_u32 m0, {s(sW4K)}, {base}", f"s_add_u32 {s(sT3)}, {s(sW4K)}, {n*SLOT}", (kind, n))
REGION = ["p"]
def enc(n): return (n & 15) | ((n >> 4) << 22)
sSS = sX; sSO = sINC
def dq_prep():
    inc = CFG["bl"] * 512
    return [[f"s_bitcmp1_b32 {s(sQ)}, {inc.bit_length() - 1}"], [f"s_cselect_b64 {s(sSS,2)}, {s(sV,2)}, {s(sK1,2)}"],
            [f"s_cselect_b32 {s(sSS+2)}, {s(sV+2)}, {s(sK1+2)}"], [f"s_cselect_b32 {s(sSO)}, {VRING - inc}, 0"],
            [f"s_add_u32 m0, {s(sP)}, {s(sSO)}"], [f"s_andn2_b32 {s(sSO)}, {s(sQ)}, {inc}"]]
def dq_block(A):
    inc = CFG["bl"] * 512
    for g in range(CFG["bl"] // 4):
        if g:
            A.e("s_add_u32 m0, m0, 4096")
            A.e(f"s_add_u32 {s(sSO)}, {s(sSO)}, 4096")
        for i in range(4): dma(A, vVD + (i & 1), sSS, s(sSO), 1024 * i, "dq", CFG["nt_kv"])
    A.e(f"s_add_u32 {s(sQ)}, {s(sQ)}, {inc}")
    A.e(f"s_add_u32 {s(sP)}, {s(sP)}, {inc}")
def dq_pieces(name):
    def br(A):
        lab = f"L_dq_{REGION[0]}_{name}"
        A.e(f"s_cbranch_scc0 {lab}")
        dq_block(A)
        A.label(lab)
    return dq_prep() + [[f"s_getreg_b32 {s(sVM)}, hwreg(HW_REG_IB_STS, 0, 24)"], [f"s_and_b32 {s(sVM)}, {s(sVM)}, 0xc0000f"],
            [f"s_cmp_le_u32 {s(sVM)}, {enc(CFG.get('vthm', CFG['vth']) if name[0] == 'm' else 37 if name == 'slow' else CFG['vth'])}"], [f"s_cselect_b32 {s(sVM)}, {s(sLIM)}, 0"],
            [f"s_cmp_lt_u32 {s(sQ)}, {s(sVM)}"], [br],
            [f"s_cmp_eq_u32 {s(sP)}, {5*SLOT}"], [f"s_cselect_b32 {s(sP)}, 0, {s(sP)}"]]
def dq_landed():
    return [[f"s_getreg_b32 {s(sVM)}, hwreg(HW_REG_IB_STS, 0, 24)"], [f"s_lshr_b32 {s(sINC)}, {s(sVM)}, 22"],
            [f"s_and_b32 {s(sVM)}, {s(sVM)}, 15"], [f"s_lshl4_add_u32 {s(sVM)}, {s(sINC)}, {s(sVM)}"],
            [f"s_lshl_b32 {s(sVM)}, {s(sVM)}, 9"], [f"s_add_u32 {s(sVM)}, {s(sVM)}, {s(sNEED)}"],
            [f"s_cmp_le_u32 {s(sVM)}, {s(sQ)}"]]
def emit_list(A, L):
    for grp in L:
        for x in grp:
            if isinstance(x, str): A.e(x)
            else: x(A)
def dq_slow(A, reg):
    REGION[0] = reg
    A.label(f"L_dqwait_{reg}")
    emit_list(A, dq_pieces("slow"))
    emit_list(A, dq_landed())
    A.e(f"s_cbranch_scc0 L_dqwait_{reg}")
    A.e(f"s_branch L_dqok_{reg}")

def x_own(kc):
    ops = []
    for j in range(8):
        if j % 4 == 0: ops.append(("sal", f"s_add_u32 m0, {s(sXB)}, {XS(kc) + 1024*j}"))
        ops.append(("mem", lambda A, j=j: dma(A, vXD + j, sX, s(sCH + kc), 1024 * (j % 4), ("x", kc), CFG["nt_x"])))
    return ops
def x_extra(kc):
    ops = [("sal", f"s_add_u32 m0, {s(sXE)}, {XS(kc)}")]
    for j in range(2):
        ops.append(("mem", lambda A, j=j: dma(A, vXD + 8 + j, sX, s(sCH + kc), 1024 * j, ("xe", kc), CFG["nt_x"])))
    return ops
def wq_ops(kc):
    ops = [("sal", f"s_lshl_b32 {s(sWQO)}, {s(sCH + kc)}, 12")]
    for j in range(6):
        if j % 3 == 0: ops.append(("sal", f"s_add_u32 m0, {s(sWB)}, {WS(kc) + 1024*j}"))
        ops.append(("mem", lambda A, j=j: dma(A, vWD + j, sWQ, s(sWQO), 1024 * (j % 3), ("wq", kc), CFG["nt_x"])))
    return ops
def wo_group(m0, soffset, tag):
    return [("sal", soffset), ("sal", m0)] + \
           [("mem", lambda A, i=i: dma(A, vWD2 + i, sWO, s(sT3), 1024 * i, tag, CFG.get("nt_wo", ""))) for i in range(2)]

def srd(A, r, lo, hi, off, size):
    if off is None:
        A.e(f"s_mov_b32 {s(r)}, {lo}"); A.e(f"s_mov_b32 {s(r+1)}, {hi}")
    else:
        A.e(f"s_add_u32 {s(r)}, {lo}, {off}"); A.e(f"s_addc_u32 {s(r+1)}, {hi}, 0")
    A.e(size if " " in str(size) else f"s_mov_b32 {s(r+2)}, {size}")
    A.e(f"s_mov_b32 {s(r+3)}, 0x20000")

def setup(A):
    A.e("s_cmp_ge_u32 s2, 256")
    A.e("s_cbranch_scc1 L_end")
    stamp(A, "start")
    A.e("s_load_dwordx8 s[80:87], s[0:1], 0")
    A.e("s_load_dwordx8 s[88:95], s[0:1], 32")
    if CFG["warm"] == "s":
        A.e("s_getpc_b64 s[98:99]")
        A.label("L_pc")
        for k in range(1, CFG.get("wn", 8) + 1): A.e(f"s_load_dword s97, s[98:99], {128*k}")
    A.e(f"s_lshr_b32 {s(sIDX)}, s2, 3")
    if CFG["warm"] == "v":
        A.e("s_getpc_b64 s[98:99]")
        A.e(f"s_lshl_b32 s96, {s(sIDX)}, 11")
        A.e("v_lshl_add_u32 v62, v0, 3, s96")
        A.e("global_load_dword v61, v62, s[98:99]")
    A.e(f"v_and_b32 {v(vLANE)}, 63, v0")
    A.e(f"v_lshrrev_b32 {v(vT+6)}, 6, v0")
    A.e("s_nop 0")
    A.e(f"v_readfirstlane_b32 {s(sW)}, {v(vT+6)}")
    if CFG["warm"] == "s":
        A.e(f"s_lshl2_add_u32 s96, {s(sIDX)}, {s(sW)}")
        A.e("s_lshl_b32 s96, s96, 7")
        A.e("s_add_u32 s98, s98, s96")
        A.e("s_addc_u32 s99, s99, 0")
        for k in range(4): A.e(f"s_load_dword s97, s[98:99], {16384*k}")
    A.e(f"s_and_b32 {s(sB)}, s2, 1")
    A.e(f"s_and_b32 {s(sT2)}, {s(sIDX)}, 3")
    A.e(f"s_lshl2_add_u32 {s(sB)}, {s(sB)}, {s(sT2)}")
    A.e(f"s_bfe_u32 {s(sHG)}, s2, 0x20001")
    A.e(f"s_lshr_b32 {s(sT2)}, {s(sIDX)}, 2")
    A.e(f"s_lshl3_add_u32 {s(sH)}, {s(sHG)}, {s(sT2)}")
    A.e(f"v_lshrrev_b32 {v(vT)}, 4, {v(vLANE)}")
    A.e(f"v_and_b32 {v(vT+1)}, 15, {v(vLANE)}")
    A.e(f"s_cmp_eq_u32 {s(sW)}, 3")
    A.e("s_cbranch_scc1 L_role_q3")

def chunk_order(A, steps):
    if CFG["rot"] == "lock":
        for t in steps: A.e(f"s_movk_i32 {s(sCH+t)}, {128*t}")
        return
    pos = {"rot8": 0, "rot8l": 8}[CFG["rot"]]
    if any(t != pos for t in steps):
        A.e(f"s_mul_i32 {s(sT0)}, {s(sH)}, {CFG['mulh']}")
        A.e(f"s_mul_i32 {s(sT1)}, {s(sB)}, {CFG['mulb']}")
        A.e(f"s_add_u32 {s(sT0)}, {s(sT0)}, {s(sT1)}")
        A.e(f"s_and_b32 {s(sT0)}, {s(sT0)}, {CFG['rmask']}")
        A.e(f"s_lshl_b32 {s(sT0)}, {s(sT0)}, 7")
    for t in steps:
        if t == pos: A.e(f"s_movk_i32 {s(sCH+t)}, {0 if CFG.get('common0') else 1024}"); continue
        A.e(f"s_add_u32 {s(sCH+t)}, {s(sT0)}, {128*(t - (1 if t > pos else 0))}")
        A.e(f"s_and_b32 {s(sCH+t)}, {s(sCH+t)}, 1023")
        if CFG.get("common0"): A.e(f"s_add_u32 {s(sCH+t)}, {s(sCH+t)}, 128")

def setup_wq_dma(A):
    t0, t1, t2, t3, t4, t5, tw = [v(vT + i) for i in range(7)]
    A.e(f"v_mad_u32_u24 {t2}, {tw}, 20, {t0}")
    A.e(f"v_lshlrev_b32 {t3}, 1, {t0}")
    A.e(f"v_xor_b32 {t3}, {t3}, {t1}")
    for j in range(6):
        if j: A.e(f"v_add_u32 {t2}, 4, {t2}")
        A.e(f"v_and_b32 {t4}, 8, {t2}")
        A.e(f"v_xor_b32 {t4}, {t4}, {t3}")
        A.e(f"v_lshlrev_b32 {t5}, 13, {t2}")
        A.e(f"v_lshl_add_u32 {v(vWD+j)}, {t4}, 4, {t5}")
        if j % 3: A.e(f"v_subrev_u32 {v(vWD+j)}, {1024*(j%3)}, {v(vWD+j)}")
    A.e(f"s_mul_i32 {s(sWB)}, {s(sW)}, {5*1024}")
def setup_x_dma(A):
    L = v(vLANE); t0, t1, t2, t3, t4, t5, tw = [v(vT + i) for i in range(7)]
    A.e(f"v_lshrrev_b32 {t2}, 3, {L}")
    A.e(f"v_mul_u32_u24 {t2}, 1152, {t2}")
    A.e(f"v_and_b32 {t3}, 7, {L}")
    A.e(f"v_xor_b32 {t3}, {t3}, {t0}")
    A.e(f"v_lshl_add_u32 {t3}, {t3}, 4, {t2}")
    A.e(f"s_mul_i32 {s(sT0)}, {s(sW)}, {8*9216}")
    A.e(f"s_mul_i32 {s(sT1)}, {s(sW)}, {2*9216}")
    A.e(f"v_add_u32 {t2}, {s(sT1)}, {t3}")
    A.e(f"v_add_u32 {t3}, {s(sT0)}, {t3}")
    A.e(f"v_xor_b32 {t4}, 64, {t3}")
    A.e(f"v_xor_b32 {t5}, 64, {t2}")
    for j in range(8): A.e(f"v_add_u32 {v(vXD+j)}, {j*9216 - 1024*(j%4)}, {t3 if j%2==0 else t4}")
    for j in range(2): A.e(f"v_add_u32 {v(vXD+8+j)}, {(24+j)*9216 - 1024*j}, {t2 if j%2==0 else t5}")
    A.e(f"s_lshl_b32 {s(sXE)}, {s(sW)}, 11")
    A.e(f"s_add_u32 {s(sXE)}, {s(sXE)}, {24*1024}")
def setup_srd_q(A):
    A.e(f"s_lshl_b32 {s(sXB)}, {s(sW)}, 13")
    A.e(f"s_lshl_b32 {s(sT0)}, {s(sH)}, 8")
    A.e(f"s_mul_i32 {s(sT1)}, {s(sB)}, 276480")
    A.e("s_waitcnt lgkmcnt(0)")
    stamp(A, "karg")
    srd(A, sWQ, "s86", "s87", s(sT0), f"s_sub_u32 {s(sWQ+2)}, {576*8192}, {s(sT0)}")
    srd(A, sX, "s80", "s81", s(sT1), 276480)

def setup_kv(A):
    t0, t1, t2, t3 = [v(vT + i) for i in range(4)]
    A.e(f"v_lshlrev_b32 {t2}, 1, {t0}")
    A.e(f"v_xor_b32 {t2}, {t2}, {t1}")
    A.e(f"v_lshlrev_b32 {t2}, 4, {t2}")
    A.e(f"v_lshl_add_u32 {v(vVD)}, {t0}, 8, {t2}")
    A.e(f"v_xor_b32 {v(vVD+1)}, 128, {v(vVD)}")
    A.e(f"s_lshl_b32 {s(sW4K)}, {s(sW)}, 12")
    A.e(f"s_lshl_b32 {s(sT0)}, {s(sB)}, 5")
    A.e(f"s_add_u32 {s(sT0)}, {s(sT0)}, {s(sH)}")
    A.e(f"s_lshl_b32 {s(sT0)}, {s(sT0)}, 18")
    srd(A, sK, "s82", "s83", s(sT0), 262144)
    srd(A, sV, "s84", "s85", s(sT0), 262144)
    srd(A, sK1, s(sK), s(sK+1), SLOT, 262144 - SLOT)
    srd(A, sDBG, "s92", "s93", None, 256)
    A.e(f"s_getreg_b32 {s(sXE2)}, hwreg(HW_REG_XCC_ID, 0, 4)")
    A.e(f"s_lshl_b32 {s(sXE2)}, {s(sXE2)}, 28")
    A.e(f"s_and_b32 {s(sXE2+1)}, s2, 7")
    A.e(f"s_lshl_b32 {s(sXE2+1)}, {s(sXE2+1)}, 8")
    A.e(f"s_add_u32 {s(sXE2+1)}, {s(sXE2+1)}, {WS_CENS}")

def setup_q(A):
    L = v(vLANE); t0, t1, t2, t3, t4, tw, tv = [v(vT + i) for i in range(7)]
    A.e(f"v_lshrrev_b32 {t0}, 4, {L}")
    A.e(f"v_and_b32 {t1}, 15, {L}")
    A.e(f"v_lshrrev_b32 {t2}, 1, {t1}")
    A.e(f"v_xor_b32 {t2}, {t2}, {t0}")
    A.e(f"v_lshlrev_b32 {t3}, 4, {t2}")
    A.e(f"v_lshl_add_u32 {t3}, {t1}, 7, {t3}")
    A.e(f"s_sub_u32 {s(sT0)}, {s(sB)}, {s(sHG)}")
    A.e(f"s_sub_u32 {s(sT0)}, {s(sT0)}, 1")
    A.e(f"s_and_b32 {s(sT0)}, {s(sT0)}, 3")
    A.e(f"s_sub_u32 {s(sT0)}, 3, {s(sT0)}")
    A.e(f"s_lshl_b32 {s(sT0)}, {s(sT0)}, 2")
    A.e(f"s_lshr_b32 {s(sT0)}, {0x32140321 if CFG['prio'] else 0x43210000}, {s(sT0) if CFG['prio'] else 12}")
    for sl in range(4):
        r = s(sOS + sl)
        A.e(f"s_add_u32 {r}, {s(sW)}, {4*sl}")
        A.e(f"s_min_u32 {r}, {r}, 14")
        A.e(f"s_mul_i32 {s(sT1)}, {r}, 11")
        A.e(f"s_lshr_b32 {s(sT1)}, {s(sT1)}, 5")
        A.e(f"s_lshl_b32 {s(sT2)}, {s(sT1)}, 2")
        A.e(f"s_lshr_b32 {s(sT2)}, {s(sT0)}, {s(sT2)}")
        A.e(f"s_and_b32 {s(sT2)}, {s(sT2)}, 15")
        A.e(f"s_sub_u32 {s(sT2)}, {s(sT2)}, {s(sT1)}")
        A.e(f"s_mul_i32 {s(sT2)}, {s(sT2)}, 3")
        A.e(f"s_add_u32 {r}, {r}, {s(sT2)}")
        A.e(f"s_lshl_b32 {s(sT1)}, {r}, 11")
        A.e(f"s_add_u32 {s(sT1)}, {s(sT1)}, {XS0}")
        A.e(f"v_add_u32 {v(vXA+2*sl)}, {s(sT1)}, {t3}")
        A.e(f"v_xor_b32 {v(vXA+2*sl+1)}, 64, {v(vXA+2*sl)}")
    A.e(f"v_lshrrev_b32 {t2}, 2, {t1}")
    A.e(f"v_and_b32 {t3}, 1, {t0}")
    A.e(f"v_lshl_add_u32 {t3}, {t3}, 2, {t2}")
    A.e(f"v_and_b32 {t4}, 3, {L}")
    A.e(f"v_lshlrev_b32 {t4}, 3, {t4}")
    A.e(f"v_lshl_add_u32 {tw}, {t0}, 3, {t2}")
    A.e(f"v_lshl_add_u32 {tw}, {tw}, 8, {t4}")
    if WS0: A.e(f"v_add_u32 {tw}, {WS0}, {tw}")
    for t in range(8):
        A.e(f"v_xor_b32 {tv}, {t}, {t3}")
        A.e(f"v_lshl_add_u32 {v(vWA+t)}, {tv}, 5, {tw}")

def attn_init(A):
    L = v(vLANE); t0, t1, t2, t3, t4, tw, tv = [v(vT + i) for i in range(7)]
    A.e(f"v_lshrrev_b32 {t0}, 4, {L}")
    A.e(f"v_and_b32 {t1}, 15, {L}")
    A.e(f"v_and_b32 {t2}, 7, {t1}")
    A.e(f"v_lshlrev_b32 {t2}, 1, {t2}")
    A.e(f"v_xor_b32 {t2}, {t0}, {t2}")
    A.e(f"v_lshlrev_b32 {t4}, 8, {t1}")
    A.e(f"v_add_u32 {t4}, {KPOS(0)}, {t4}")
    for s_ in range(4):
        A.e(f"v_xor_b32 {t3}, {4*s_}, {t2}")
        A.e(f"v_lshl_add_u32 {v(vKA+s_)}, {t3}, 4, {t4}")
    A.e(f"v_lshrrev_b32 {t2}, 2, {t1}")
    A.e(f"v_and_b32 {t3}, 1, {t0}")
    A.e(f"v_lshl_add_u32 {t3}, {t3}, 2, {t2}")
    A.e(f"v_and_b32 {t4}, 3, {L}")
    A.e(f"v_cmp_eq_u32 vcc, 0, {t4}")
    A.e(f"v_lshlrev_b32 {t4}, 3, {t4}")
    A.e(f"v_lshl_add_u32 {tw}, {t0}, 2, {t2}")
    A.e(f"v_lshl_add_u32 {tw}, {tw}, 8, {t4}")
    A.e(f"v_add_u32 {tw}, {VPOS(-1)}, {tw}")
    for t in range(8):
        A.e(f"v_xor_b32 {tv}, {t}, {t3}")
        A.e(f"v_lshl_add_u32 {v(vVA+t)}, {tv}, 5, {tw}")
    A.e(f"v_mov_b32 {t3}, 0x3f803f80")
    for i in range(4): A.e(f"v_cndmask_b32 {v(vONE+i)}, 0, {t3}, vcc")
    A.e(f"s_mov_b32 {s(sKOFF)}, {KPOS(0)}")
    A.e(f"s_mov_b32 {s(sM4)}, {-4*SLOT}")
    A.e(f"s_mov_b32 {s(sP)}, {KPOS(CFG['pre'] + 1)}")
    A.e(f"s_mov_b32 {s(sQ)}, {CFG['pre']*SLOT}")

def zero_acc(A, nq):
    for r in range(32 * nq): A.e(f"v_accvgpr_write_b32 {a(aO+r)}, 0")
def zero_l(A, nq):
    for r in range(4 * nq): A.e(f"v_accvgpr_write_b32 {a(aL+r)}, 0")

def setup_p2(A):
    L = v(vLANE); t0, t1, t2, t3, t4, t5, t6 = [v(vT + i) for i in range(7)]
    T0, T1, T2 = s(sT0), s(sT1), s(sT2)
    srd(A, sWS, "s94", "s95", (CFG["wsoff"] << 20) if CFG.get("wsoff") else None, WS_SIZE)
    srd(A, sOUT, "s90", "s91", None, 1920 * 1152)
    A.e(f"s_mov_b32 {s(sSC)}, {f32hex(SCALE)}")
    A.e(f"s_mov_b32 {s(sSC+1)}, {f32hex(SCALE)}")
    A.e(f"s_mov_b32 {s(sSECOND)}, 0")
    A.e(f"v_lshlrev_b32 {v(vOO)}, 4, {L}")
    A.e(f"s_and_b32 {T2}, s2, 7")
    A.e(f"s_mul_i32 {s(sOLD)}, {T2}, {60*OM}")
    A.e(f"s_and_b32 {T0}, {s(sB)}, 3")
    A.e(f"s_mul_i32 {T0}, {T0}, 15")
    A.e(f"s_lshl_b32 {T0}, {T0}, 15")
    A.e(f"s_and_b32 {T1}, {s(sH)}, 7")
    A.e(f"s_lshl_b32 {T1}, {T1}, 12")
    A.e(f"s_add_u32 {T0}, {T0}, {T1}")
    A.e(f"s_add_u32 {T0}, {T0}, {s(sOLD)}")
    for sl in range(4):
        A.e(f"s_lshl_b32 {s(sOS+sl)}, {s(sOS+sl)}, 15")
        A.e(f"s_add_u32 {s(sOS+sl)}, {s(sOS+sl)}, {T0}")
    A.e(f"s_lshl_b32 {T0}, {s(sB)}, 5")
    A.e(f"s_add_u32 {T0}, {T0}, {s(sH)}")
    A.e(f"s_lshl2_add_u32 {T0}, {T0}, {s(sW)}")
    A.e(f"s_lshl_b32 {T0}, {T0}, {FSH}")
    A.e(f"s_add_u32 {s(sFL)}, {T0}, {WS_FLAG}")
    A.e(f"s_add_u32 {s(sFL+1)}, {T0}, {WS_FLAG + (1 << (FSH - 1))}")
    A.e(f"s_min_u32 {T0}, {s(sIDX)}, 29")
    A.e(f"s_mul_i32 {T1}, {T0}, 43")
    A.e(f"s_lshr_b32 {T1}, {T1}, 8")
    A.e(f"s_mul_i32 {T2}, {T1}, 6")
    A.e(f"s_sub_u32 {T0}, {T0}, {T2}")
    A.e(f"s_mul_i32 {T0}, {T0}, 192")
    A.e(f"s_mul_i32 {T1}, {T1}, 12")
    A.e(f"s_lshl_b32 {T2}, {T1}, 15")
    A.e(f"s_add_u32 {s(sOLD)}, {s(sOLD)}, {T2}")
    A.e(f"s_and_b32 {T2}, s2, 1")
    A.e(f"s_mul_i32 {T2}, {T2}, 60")
    A.e(f"s_add_u32 {T1}, {T1}, {T2}")
    A.e(f"s_mul_i32 {T2}, {s(sHG)}, {1024*1152}")
    A.e(f"s_add_u32 {T2}, {T2}, {T0}")
    srd(A, sWO, "s88", "s89", T2, f"s_sub_u32 {s(sWO+2)}, {4096*1152}, {T2}")
    A.e(f"s_lshl_b32 {T2}, {s(sW)}, 13")
    A.e(f"s_add_u32 {s(sOLD)}, {s(sOLD)}, {T2}")
    for q in range(4):
        A.e(f"s_add_u32 {T2}, {s(sHG)}, {q+1}")
        A.e(f"s_and_b32 {T2}, {T2}, 3")
        A.e(f"s_mul_i32 {T2}, {T2}, {3*OM}")
        A.e(f"s_add_u32 {s(sPO+q)}, {T2}, {s(sOLD)}")
    A.e(f"v_and_b32 {t0}, 2, {L}")
    A.e(f"v_mul_u32_u24 {t0}, 5, {t0}")
    A.e(f"v_add_u32 {t0}, {T1}, {t0}")
    A.e(f"v_mul_u32_u24 {t0}, 137, {t0}")
    A.e(f"v_lshrrev_b32 {t0}, 11, {t0}")
    A.e(f"v_and_b32 {t1}, 1, {L}")
    A.e(f"v_lshl_add_u32 {t0}, {t0}, 5, {t1}")
    A.e(f"s_lshl_b32 {T2}, {s(sHG)}, 3")
    A.e(f"s_lshl_b32 {s(sPS)}, {s(sW)}, 1")
    A.e(f"s_add_u32 {T2}, {T2}, {s(sPS)}")
    A.e(f"v_add_u32 {t0}, {T2}, {t0}")
    A.e(f"v_lshlrev_b32 {t0}, {FSH + 2}, {t0}")
    A.e(f"v_and_b32 {t1}, 12, {L}")
    A.e(f"v_lshl_add_u32 {t0}, {t1}, {FSH - 2}, {t0}")
    A.e(f"v_add_u32 {v(vFO)}, {WS_FLAG}, {t0}")
    A.e(f"s_mul_i32 {T2}, {s(sHG)}, 3")
    A.e(f"s_add_u32 {T1}, {T1}, {T2}")
    A.e(f"s_lshl_b32 {T1}, {T1}, 4")
    A.e(f"s_mul_i32 {T2}, {s(sW)}, 12")
    A.e(f"s_add_u32 {T1}, {T1}, {T2}")
    A.e(f"s_mul_i32 {T1}, {T1}, 1152")
    A.e(f"s_add_u32 {T1}, {T1}, {T0}")
    A.e(f"s_mul_i32 {T2}, {T2}, {RSTR}")
    A.e(f"s_lshl_b32 {s(sPS)}, {s(sW)}, 2")
    for r in range(5):
        A.e(f"v_add_u32 {t0}, {64*r}, {L}")
        if r == 4: A.e(f"v_min_u32 {t0}, 287, {t0}")
        A.e(f"v_mul_u32_u24 {t1}, 171, {t0}")
        A.e(f"v_lshrrev_b32 {t1}, 12, {t1}")
        A.e(f"v_mul_u32_u24 {t2}, 24, {t1}")
        A.e(f"v_sub_u32 {t2}, {t0}, {t2}")
        A.e(f"v_add_u32 {t4}, {s(sPS)}, {t1}")
        A.e(f"v_and_b32 {t4}, 7, {t4}")
        A.e(f"v_xor_b32 {t4}, {t4}, {t2}")
        A.e(f"v_mul_u32_u24 {t3}, {RSTR}, {t1}")
        A.e(f"v_lshl_add_u32 {t3}, {t4}, 4, {t3}")
        A.e(f"v_add_u32 {v(vRR+r)}, {T2}, {t3}")
        A.e(f"v_mul_u32_u24 {t3}, 1152, {t1}")
        A.e(f"v_lshl_add_u32 {t3}, {t2}, 3, {t3}")
        A.e(f"v_add_u32 {v(vOUT+r)}, {T1}, {t3}")
    A.e(f"v_cmp_gt_u32 vcc, 32, {L}")
    A.e(f"v_mov_b32 {t0}, 0x7ffffff0")
    A.e(f"v_lshrrev_b32 {t1}, 4, {L}")
    A.e(f"v_cndmask_b32 {v(vOUT+4)}, {t0}, {v(vOUT+4)}, vcc")
    A.e(f"v_cmp_eq_u32 vcc, 0, v0")
    A.e(f"v_and_b32 {t2}, 15, {L}")
    A.e(f"s_mul_i32 {T2}, {s(sW)}, {WOW}")
    A.e(f"v_cndmask_b32 {v(vFP)}, {t0}, 0, vcc")
    A.e(f"v_mul_u32_u24 {t3}, {RSTR}, {t2}")
    A.e(f"v_and_b32 {t4}, 7, {t2}")
    A.e(f"v_xor_b32 {t4}, {t4}, {t1}")
    A.e(f"v_lshl_add_u32 {t3}, {t4}, 4, {t3}")
    A.e(f"v_add_u32 {v(vRW)}, {T2}, {t3}")
    A.e(f"v_xor_b32 {v(vRW-1)}, 64, {v(vRW)}")
    if CFG["fline"]:
        A.e(f"v_lshlrev_b32 {v(vFW)}, 26, {t1}")
        A.e(f"v_lshl_add_u32 {v(vFW)}, {t2}, 3, {v(vFW)}")
    else: A.e(f"v_lshlrev_b32 {v(vFW)}, 26, {L}")
    A.e(f"s_mul_i32 {s(sWOW)}, {s(sW)}, {WOW}")
    A.e(f"v_lshrrev_b32 {t3}, 2, {L}")
    A.e(f"v_and_b32 {t4}, 3, {L}")
    A.e(f"v_lshlrev_b32 {t5}, 3, {t4}")
    A.e(f"v_lshl_add_u32 {t5}, {t3}, 6, {t5}")
    A.e(f"v_and_b32 {t6}, 1, {t1}")
    A.e(f"v_lshl_add_u32 {t5}, {t6}, 5, {t5}")
    A.e(f"v_add_u32 {v(vWT)}, {s(sWOW)}, {t5}")
    A.e(f"v_xor_b32 {v(vWT+1)}, 32, {v(vWT)}")
    A.e(f"v_lshlrev_b32 {t6}, 1, {t6}")
    A.e(f"v_xor_b32 {t4}, {t4}, {t6}")
    A.e(f"v_mul_u32_u24 {t3}, 1152, {t3}")
    A.e(f"v_lshl_add_u32 {v(vWD2)}, {t4}, 4, {t3}")
    A.e(f"v_add_u32 {v(vWD2+1)}, {16*1152 - 1024}, {v(vWD2)}")
    A.e(f"s_lshl_b32 {T2}, s2, 11")
    A.e(f"s_add_u32 {T2}, {T2}, {WS_PFLAG}")
    A.e(f"s_lshl_b32 {s(sPL)}, {s(sW)}, 9")
    A.e(f"s_add_u32 {T2}, {T2}, {s(sPL)}")
    A.e(f"v_and_b32 {t0}, 1, {L}")
    A.e(f"v_lshlrev_b32 {t0}, 7, {t0}")
    A.e(f"v_add_u32 {v(vFA)}, {T2}, {t0}")
    A.e(f"s_mul_i32 {T2}, s2, {12*5120}")
    A.e(f"s_mul_i32 {s(sPL)}, {s(sW)}, 5120")
    A.e(f"s_add_u32 {s(sPL)}, {s(sPL)}, {T2}")
    A.e(f"s_add_u32 {s(sPL)}, {s(sPL)}, {WS_PART}")

def prewarm_flags(A):
    if not CFG["fwarm"]: return
    A.e(f"v_mov_b32 {v(vT)}, 0"); A.e(f"v_mov_b32 {v(vT+1)}, 0")
    for k in range(2): A.vmem(f"buffer_store_dwordx2 {v(vT,2)}, {v(vFW)}, {s(sWS,4)}, {s(sFL+k)} offen sc1", "fw")
    if CFG["fwarm"] == 2:
        for q in range(3):
            for x in [f"s_add_u32 {s(sT0)}, {s(sHG)}, {q+1}", f"s_and_b32 {s(sT0)}, {s(sT0)}, 3", f"s_sub_u32 {s(sT0)}, {s(sT0)}, {s(sHG)}",
                      f"s_lshl1_add_u32 {s(sT0)}, {s(sT0)}, s2", f"s_lshl2_add_u32 {s(sT0)}, {s(sT0)}, {s(sW)}", f"s_lshl_b32 {s(sT0)}, {s(sT0)}, 9",
                      f"s_add_u32 {s(sT0)}, {s(sT0)}, {WS_PFLAG + 128*q}"]: A.e(x)
            A.vmem(f"buffer_store_dwordx2 {v(vT,2)}, {v(vFW)}, {s(sWS,4)}, {s(sT0)} offen sc1", "fw")
LD_NON = f"buffer_load_dwordx2 {v(vNON,2)}, off, {s(sDBG,4)}, 0 offset:128 sc1"
CMP_NON = f"v_cmp_eq_u64 vcc, 0, {v(vNON,2)}"
def census(A):
    if CFG["fast"]:
        A.wait_vm("non0")
        A.e(f"v_xor_b32 {v(vNON+1)}, {s(sXE2)}, {v(vNON+1)}")
        A.e(f"s_lshl_b32 {s(sT0)}, {s(sIDX)}, 3")
        A.e(f"s_add_u32 {s(sT0)}, {s(sT0)}, {s(sXE2+1)}")
        A.e(f"v_lshlrev_b32 v254, 26, {v(vLANE)}")
        A.vmem(f"buffer_store_dwordx2 {v(vNON,2)}, v254, {s(sWS,4)}, {s(sT0)} offen sc1", "cens")
    if CFG["wotouch"] == "pro": wotouch(A)
    if CFG["wotouch"] == "spread": wotouch(A, 0)
    if CFG["wotouch"] in ("dyn", "end"):
        wo_slice(A)
        A.e(f"s_mov_b32 {s(sT2)}, {16*SLOT - 2}")
def wo_slice(A):
    A.e(f"s_mul_i32 {s(sT0)}, {s(sHG)}, {1024*1152}")
    A.e(f"s_mul_i32 {s(sT1)}, {s(sIDX)}, 36864")
    A.e(f"s_add_u32 {s(sT0)}, {s(sT0)}, {s(sT1)}")
    A.e(f"s_add_u32 {s(sT0)}, {s(sT0)}, 4096")
    A.e(f"v_add_u32 v254, {s(sT0)}, {v(vOO)}")
def wotouch(A, n=5):
    A.e(f"s_mul_i32 {s(sT0)}, {s(sHG)}, {1024*1152}")
    A.e(f"s_mul_i32 {s(sT1)}, {s(sIDX)}, 36864")
    A.e(f"s_add_u32 {s(sT0)}, {s(sT0)}, {s(sT1)}")
    A.e(f"v_lshlrev_b32 v254, 7, {v(vLANE)}")
    A.e(f"v_add_u32 v254, {s(sT0)}, v254")
    for k in range(n):
        A.vmem(f"global_load_dword v255, v254, s[88:89]{CFG['nt_wt']}", "wot")
        if k < 4: A.e(f"v_add_u32 v254, {8192 if k < 3 else 4096}, v254")

def write_nonce(A):
    A.e("s_memrealtime s[64:65]")
    A.e("s_cmp_eq_u32 s2, 0")
    A.e(f"s_cselect_b32 {s(sT0)}, 0, 256")
    A.e(f"v_lshlrev_b32 {v(vT+2)}, 8, {v(vLANE)}")
    A.e("s_waitcnt lgkmcnt(0)")
    A.e(f"v_mov_b32 {v(vT)}, s64")
    A.e(f"v_mov_b32 {v(vT+1)}, s65")
    A.vmem(f"buffer_store_dwordx2 {v(vT,2)}, {v(vT+2)}, {s(sDBG,4)}, {s(sT0)} offen offset:128 sc1", "nonce")
    if CFG["warm"] is True:
        A.e("s_getpc_b64 s[64:65]")
        A.label("L_pc")
        A.e(f"s_sub_u32 s64, s64, L_pc-{KNAME}")
        A.e("s_subb_u32 s65, s65, 0")
        A.e(f"s_and_b32 {s(sT0)}, {s(sIDX)}, 7")
        A.e(f"s_lshl_b32 {s(sT0)}, {s(sT0)}, 13")
        A.e(f"v_lshlrev_b32 {v(vT+3)}, 7, {v(vLANE)}")
        A.e(f"v_add_u32 {v(vT+3)}, {s(sT0)}, {v(vT+3)}")
        A.e(f"v_min_u32 {v(vT+3)}, L_code_end-{KNAME}-4, {v(vT+3)}")
        A.vmem(f"global_load_dword v255, {v(vT+3)}, s[64:65]", "warm")

def touch_setup(A):
    L = v(vLANE)
    A.e(f"v_and_b32 v252, 31, {L}")
    A.e(f"v_lshrrev_b32 v253, 1, v252")
    A.e(f"v_min_u32 v252, 29, v252")
    A.e(f"s_and_b32 {s(sT0)}, {s(sH)}, 7")
    A.e(f"s_mul_i32 {s(sT0)}, {s(sT0)}, 30")
    A.e(f"v_add_u32 v252, {s(sT0)}, v252")
    A.e(f"v_mul_u32_u24 v252, 1152, v252")
    A.e(f"v_lshrrev_b32 v251, 5, {L}")
    A.e(f"v_lshl_add_u32 v252, v251, 7, v252")
    A.e(f"v_lshl_add_u32 v253, v251, 6, v253")
    A.e(f"s_and_b32 {s(sT0)}, {s(sB)}, 3")
    A.e(f"s_lshl_b32 {s(sT0)}, {s(sT0)}, 4")
    A.e(f"v_add_u32 v253, {s(sT0)}, v253")
    A.e(f"v_lshlrev_b32 v253, 13, v253")
    A.e(f"v_and_b32 v251, 1, {L}")
    A.e(f"v_lshl_add_u32 v253, v251, 7, v253")
def touch_ops(c):
    return [("mem", lambda A: A.vmem(f"buffer_load_dword v255, v252, {s(sX,4)}, 0 offen offset:{128*c}{CFG['nt_x']}", "touch")),
            ("sal", f"s_mov_b32 {s(sT3)}, {64*8192*c}"),
            ("mem", lambda A: A.vmem(f"buffer_load_dword v255, v253, {s(sWQ,4)}, {s(sT3)} offen{CFG['nt_x']}", "touch"))]

def qproj(A, nq):
    main = nq == 4
    tch = [[int(c) for c in x.split("+") if c] for x in str(CFG["touch"]).split(",")] + [[]] * 10
    if main:
        setup_wq_dma(A)
        chunk_order(A, [0])
        setup_srd_q(A)
        emit_ops(A, wq_ops(0))
        setup_x_dma(A)
        emit_ops(A, x_own(0) + x_extra(0))
        stamp(A, "iss0")
        chunk_order(A, range(1, 9))
    else:
        if any(tch): touch_setup(A)
        setup_srd_q(A)
        for c in tch[0]: emit_ops(A, touch_ops(c))
    setup_kv(A)
    if not main: write_nonce(A)
    setup_q(A)
    if not main: setup_p2(A); attn_init(A); zero_acc(A, nq)
    stamp(A, "setq")
    if main: emit_ops(A, wq_ops(1) + x_own(1) + x_extra(1))
    stamp(A, "iss1")
    kvq = [int(x) for x in str(CFG["kvq"]).split(",")]
    assert len(kvq) == 8 and sum(kvq) == 48
    kvp = split_ops(kv_full("K", 0) + kv_full("K", 1) + kv_full("V", 0), kvq[:-1])
    if not main: emit_ops(A, kvp[0])
    woq = [int(x) for x in str(CFG["woq"]).split(",")]
    wops = []
    for k in range(36):
        wops.append(("mem", lambda A, k=k: A.vmem(f"global_load_dwordx4 v[240:243], v254, s[88:89] offset:{1024*(k%6) - 4096}", "wot")))
        if k % 6 == 5: wops.append(("sal", "v_add_u32 v254, 6144, v254"))
    wop = split_ops(wops, woq[:-1]) if CFG["wotouch"] == "q" else [[]] * 8
    if not main and CFG["wotouch"] == "q": wo_slice(A)
    NS = 16 * nq; BAR = 12 * nq; LEAD = NS - BAR
    slots = [Slot() for _ in range(LEAD + 9 * NS)]
    def G(kc, i): return LEAD + kc * NS + i
    for kc in range(9):
        bb = aQB + 32 * ((kc + 1) % 2)
        for i in range(NS):
            f, qt = i // nq, i % nq
            s2, t = f // 8, f % 8
            d = v(vACC + 32 * qt + 4 * t, 4)
            slots[G(kc, i)].m = mfma(d, a(aQA + 4 * f, 4), a(bb + 8 * qt + 4 * s2, 4), d if (kc or s2) else "0")
        def rdA(f, j, kc=kc):
            s2, t = f // 8, f % 8
            off = WS(kc) - WS0 + (32 * s2 + 4 * j) * 256
            return lambda A: A.ds(f"ds_read_b64_tr_b16 {a(aQA + 4*f + 2*j, 2)}, {v(vWA+t)} offset:{off}", ("A", kc, f, j))
        def rdB(qt, s2, kc=kc, bb=bb):
            off = XS(kc) - XS0
            return lambda A: A.ds(f"ds_read_b128 {a(bb + 8*qt + 4*s2, 4)}, {v(vXA+2*qt+s2)} offset:{off}", ("B", kc, qt, s2))
        head = [rdB(0, 0), rdA(0, 0), rdA(0, 1)] + [rdB(q, 0) for q in range(1, nq)] + [rdA(1, 0), rdA(1, 1), rdA(2, 0), rdA(2, 1)] \
             + [rdB(q, 1) for q in range(nq)] + [rdA(3, 0), rdA(3, 1)]
        p0 = G(kc, -LEAD)
        for k, r in enumerate(head): slots[p0 + k * LEAD // len(head)].mem.append(r)
        tail = [rdA(f, j) for f in range(4, 16) for j in range(2)]
        span = BAR - 2 * nq if kc < 8 else 6 * nq
        for k, r in enumerate(tail): slots[G(kc, k * span // len(tail))].mem.append(r)
        slots[G(kc, -1)].valu.append(lambda A, kc=kc: A.wait_lds(("B", kc, nq - 1, 0)))
        for f in range(1, 13):
            slots[G(kc, f * nq - 1)].sal.append(lambda A, tag=("A", kc, f, 1): A.wait_lds(tag))
        def bar(A, kc=kc):
            if main and kc == 1:
                def bgw(A): attn_init(A); zero_acc(A, nq)
                setup_p2(A)
                if CFG.get("bgweave", False): weave(A, bgw, wq_ops(2) + x_own(2) + x_extra(2))
                else: bgw(A); emit_ops(A, wq_ops(2) + x_own(2) + x_extra(2))
            if main: A.wait_vm(("xe", kc))
            A.e("s_waitcnt lgkmcnt(0)")
            A.e("s_barrier")
            stamp(A, "bm1" if kc == 0 else f"b{kc-1}")
        slots[p0].sal.insert(0, bar)
        if kc <= 7: slots[G(kc, 3 * nq - 1)].sal.append("s_barrier")
        if main:
            early = []; late = []
            if 1 <= kc <= 6: early += wq_ops(kc + 2)
            if 1 <= kc <= 6: late += x_own(kc + 2) + x_extra(kc + 2)
            pe = [p0 + 2 + 4 * k for k in range(nmem(early))]
            pl = [G(kc, 3 * nq + 1 + 3 * k) for k in range(nmem(late))]
            place_ops(slots, pe, early); place_ops(slots, pl, late)
        else:
            if kc <= 6:
                ops = sum((touch_ops(c) for c in tch[kc + 1]), []) + kvp[kc + 1] + wop[kc + 1]
                ne = nmem(ops)
                if CFG["kvpos"] == "end": pe = [G(kc, BAR - 2 - ne + k) for k in range(ne)]
                elif CFG["kvpos"] == "mid": pe = [G(kc, 3 * nq + 2 + k) for k in range(ne)]
                elif CFG["kvpos"] == "even": pe = [p0 + 2 + k * (NS - 4) // ne for k in range(ne)]
                else: pe = [p0 + 2 + k for k in range(ne)]
                place_ops(slots, pe, ops)
            elif kc == 7:
                place_ops(slots, [p0 + 2 + k for k in range(16)], kv_full("K", 2))
                n7 = CFG["kv7"]
                late78 = split_ops(kv_full("V", 1) + (kv_full("V", 2) + kv_full("K", 3) if CFG["pre"] == 3 else []), [n7])
                if n7: place_ops(slots, [G(7, 3 * nq + 2) + k * (BAR - 3 * nq - 4) // n7 for k in range(n7)], late78[0])
            else:
                ne = nmem(late78[1])
                if ne: place_ops(slots, [p0 + 2 + k * (12 * nq - 4) // ne for k in range(ne)], late78[1])
    def bar8(A):
        if not main: A.wait_vm(("K", 0))
        A.e("s_waitcnt lgkmcnt(0)")
        A.e("s_barrier")
    p8 = G(8, 8 * nq - 1)
    slots[p8].sal = [bar8]
    slots[G(7, -LEAD + 1)].mem.append(lambda A: A.vmem(LD_NON, "nonce"))
    for k, l in enumerate(lines(lambda B: zero_l(B, nq))): slots[G(8, 2 + k)].valu.append(l)
    emit_slots(A, slots[:p8 + 1])
    lim = CFG["lim0"]
    assert lim <= 4 * SLOT and CFG["lim1"] <= SLOT
    for n in range(14):
        assert lim >= (n + 1) * SLOT, n
        lim = min(lim + (CFG["lim1"] if n < CFG["lim1n"] else CFG["limr"]), (n + 5) * SLOT)
    if not main:
        A.e(f"s_mov_b32 {s(sLIM)}, {CFG['lim0']}")
        A.e(f"s_mov_b32 {s(sNEED)}, {SLOT}")

def prologue(A, nq, slots, P):
    M = []; V = []; X = []
    bb = aQB + 32
    for qt in range(nq):
        for t in range(8):
            d = v(vACC + 32 * qt + 4 * t, 4)
            M.append(Op(mfma(d, a(aQA + 32 + 4 * t, 4), a(bb + 8 * qt + 4, 4), d), name=("qp", qt, t)))
    for f in range(8): X.append(Op(k_read(0, f)))
    X.append(Op(lambda A: A.wait_lds(("K", 7)), 0, deps=[(("pk", 1), 0)], name="k0"))
    for f in range(8):
        kt, s_ = f // 4, f % 4
        X.append(Op(lambda A, f=f, kt=kt, s_=s_: A.ds(f"ds_read_b128 {a(aV+4*f,4)}, {v(vKA+s_)} offset:{8192+4096*kt}", ("K1", f)),
                    deps=[(("qp", nq - 1, 7), 0)]))
    def conv(qt):
        if qt:
            for j in range(16):
                r = v(vACC + 32 * qt + 2 * j, 2)
                V.append(Op(f"v_pk_mul_f32 {r}, {r}, {s(sSC,2)}", deps=[(("qp", nq - 1, 7), 8)], name=("pk", qt) if j == 15 else None))
        for u in range(4):
            src = vACC + 32 * qt + 8 * u; dst = vQ + 16 * qt + 4 * u
            if qt == 0:
                for j in range(8): V.append(Op(f"v_mul_f32 {v(src+j)}, {s(sSC)}, {v(src+j)}", deps=[(("qp", qt, 2*u + j//4), 8)]))
            for j in range(4): V.append(Op(f"v_cvt_pk_bf16_f32 {v(dst+j)}, {v(src+2*j)}, {v(src+2*j+1)}", name=("c", qt, u, j)))
        for k, sw in enumerate(("v_permlane32_swap_b32", "v_permlane16_swap_b32")):
            for u in range(4):
                dst = vQ + 16 * qt + 4 * u
                for j in range(2):
                    V.append(Op(f"{sw} {v(dst+j)}, {v(dst+j+2)}", 2, deps=[(("c", qt, u, 3), 2)], name=("cv", qt) if (k, u, j) == (1, 3, 1) else None))
    def qk(T, qt, kreg, c0, deps):
        for kt in range(2):
            for s_ in range(4):
                d = v(vS + 32 * T + 8 * qt + 4 * kt, 4)
                M.append(Op(mfma(d, a(kreg + 4 * (4 * kt + s_), 4), v(vQ + 16 * qt + 4 * s_, 4), d if s_ else c0), deps=deps, name=("qk", T, qt, kt) if s_ == 3 else None))
    def rowmax(qt):
        b = vS + 8 * qt; m = vT + qt; t = vT + 4
        V.append(Op(f"v_max3_f32 {v(m)}, {v(b)}, {v(b+1)}, {v(b+2)}", deps=[(("qk", 0, qt, 1), 8)]))
        V.append(Op(f"v_max3_f32 {v(t)}, {v(b+3)}, {v(b+4)}, {v(b+5)}"))
        V.append(Op(f"v_max3_f32 {v(m)}, {v(m)}, {v(b+6)}, {v(b+7)}"))
        V.append(Op(f"v_max_f32 {v(m)}, {v(m)}, {v(t)}"))
        for k, sw in enumerate(("v_permlane32_swap_b32", "v_permlane16_swap_b32")):
            V.append(Op(f"v_mov_b32 {v(t)}, {v(m)}", name=("mv", qt, k)))
            V.append(Op(f"{sw} {v(t)}, {v(m)}", 2, deps=[(("mv", qt, k), 2)]))
            V.append(Op(f"v_max_f32 {v(m)}, {v(m)}, {v(t)}"))
        for e in range(8): V.append(Op(f"v_sub_f32 {v(b+e)}, {v(b+e)}, {v(m)}"))
    def setc(qt):
        for e in range(4): V.append(Op(f"v_sub_f32 {v(vC+4*qt+e)}, 0, {v(vT+qt)}", name=("C", qt) if e == 3 else None))
    for qt in range(nq):
        conv(qt)
        qk(0, qt, aK, "0", [(("cv", qt), 2), ("k0", 0)] + ([(("pk", qt + 1), 0)] if qt + 1 < nq else []))
        if qt: rowmax(qt - 1)
    for qt in range(nq - 1): setc(qt)
    X.append(Op(lambda A: A.wait_lds(("K1", 7)), 0, deps=[(("cv", nq - 1), 0)], name="k1"))
    gen = [x for sl in slots[:2 * P] for x in sl.valu if isinstance(x, str) and x.startswith(("v_exp", "v_cvt"))]
    for k in range(len(gen) - 1):
        if gen[k].startswith("v_cvt") and k % 3 == 2: gen[k], gen[k + 1] = gen[k + 1], gen[k]
    def soft(lst):
        for x in lst:
            if x.startswith("v_exp"):
                r = int(x.split()[1][1:-1])
                V.append(Op(x, 2, deps=[(("qk", 1, 0, 0), 8)] if r >= vS + 32 else [], name=("e", r)))
            else: V.append(Op(x, deps=[(("e", int(x.split()[3][1:])), 1)]))
    soft(gen[:12])
    rowmax(nq - 1); setc(nq - 1)
    for qt in range(nq): qk(1, qt, aV, v(vC + 4 * qt, 4), [(("C", qt), 2), ("k1", 0)])
    X.append(Op(f"s_cmp_eq_u32 {s(sKOFF)}, {4*SLOT}", 0)); X.append(Op(f"s_cselect_b32 {s(sDK)}, {s(sM4)}, {SLOT}", 0))
    X.append(Op(f"s_add_u32 {s(sKOFF)}, {s(sKOFF)}, {s(sDK)}", 1, name="ring"))
    for i in range(12): V.append(Op(f"v_add_u32 {v(vKA+i)}, {s(sDK)}, {v(vKA+i)}", deps=[("ring", 0)], name=("addr", i)))
    soft(gen[12:])
    def bar0(A):
        if nq == 3:
            emit_list(A, dq_landed())
            A.e("s_cbranch_scc0 L_dqwait_m"); A.label("L_dqok_m")
        A.e("s_barrier")
        if nq == 3:
            A.e(f"s_add_u32 {s(sNEED)}, {s(sNEED)}, {SLOT}"); A.e(f"s_add_u32 {s(sLIM)}, {s(sLIM)}, {CFG['lim1'] if CFG['lim1n'] else min(CFG['limr'], SLOT)}")
    X.append(Op(bar0, 1, deps=[(("qk", 0, nq - 1, 1), 0), (("addr", 3), 0)]))
    rd = [x for sl in slots[P:2 * P] for x in sl.mem]
    for k, x in enumerate(rd): X.append(Op(x, deps=[(("qk", 1, nq - 1, 1), 0), (("addr", 11), 0)] if k >= 8 else []))
    X.append(Op(lambda A: A.wait_lds(("K", 7)), 0, deps=[(("e", vS + 33), 0)]))
    if nq == 3:
        n = CFG["midpoll"]
        for k in range(n): V.insert((n - k) * len(V) // (n + 1), Op(lambda A, k=k: emit_list(A, dq_pieces(f"m{k}")), 2))
    if nq == 4 and CFG["wotouch"] == "mid":
        pre = [f"s_mul_i32 {s(sT0)}, {s(sHG)}, {1024*1152}", f"s_mul_i32 {s(sT1)}, {s(sIDX)}, 36864", f"s_add_u32 {s(sT0)}, {s(sT0)}, {s(sT1)}",
               f"s_mul_i32 {s(sT1)}, {s(sW)}, 12288", f"s_add_u32 {s(sT0)}, {s(sT0)}, {s(sT1)}", f"s_add_u32 {s(sT0)}, {s(sT0)}, 4096",
               f"v_add_u32 v32, {s(sT0)}, {v(vOO)}", "v_add_u32 v33, 6144, v32"]
        for x in pre: A.e(x)
        n0 = len(V)
        for k in range(12):
            V.insert((12 - k) * n0 // 13, Op(lambda A, k=k: A.vmem(f"global_load_dwordx4 v[36:39], v{32 + k // 6}, s[88:89] offset:{1024*(k%6) - 4096}", "wot")))
    REGION[0] = "m"
    merge(A, M, V, X)

def qconvert(A, nq):
    A.e("s_nop 7")
    for qt in range(nq):
        for u in range(4):
            src = vACC + 32 * qt + 8 * u; dst = vQ + 16 * qt + 4 * u
            for j in range(4): A.e(f"v_pk_mul_f32 {v(src+2*j,2)}, {v(src+2*j,2)}, {s(sSC,2)}")
            for j in range(4): A.e(f"v_cvt_pk_bf16_f32 {v(dst+j)}, {v(src+2*j)}, {v(src+2*j+1)}")
        for sw in ("v_permlane32_swap_b32", "v_permlane16_swap_b32"):
            for u in range(4):
                dst = vQ + 16 * qt + 4 * u
                A.e(f"{sw} {v(dst)}, {v(dst+2)}")
                A.e(f"{sw} {v(dst+1)}, {v(dst+3)}")

def k_read(T, f):
    kt, s_ = f // 4, f % 4
    off = 8192 * (T % 2) + 4096 * kt
    return lambda A: A.ds(f"ds_read_b128 {a(aK+4*f,4)}, {v(vKA+s_)} offset:{off}", ("K", f))
def v_read(T, i):
    t, j = i // 2, i % 2
    off = 8192 * (T % 2) + 4096 * j
    return lambda A: A.ds(f"ds_read_b64_tr_b16 {a(aV+4*t+2*j,2)}, {v(vVA+t)} offset:{off}", ("V", i))
def qk_list(T, nq, czero=False):
    if CFG["qkorder"] == "A": order = [(kt, s_, qt) for kt in range(2) for s_ in range(4) for qt in range(nq)]
    else: order = [(kt, s_, qt) for qt in range(nq) for kt in range(2) for s_ in range(4)]
    out = []
    for kt, s_, qt in order:
        d = v(vS + 32 * (T % 2) + 8 * qt + 4 * kt, 4)
        c = d if s_ else ("0" if czero else v(vC + 4 * qt, 4))
        out.append(mfma(d, a(aK + 4 * (4 * kt + s_), 4), v(vQ + 16 * qt + 4 * s_, 4), c))
    return out
def crosslane_max(A, regs, tmp):
    for sw in ("v_permlane32_swap_b32", "v_permlane16_swap_b32"):
        for i, r in enumerate(regs): A.e(f"v_mov_b32 {v(tmp+i)}, {v(r)}")
        A.e("s_nop 1")
        for i, r in enumerate(regs): A.e(f"{sw} {v(tmp+i)}, {v(r)}")
        A.e("s_nop 1")
        for i, r in enumerate(regs): A.e(f"v_max_f32 {v(r)}, {v(r)}, {v(tmp+i)}")
def first_tile(A, nq):
    A.e("s_waitcnt lgkmcnt(0)")
    A.e("s_nop 0")
    for m in qk_list(0, nq, czero=True): A.e(m)
    A.e("s_nop 7")
    for qt in range(nq):
        b = vS + 8 * qt; c = vC + 4 * qt
        A.e(f"v_max3_f32 {v(c)}, {v(b)}, {v(b+1)}, {v(b+2)}")
        A.e(f"v_max3_f32 {v(c+1)}, {v(b+3)}, {v(b+4)}, {v(b+5)}")
        A.e(f"v_max3_f32 {v(c)}, {v(c)}, {v(b+6)}, {v(b+7)}")
        A.e(f"v_max_f32 {v(c)}, {v(c)}, {v(c+1)}")
    crosslane_max(A, [vC + 4 * qt for qt in range(nq)], vT)
    for qt in range(nq):
        b = vS + 8 * qt; c = vC + 4 * qt
        for e in range(8): A.e(f"v_sub_f32 {v(b+e)}, {v(b+e)}, {v(c)}")
        for e in (3, 2, 1, 0): A.e(f"v_sub_f32 {v(c+e)}, 0, {v(c)}")

NLOOP = {4: 15, 3: 13}
def attn_slots(nq):
    P = 17 * nq; NT = 34
    slots = [Slot() for _ in range(NT * P)]
    E = [2 * e - 4 for e in range(8 * nq)]
    Em = set(x % P for x in E)
    others = [j for j in range(P) if j not in Em]
    BARP = 8 * nq - 2
    aft = [j for j in others if j > BARP]
    kpos = aft[:8]
    seq = aft[12 if nq == 4 else 8:] + [j + P for j in others if j < BARP]
    vpos = [x for x in seq if x % 2 == 1][:16] if nq == 4 else seq[:16]
    assert vpos[-1] + 6 <= P + BARP, vpos
    peel = 2 * (NLOOP[nq] + 1) * P
    unit = 0
    for T in range(NT):
        g = T * P
        if T < 32:
            for i, m in enumerate(qk_list(T, nq)): slots[g + i].m = m
        if 0 < T <= 32: slots[g - 1].sal.append(lambda A: A.wait_lds(("K", 7)))
        Tp = T - 2
        if 0 <= Tp < 32:
            pb = vP + 16 * (Tp % 2); k = 8 * nq
            for t in range(8):
                for qt in range(nq):
                    d = a(aO + 32 * qt + 4 * t, 4)
                    slots[g + k].m = mfma(d, a(aV + 4 * t, 4), v(pb + 4 * qt, 4), d); k += 1
            for qt in range(nq):
                d = a(aL + 4 * qt, 4)
                slots[g + k].m = mfma(d, v(vONE, 4), v(pb + 4 * qt, 4), d); k += 1
            for i in range(16): slots[g - P + vpos[i]].mem.append(v_read(Tp, i))
            slots[g + BARP].sal.append(lambda A: A.wait_lds(("V", 15)))
        Ts = T - 1
        if 0 <= Ts < 32:
            sb = vS + 32 * (Ts % 2); pb = vP + 16 * (Ts % 2)
            for e in range(8 * nq):
                slots[g + E[e]].valu.append(f"v_exp_f32 {v(sb+e)}, {v(sb+e)}")
                if e % 2: slots[g + E[e] + 1].valu.append(f"v_cvt_pk_bf16_f32 {v(pb+e//2)}, {v(sb+e-1)}, {v(sb+e)}")
        if T < 32:
            for f in range(8): slots[g + kpos[f]].mem.append(k_read(T + 1, f))
        if T < 32 and T % 2 == 1:
            n = T // 2
            if nq == 3:
                if g < peel:
                    for k, grp in enumerate(dq_landed()): slots[g + BARP - 7 + k].sal += grp
                    def chk(A):
                        A.e(f"s_cbranch_scc0 L_dqwait_{REGION[0]}")
                        A.label(f"L_dqok_{REGION[0]}")
                    slots[g + BARP].sal.append(chk)
                    slots[g + BARP + 1].sal += [f"s_cmp_lt_u32 {s(sNEED)}, {(CFG['lim1n'] + 1) * SLOT}", f"s_cselect_b32 {s(sVM)}, {(CFG['limr'] - CFG['lim1']) // 512}, 0"]
                    slots[g + BARP + 2].sal += [f"s_lshl_b32 {s(sVM)}, {s(sVM)}, 9", f"s_sub_u32 {s(sLIM)}, {s(sLIM)}, {s(sVM)}"]
                    slots[g + BARP + 3].sal += [f"s_add_u32 {s(sLIM)}, {s(sLIM)}, {CFG['limr']}", f"s_add_u32 {s(sVM)}, {s(sNEED)}, {4*SLOT}"]
                    slots[g + BARP + 4].sal += [f"s_min_u32 {s(sLIM)}, {s(sLIM)}, {s(sVM)}", f"s_min_u32 {s(sLIM)}, {s(sLIM)}, {16*SLOT}",
                                                f"s_add_u32 {s(sNEED)}, {s(sNEED)}, {SLOT}"]
                else: slots[g + BARP].sal.append(lambda A, n=n: A.wait_vm(("u", 8 * (n - 3) - 1)))
            slots[g + BARP].sal.append("s_barrier")
            slots[g].sal += [f"s_cmp_eq_u32 {s(sKOFF)}, {4*SLOT}", f"s_cselect_b32 {s(sDK)}, {s(sM4)}, {SLOT}"]
            slots[g + 1].sal.append(f"s_add_u32 {s(sKOFF)}, {s(sKOFF)}, {s(sDK)}")
            cv = set((x + 1) % P for k, x in enumerate(E) if k % 2)
            free = [j for j in others if j not in cv]
            kfree = [j for j in free if 2 < j < kpos[0]][:4]
            for i in range(4): slots[g + kfree[i]].valu.append(f"v_add_u32 {v(vKA+i)}, {s(sDK)}, {v(vKA+i)}")
            vfree = [j for j in free if vpos[-1] - P < j < vpos[0] and j not in kfree]
            while len(vfree) < 8: vfree = sorted(vfree + vfree[:8 - len(vfree)])
            for i in range(8): slots[g + vfree[i]].valu.append(f"v_add_u32 {v(vVA+i)}, {s(sDK)}, {v(vVA+i)}")
            if nq == 3:
                PP = {2: [78, 132], 3: [78, 110, 140], 4: [78, 106, 132, 156], 5: [78, 105, 122, 139, 156]}[CFG["npoll"]]
                for u, pp in enumerate(PP):
                    p = g - P + pp
                    if p >= peel: break
                    pc = dq_pieces(f"{u}")
                    pc = [pc[0] + pc[1], pc[2] + pc[3], pc[4] + pc[5]] + pc[6:]
                    assert not any((p + k) % (2 * P) in (0, 1, 2, P, P + 1, 2 * P - 3, 2 * P - 2, 2 * P - 1) for k in range(len(pc)))
                    assert p + len(pc) <= g + 2 * P + BARP - 7 and not any(isinstance(x, str) for k in range(len(pc)) for x in slots[p + k].sal), (u, p - g)
                    for k, grp in enumerate(pc): slots[p + k].sal += grp
    if nq == 3:
        freeat = {0: 12, 1: 13, 2: 14, 3: 15, 4: 11, 5: 12, 6: 13, 7: 14, 8: 15}
        byb = {13: [], 14: [], 15: []}
        for gidx in range(72):
            w, gi = gidx // 18, gidx % 18
            ks, j = 8 * w + gi // 3, gi % 3
            byb[max(13, freeat[gidx * 2048 // SLOT])] += wo_group(f"s_mov_b32 m0, {gidx*2048}", f"s_mov_b32 {s(sT3)}, {ks*36864 + 64*j}", "wo1")
        b14 = 29 * P + BARP; b15 = 31 * P + BARP
        cand = [p for p in range(peel + CFG.get("wostart", 40), b15 - 1)]
        o1 = byb[13] + byb[14]
        n1 = nmem(o1)
        pos = [cand[k * len(cand) // n1] for k in range(n1)]
        assert pos[n1 - nmem(byb[14])] > b14 + 1
        place_ops(slots, pos, o1)
        n2 = nmem(byb[15]); room = 32 * P - 1 - (b15 + 2)
        place_ops(slots, [b15 + 2 + 2 * (k // 2) * room // n2 for k in range(n2)], byb[15])
    return slots, P

def fix_nomfma(slots):
    for sl in slots:
        if sl.m is None and (sl.valu or sl.mem): sl.sal.insert(0, "s_nop 0")

def attention(A, nq):
    R = f"q{nq}"
    slots, P = attn_slots(nq)
    prologue(A, nq, slots, P)
    F = Asm()
    F.label(f"L_attn_{R}")
    for i in range(8 * nq): slots[i].m = None
    pro = slots[8 * nq:2 * P]; fix_nomfma(pro)
    for sl in slots[:8 * nq]:
        for f in sl.mem: f(F)
    REGION[0] = "p"
    emit_slots(F, pro)
    F.e(f"s_branch L_steady_{R}")
    assert F.lds[-15:] == A.lds[-15:]
    A.e(f"s_waitcnt vmcnt({0 if nq == 4 else 32})")
    prewarm_flags(A)
    A.e(CMP_NON); A.e("s_nop 4"); A.e(f"s_cbranch_vccnz L_non{nq}_spin"); A.label(f"L_non{nq}_ok")
    spin(F, f"non{nq}", LD_NON, CMP_NON)
    A.label(f"L_steady_{R}")
    if nq == 3: census(A)
    REGION[0] = "l"
    NL = NLOOP[nq]
    A.e(f"s_mov_b32 {s(sCNT)}, {NL}")
    stamp(A, "loop")
    B = Asm(); B.lds = list(A.lds); B.vm = list(A.vm); texts = []
    for n in range(1, NL + 1):
        B.lines = []; emit_slots(B, slots[2 * n * P:2 * (n + 1) * P]); texts.append(B.text())
    assert all(t == texts[0] for t in texts), "steady state mismatch"
    A.raw(".p2align 6")
    A.label(f"L_loop_{R}")
    body = slots[2 * P:4 * P]
    body[-3].sal.append(f"s_sub_u32 {s(sCNT)}, {s(sCNT)}, 1")
    body[-2].sal.append(f"s_cmp_lg_u32 {s(sCNT)}, 0")
    if nq == 3 and CFG["wotouch"] == "loop":
        def tb(A):
            A.e(f"s_cmp_eq_u32 {s(sCNT)}, {CFG.get('wtit', 2)}")
            A.e("s_cbranch_scc0 L_nowt")
            wotouch(A)
            A.label("L_nowt")
        body[2].sal.append(tb)
    if nq == 3 and CFG["wotouch"] == "spread":
        lo = CFG.get("wtit", 5)
        def tb(A):
            A.e(f"s_sub_u32 {s(sT0)}, {s(sCNT)}, {lo}")
            A.e(f"s_cmp_lt_u32 {s(sT0)}, 5")
            A.e("s_cbranch_scc0 L_nowt")
            A.vmem(f"global_load_dword v255, v254, s[88:89]{CFG['nt_wt']}", "wot")
            A.e(f"v_add_u32 v254, 7168, v254")
            A.label("L_nowt")
        body[2].sal.append(tb)
    if nq == 3 and CFG["wotouch"] == "dyn":
        def br(A):
            A.e("s_cbranch_scc0 L_nowt")
            for h in range(3):
                for j in range(6): A.vmem(f"global_load_dwordx4 v[240:243], v254, s[88:89] offset:{1024*j - 4096}{CFG['nt_wt']}", "wot")
                A.e("v_add_u32 v254, 6144, v254")
            A.e(f"s_add_u32 {s(sT2)}, {s(sT2)}, 1")
            A.label("L_nowt")
        body[1].sal += [f"s_cmp_lt_u32 {s(sT2)}, {s(sQ)}"]
        body[2].sal += [br]
    if CFG["itst"] and nq == 3:
        B7 = P + 8 * nq - 2 - 1
        body[B7].sal = [f"s_add_u32 s64, {s(sQ)}, {s(sNEED)}", f"s_sub_u32 s64, s64, {s(sVM)}", f"v_cmp_eq_u32 vcc, {s(sCNT)}, {v(vLANE)}",
                        "v_mov_b32 v61, s64", "s_nop 0", "v_cndmask_b32 v62, v62, v61, vcc"] + body[B7].sal
    if CFG["itst"] and nq == 4:
        body[P + 8*nq].sal += ["s_memrealtime s[64:65]"]
        body[P + 8*nq + 24].sal += ["s_waitcnt lgkmcnt(0)", f"v_cmp_eq_u32 vcc, {s(sCNT)}, {v(vLANE)}", "v_mov_b32 v61, s64", "s_nop 0", "v_cndmask_b32 v62, v62, v61, vcc"]
    emit_slots(A, body)
    A.e(f"s_cbranch_scc1 L_loop_{R}")
    A.lds = B.lds; A.vm = B.vm
    if nq == 3:
        A.label("L_dqrest")
        emit_list(A, dq_prep())
        A.e(f"s_cmp_lt_u32 {s(sQ)}, {16*SLOT}")
        A.e("s_cbranch_scc0 L_dqdone")
        dq_block(A)
        A.e(f"s_cmp_eq_u32 {s(sP)}, {5*SLOT}")
        A.e(f"s_cselect_b32 {s(sP)}, 0, {s(sP)}")
        A.e("s_branch L_dqrest")
        A.label("L_dqdone")
        A.vm = [("u", 87)] + [("u", 95)] * 32
    if nq == 3 and CFG["wotouch"] == "t28": wotouch(A)
    if nq == 3 and CFG["wotouch"] in ("dyn", "end"):
        A.label("L_wtrest")
        A.e(f"s_cmp_lt_u32 {s(sT2)}, {s(sQ)}")
        A.e("s_cbranch_scc0 L_wtdone")
        for h in range(3):
            for j in range(6): A.e(f"global_load_dwordx4 v[240:243], v254, s[88:89] offset:{1024*j - 4096}{CFG['nt_wt']}")
            A.e("v_add_u32 v254, 6144, v254")
        A.e(f"s_add_u32 {s(sT2)}, {s(sT2)}, 1")
        A.e("s_branch L_wtrest")
        A.label("L_wtdone")
        A.vm += ["wot"] * 36
    emit_slots(A, slots[2 * (NL + 1) * P:32 * P])
    stamp(A, "loopend")
    tail(A, nq, slots, P)
    return F.text()

def tail(A, nq, slots, P):
    M = []; V = []; X = []
    X.append(Op(f"s_mov_b64 {s(sOV,2)}, 0", 0))
    for sl in slots[32 * P:32 * P + 8 * nq - 2]:
        for x in sl.mem: X.append(Op(x))
    def v31(i):
        t, j = i // 2, i % 2
        return lambda A: A.ds(f"ds_read_b64_tr_b16 {a(aK+4*t+2*j,2)}, {v(vVA+t)} offset:{8192+4096*j}", ("V31", i))
    for i in range(4): X.append(Op(v31(i)))
    X.append(Op(lambda A: A.wait_lds(("V", 15)), 0, name="v30"))
    for i in range(4, 16): X.append(Op(v31(i)))
    X.append(Op(lambda A: A.wait_lds(("V31", 15)), 0, deps=[(("pv", 0, 1), 0)], name="v31"))
    X.append(Op(f"s_mov_b32 {s(sT0)}, {f32hex(2.0**40)}", 0, name="thr"))
    def pv(T, qt):
        pb = vP + 16 * T + 4 * qt
        deps = [("v30", 0)] if T == 0 else [("v31", 0), (("p", qt), 2)]
        d = a(aL + 4 * qt, 4)
        M.append(Op(mfma(d, v(vONE, 4), v(pb, 4), d), deps=deps, name=("sum", T, qt)))
        for t in range(8):
            d = a(aO + 32 * qt + 4 * t, 4)
            M.append(Op(mfma(d, a((aK if T else aV) + 4 * t, 4), v(pb, 4), d), name=("pv", T, qt) if t == 7 else ("pvt", T, qt, t)))
    def soft(qt):
        sb = vS + 32 + 8 * qt; pb = vP + 16 + 4 * qt
        for e in range(2 if qt == 0 else 0, 8): V.append(Op(f"v_exp_f32 {v(sb+e)}, {v(sb+e)}", 2, name=("e", qt, e)))
        for j in range(1 if qt == 0 else 0, 4):
            V.append(Op(f"v_cvt_pk_bf16_f32 {v(pb+j)}, {v(sb+2*j)}, {v(sb+2*j+1)}", deps=[(("e", qt, 2*j+1), 1)], name=("p", qt) if j == 3 else None))
    def pub_a(A):
        A.e(f"s_cmp_lg_u32 {s(sSECOND)}, 0")
        A.e(f"s_cselect_b64 {s(sOV,2)}, 0, {s(sOV,2)}")
        A.e(f"s_cmp_eq_u64 {s(sOV,2)}, 0")
        A.e(f"s_cselect_b32 {s(sT1)}, {s(sFL)}, {WS_SIZE}")
        A.wait_vm(("st", 0))
        A.vmem(f"buffer_store_dwordx2 {v(vNON,2)}, {v(vFW)}, {s(sWS,4)}, {s(sT1)} offen sc1", "pubA")
        for r in (sFL, sOS, sOS + 1): A.e(f"s_cselect_b32 {s(r)}, {WS_SIZE}, {s(r)}")
    cnt = [0]
    def norm(qt):
        r = vT + 2 * (qt % 2)
        V.append(Op(f"v_accvgpr_read_b32 {v(r)}, {a(aL+4*qt)}", deps=[(("sum", 1, qt), 8), ("thr", 0)]))
        V.append(Op(f"v_cmp_ngt_f32 vcc, {s(sT0)}, {v(r)}", name=("cmp", qt)))
        V.append(Op(f"v_rcp_f32 {v(r)}, {v(r)}", 2))
        for u in range(4):
            k = cnt[0]; cnt[0] += 1
            tb = vS + 8 * (k % 4); pb = vC + 4 * (k % 8)
            for j in range(8):
                t = 2 * u + j // 4
                V.append(Op(f"v_accvgpr_read_b32 {v(tb+j)}, {a(aO + 32*qt + 8*u + j)}", deps=[(("pv", 1, qt) if t == 7 else ("pvt", 1, qt, t), 8)]))
            if u == 0:
                if qt < 2: V.append(Op(f"s_or_b64 {s(sOV,2)}, {s(sOV,2)}, vcc", deps=[(("cmp", qt), 4)]))
                V.append(Op(f"v_addc_co_u32 {v(vT+4)}, vcc, 0, {v(vT+4)}, vcc", deps=[(("cmp", qt), 2)]))
            if k >= (5 if nq == 4 else 3):
                for j in range(4): V.append(Op(f"v_pk_mul_f32 {v(tb+2*j,2)}, {v(tb+2*j,2)}, {v(r,2)} op_sel_hi:[1,0]"))
            else:
                for j in range(8): V.append(Op(f"v_mul_f32 {v(tb+j)}, {v(tb+j)}, {v(r)}"))
            for j in range(4):
                V.append(Op(f"v_cvt_pk_bf16_f32 {v(pb+j)}, {v(tb+2*j)}, {v(tb+2*j+1)}", deps=[(("st", k - 8), 2)] if k >= 8 else [], name=("o", k) if j == 3 else None))
            X.append(Op(lambda A, pb=pb, u=u, qt=qt: A.vmem(f"buffer_store_dwordx4 {v(pb,4)}, {v(vOO)}, {s(sWS,4)}, {s(sOS+qt)} offen offset:{1024*u} sc1", ("st", qt // 2)),
                        2, deps=[(("o", k), 0)], name=("st", k)))
            if k == min(CFG["pubA"], 4 * nq - 1): X.append(Op(pub_a))
    V.append(Op(f"v_mov_b32 {v(vT+4)}, 0"))
    for qt in range(nq): soft(qt)
    pv(0, 0); pv(0, 1); pv(1, 0); pv(1, 1)
    for qt in range(2, nq): pv(0, qt); pv(1, qt)
    for qt in range(nq): norm(qt)
    merge(A, M, V, X)
    stamp(A, "pvdone")

def wo_read(ksl, n, jj):
    gi = ksl * 3 + n // 2
    off = 2048 * (gi if gi < 18 else gi - 18) + 1024 * jj
    return lambda A: A.ds(f"ds_read_b64_tr_b16 {a((ksl*6+n)*4 + 2*jj, 2)}, {v(vWT + n % 2)} offset:{off}", ("W", ksl))

def wo2(A):
    A.e(f"s_mul_i32 {s(sT2)}, {s(sW)}, {8*36864}")
    for gi in range(18, 24):
        emit_ops(A, wo_group(f"s_add_u32 m0, {s(sWOW)}, {2048*(gi-18)}", f"s_add_u32 {s(sT3)}, {s(sT2)}, {(gi//3)*36864 + 64*(gi%3)}", "wo2"))
def epilogue(A, nq):
    R = f"q{nq}"
    if nq == 3: A.wait_vm("wo1")
    A.e("s_barrier")
    stamp(A, "barX")
    A.e(f"v_lshlrev_b32 {v(vT+5)}, 2, v0")
    A.e(f"v_add_u32 {v(vT+5)}, {OVF}, {v(vT+5)}")
    A.ds(f"ds_write_b32 {v(vT+5)}, {v(vT+4)}", "flag")
    for ksl in range(6):
        for n in range(6):
            for jj in range(2): wo_read(ksl, n, jj)(A)
        if ksl == 3 and CFG["wo2early"]:
            A.wait_lds(("W", 1))
            wo2(A)
    A.e(f"v_add_u32 {v(vT+5)}, {OVF}, {v(vOO)}")
    A.e("s_waitcnt lgkmcnt(0)")
    A.e("s_barrier")
    stamp(A, "barY")
    A.e(f"ds_read_b128 {v(vT,4)}, {v(vT+5)}")
    A.e("s_waitcnt lgkmcnt(0)")
    A.e(f"v_or_b32 {v(vT)}, {v(vT)}, {v(vT+1)}")
    A.e(f"v_or3_b32 {v(vT)}, {v(vT)}, {v(vT+2)}, {v(vT+3)}")
    A.e(f"v_cmp_ne_u32 vcc, 0, {v(vT)}")
    A.e(f"s_cmp_lg_u32 {s(sSECOND)}, 0")
    A.e("s_cbranch_scc1 L_phase2")
    A.e("s_nop 2")
    A.e(f"s_cbranch_vccnz L_fallback_{R}")
    if nq == 4: A.e("s_branch L_phase2")
    return ""

def fallback(A, nq):
    R = f"q{nq}"
    A.label(f"L_fallback_{R}")
    A.e(f"s_mov_b32 {s(sSECOND)}, 1")
    attn_init(A)
    for qt in range(nq): A.e(f"v_mov_b32 {v(vC+4*qt)}, 0xff800000")
    A.e(f"s_mov_b32 {s(sT2)}, {s(sW4K)}")
    A.e(f"s_mov_b32 {s(sCNT)}, 16")
    A.e("s_waitcnt vmcnt(0)")
    A.label(f"L_fb_loop_{R}")
    A.e("s_barrier")
    emit_ops(A, kv_quarter("K", f"s_add_u32 m0, {s(sW4K)}, {KPOS(0)}", f"s_mov_b32 {s(sT3)}, {s(sT2)}", "fb"))
    A.e("s_waitcnt vmcnt(0)")
    A.e("s_barrier")
    for T in range(2):
        for f in range(8): k_read(T, f)(A)
        A.e("s_waitcnt lgkmcnt(0)")
        for m in qk_list(T, nq, czero=True): A.e(m)
        A.e("s_nop 7")
        for qt in range(nq):
            b = vS + 32 * T + 8 * qt; c = vC + 4 * qt
            for e in range(0, 8, 2): A.e(f"v_max3_f32 {v(c)}, {v(c)}, {v(b+e)}, {v(b+e+1)}")
    A.e(f"s_add_u32 {s(sT2)}, {s(sT2)}, {SLOT}")
    A.e(f"s_sub_u32 {s(sCNT)}, {s(sCNT)}, 1")
    A.e(f"s_cmp_lg_u32 {s(sCNT)}, 0")
    A.e(f"s_cbranch_scc1 L_fb_loop_{R}")
    crosslane_max(A, [vC + 4 * qt for qt in range(nq)], vT)
    for qt in range(nq):
        c = vC + 4 * qt
        for e in (3, 2, 1, 0): A.e(f"v_sub_f32 {v(c+e)}, 0, {v(c)}")
    A.e("s_barrier")
    for kind, n in (("K", 0), ("K", 1), ("V", 0), ("K", 2), ("V", 1), ("K", 3), ("V", 2), ("K", 4), ("V", 3)):
        emit_ops(A, kv_own(kind, n))
    zero_acc(A, nq); zero_l(A, nq)
    A.e(f"s_mov_b32 {s(sP)}, {KPOS(5)}")
    A.e(f"s_mov_b32 {s(sQ)}, {4*SLOT}")
    A.e(f"s_mov_b32 {s(sLIM)}, {4*SLOT}")
    A.e(f"s_mov_b32 {s(sNEED)}, {SLOT}")
    A.e("s_waitcnt vmcnt(0)")
    A.e("s_barrier")
    for f in range(8): k_read(0, f)(A)
    A.e("s_waitcnt lgkmcnt(0)")
    for m in qk_list(0, nq): A.e(m)
    A.e("s_nop 7")
    A.e(f"s_branch L_attn_{R}")

def spin(A, name, load, cmp_):
    A.label(f"L_{name}_spin")
    A.e(f"s_mov_b32 {s(sCNT)}, {CFG['spin']}")
    A.label(f"L_{name}_again")
    A.e(load)
    A.e("s_waitcnt vmcnt(0)")
    A.e(cmp_)
    A.e(f"s_sub_u32 {s(sCNT)}, {s(sCNT)}, 1")
    A.e("s_nop 2")
    A.e(f"s_cbranch_vccz L_{name}_ok")
    A.e(f"s_sleep {CFG.get('slp', 1)}")
    A.e(f"s_cmp_lg_u32 {s(sCNT)}, 0")
    A.e(f"s_cbranch_scc1 L_{name}_again")
    A.e(f"s_branch L_{name}_ok")

def phase2(A):
    vF = vT
    vAC = 64
    vTR = 112
    vPA = 192
    vRR2 = 32
    vOH = 37
    PB = CFG["pb"]
    vO4 = 38
    sPS2 = sCH; sPF2 = sCH + 2
    aOF = 192
    ld_non = f"buffer_load_dwordx2 {v(vNON,2)}, off, {s(sDBG,4)}, 0 offset:128 sc1"
    cmp_non = f"v_cmp_eq_u64 vcc, 0, {v(vNON,2)}"
    ld_fo = f"buffer_load_dwordx2 {v(vF,2)}, {v(vFO)}, {s(sWS,4)}, 0 offen sc1"
    ld_fa = f"buffer_load_dwordx2 {v(vF,2)}, {v(vFA)}, {s(sWS,4)}, 0 offen sc1"
    ld_fb = f"buffer_load_dwordx2 {v(vF,2)}, {v(vFA+1)}, {s(sWS,4)}, 0 offen sc1"
    cmp_f = f"v_cmp_ne_u64 vcc, {v(vF,2)}, {v(vNON,2)}"
    def check(A, name, cmp_):
        A.e(cmp_); A.e("s_nop 4"); A.e(f"s_cbranch_vccnz L_{name}_spin"); A.label(f"L_{name}_ok")
    A.label("L_phase2")
    pub_b = f"buffer_store_dwordx2 {v(vNON,2)}, {v(vFW)}, {s(sWS,4)}, {s(sFL+1)} offen sc1"
    ld_fo2 = ld_fo.replace(" offen", f" offen offset:{1 << (FSH - 1)}")
    A.e(f"s_cmp_lt_u32 {s(sIDX)}, 30")
    A.e("s_cbranch_scc1 L_tile")
    A.e("s_waitcnt vmcnt(0)")
    A.e(pub_b)
    A.e("s_branch L_fin")
    A.label("L_tile")
    A.vmem(ld_fo, "fo")
    A.e(f"v_and_b32 {v(vFA+1)}, 0xffffff7f, {v(vFA)}")
    A.e(f"v_add_u32 {v(vFA+1)}, 256, {v(vFA+1)}")
    for r in range(5): A.e(f"v_add_u32 {v(vRR2+r)}, {2*WOW}, {v(vRR+r)}")
    A.e(f"v_add_u32 {v(vO4)}, 4096, {v(vOO)}")
    A.e(f"v_lshrrev_b32 {v(vOH)}, 5, {v(vLANE)}")
    A.e(f"v_lshlrev_b32 {v(vOH)}, 30, {v(vOH)}")
    A.e(f"v_lshl_add_u32 {v(vOH)}, {v(vLANE)}, {3 if PB else 4}, {v(vOH)}")
    if not PB: A.e(f"v_add_u32 {v(vOH)}, 4096, {v(vOH)}")
    A.e("s_waitcnt vmcnt(1)")
    A.vmem(pub_b, "pubB")
    if not CFG["wo2early"]: wo2(A)
    A.wait_vm("fo")
    check(A, "fo", cmp_f)
    stamp(A, "oready")
    D = CFG["D"]; NB = 16
    NST = 96
    slots = [Slot() for _ in range(NST * 6)]
    def load(st):
        q, i, ksl = st // 24, (st // 8) % 3, st % 8
        ops = []
        if ksl % 4 == 0: ops.append(("sal", f"s_add_u32 {s(sT1)}, {s(sPO+q)}, {OM*i + 1024*ksl}"))
        ops.append(("mem", lambda A: A.vmem(
            f"buffer_load_dwordx4 {a(aOF + 4*(st%NB), 4)}, {v(vOO)}, {s(sWS,4)}, {s(sT1)} offen offset:{1024*(ksl%4)}{CFG['nt_ol']}", ("o", st))))
        return ops
    for st in range(D): emit_ops(A, load(st))
    if not CFG["wo2early"]: A.wait_vm("wo2")
    for ksl in (6, 7):
        for n in range(6):
            for jj in range(2): wo_read(ksl, n, jj)(A)
    A.wait_vm(("o", 0))
    def acc(blk, n): return vAC + 24 * (blk % 2) + 4 * n
    for st in range(NST):
        blk, ksl = st // 8, st % 8
        for n in range(6):
            d = v(acc(blk, n), 4)
            slots[6 * st + n].m = mfma(d, a((ksl * 6 + n) * 4, 4), a(aOF + 4 * (st % NB), 4), d if ksl else "0")
        if st: slots[6 * st - 1].sal.append(lambda A, st=st: A.wait_vm(("o", st)))
    pB = 6 * (40 - D)
    slots[pB - 50].mem.append(lambda A: A.vmem(ld_fo2, "fo2"))
    slots[pB - 2].valu += [lambda A: A.wait_vm("fo2"), lambda A: check(A, "fo2", cmp_f)]
    LE = CFG.get("le", 15)
    nxt = D
    for st in range(NST):
        want = min(NST, st + 1 + (D if st < 62 else min(LE, D + (st - 62) // 2)))
        k = 0
        while nxt < want:
            place_ops(slots, [6 * st + 1 + 3 * k], load(nxt)); nxt += 1; k += 1
    slots[34].sal.append("s_waitcnt lgkmcnt(0)")
    def red_write(blk, n):
        return lambda A: A.ds(f"ds_write_b128 {v(vRW - n % 2)}, {v(acc(blk, n), 4)} offset:{RHALF*((blk//3)%2) + 16*(blk%3)*RSTR + 128*(n//2)}", ("rw", blk))
    def treg(r, src): return vTR + 16 * r + 4 * src
    def red_read(q, r, src):
        return lambda A: A.ds(f"ds_read_b128 {v(treg(r, src), 4)}, {v((vRR if src < 2 else vRR2)+r)} offset:{WOW*(src%2) + RHALF*(q%2)}", ("rr", q, r))
    def red_adds(r):
        t = [treg(r, k) for k in range(4)]
        return [f"v_add_f32 {v(t[0]+e)}, {v(t[0]+e)}, {v(t[1]+e)}" for e in range(4)] + \
               [f"v_add_f32 {v(t[2]+e)}, {v(t[2]+e)}, {v(t[3]+e)}" for e in range(4)] + \
               [f"v_add_f32 {v(t[0]+e)}, {v(t[0]+e)}, {v(t[2]+e)}" for e in range(4)]
    WSP = CFG.get("wsp", 4); WSP2 = CFG.get("wsp2", 4); R2 = CFG.get("r2", 130)
    for blk in range(11):
        first = 48 * (blk + 1) + (3 if (blk % 3 or blk == 0) else 14)
        for n in range(6): slots[first + (WSP2 if blk == 8 else WSP) * n].mem.append(red_write(blk, n))
        slots[48 * (blk + 2) - 2].sal.append(lambda A, blk=blk: A.wait_lds(("rw", blk)))
    for q in range(3):
        base = 144 * (q + 1)
        R1 = 4 + 6 * (WSP2 if q == 2 else WSP) + (4 if q == 2 and WSP2 < 4 else 0)
        if CFG["stamps"]: slots[base].sal.append(lambda A, q=q: stamp(A, f"p{q+1}"))
        slots[base + R1].sal += ["s_waitcnt lgkmcnt(0)", "s_barrier"]
        for k in range(20):
            if not CFG.get("x_nor") or k % 4 == 0: slots[base + R1 + 1 + k].mem.append(red_read(q, k // 4, k % 4))
        sal = [f"s_add_u32 {s(sT0)}, {s(sHG)}, {q+1}", f"s_and_b32 {s(sT0)}, {s(sT0)}, 3", f"s_sub_u32 {s(sT0)}, {s(sT0)}, {s(sHG)}",
               f"s_mul_i32 {s(sPS)}, {s(sT0)}, {2*12*5120}", f"s_add_u32 {s(sPS)}, {s(sPS)}, {s(sPL)}", f"s_add_u32 {s(sPS2 + q % 2)}, {s(sPS)}, {q*4*5120}",
               f"s_lshl_b32 {s(sT0)}, {s(sT0)}, 1", f"s_add_u32 {s(sT0)}, {s(sT0)}, s2", f"s_lshl_b32 {s(sT0)}, {s(sT0)}, 11",
               f"s_add_u32 {s(sT0)}, {s(sT0)}, {WS_PFLAG + 128*q}", f"s_lshl_b32 {s(sT2)}, {s(sW)}, 9",
               f"s_add_u32 {s(sPF2 + q % 2)}, {s(sT0)}, {s(sT2)}"]
        for k, x in enumerate(sal): slots[base - 14 + 2 * k].sal.append(x)
        p = base + R1 + 12
        for r in range(5):
            slots[p].sal.append(lambda A, q=q, r=r: A.wait_lds(("rr", q, r)))
            t = treg(r, 0); pk = treg(r & ~1, 1) + 2 * (r & 1)
            ls = red_adds(r)
            TG = CFG["tag"] and q == 2
            if TG:
                pk = treg(r, 1)
                ls = ls[:8] + [f"v_mov_b32 {v(pk+1)}, {v(vNON)}", f"v_mov_b32 {v(pk+3)}, {v(vNON)}"] + ls[8:] + \
                     [f"v_cvt_pk_bf16_f32 {v(pk)}, {v(t)}, {v(t+1)}", f"v_cvt_pk_bf16_f32 {v(pk+2)}, {v(t+2)}, {v(t+3)}"]
            elif PB: ls += [f"v_cvt_pk_bf16_f32 {v(pk)}, {v(t)}, {v(t+1)}", f"v_cvt_pk_bf16_f32 {v(pk+1)}, {v(t+2)}, {v(t+3)}"]
            for l in ls:
                while len(slots[p].valu) + len(slots[p].mem) >= 2: p += 1
                slots[p].valu.append(l)
            p += 1
            so = s(sPS2 + q % 2)
            if TG:
                txt = f"buffer_store_dwordx4 {v(pk, 4)}, {v(vOO if r < 4 else vO4)}, {s(sWS,4)}, {so} offen offset:{1024*(r%4)} sc1"
            elif PB:
                if r in (1, 3): txt = f"buffer_store_dwordx4 {v(treg(r-1, 1), 4)}, {v(vOO)}, {s(sWS,4)}, {so} offen offset:{1024*(r//2)} sc1"
                elif r == 4: txt = f"buffer_store_dwordx2 {v(pk, 2)}, {v(vOH)}, {s(sWS,4)}, {so} offen offset:2048 sc1"
                else: continue
            else:
                txt = f"buffer_store_dwordx4 {v(t, 4)}, {v(vOO if r < 4 else vOH)}, {s(sWS,4)}, {so} offen offset:{1024*(r%4)} sc1"
            slots[p].mem.append(lambda A, q=q, txt=txt: A.vmem(txt, ("ps", q)))
        if TG: continue
        pf = p + CFG.get("ackd", 50) if q < 2 else base + R2
        slots[pf].sal += [lambda A, q=q: A.wait_vm(("ps", q))]
        slots[pf].mem.append(lambda A, q=q: A.vmem(f"buffer_store_dwordx2 {v(vNON,2)}, {v(vFW)}, {s(sWS,4)}, {s(sPF2 + q % 2)} offen sc1", "pub"))
    def ploads(slot):
        ops = [("sal", f"s_add_u32 {s(sT3)}, {s(sPL)}, {4 * 5120 * slot}")]
        b = vPA + 20 * slot
        if CFG["tag"] and slot == 2:
            L = [f"buffer_load_dwordx4 {v(b+4*r, 4)}, {v(vOO if r < 4 else vO4)}, {s(sWS,4)}, {s(sT3)} offen offset:{1024*(r%4)} sc1" for r in range(5)]
        elif PB:
            L = [f"buffer_load_dwordx4 {v(b+4*k, 4)}, {v(vOO)}, {s(sWS,4)}, {s(sT3)} offen offset:{1024*k} sc1" for k in range(2)]
            L.append(f"buffer_load_dwordx2 {v(b+8, 2)}, {v(vOH)}, {s(sWS,4)}, {s(sT3)} offen offset:2048 sc1")
        else:
            L = [f"buffer_load_dwordx4 {v(b+4*r, 4)}, {v(vOO if r < 4 else vOH)}, {s(sWS,4)}, {s(sT3)} offen offset:{1024*(r%4)} sc1" for r in range(5)]
        return ops + [("mem", lambda A, x=x: A.vmem(x, ("pl", slot))) for x in L]
    def padd(A, slot, r, dst, first=False):
        b = vPA + 20 * slot
        for e in range(4):
            if PB:
                src = (b + 4 * r + 2 * (e // 2)) if (CFG["tag"] and slot == 2) else (b + 2 * r + e // 2); tmp = dst + e if first else vT + 2 + e
                A.e(f"v_and_b32 {v(tmp)}, 0xffff0000, {v(src)}" if e % 2 else f"v_lshlrev_b32 {v(tmp)}, 16, {v(src)}")
            else:
                tmp = b + 4 * r + e
                if first: A.e(f"v_mov_b32 {v(dst+e)}, {v(tmp)}")
        if not first:
            for e in range(4): A.e(f"v_add_f32 {v(dst+e)}, {v(dst+e)}, {v(vT+2+e if PB else b+4*r+e)}")
    base = 432
    FA = CFG.get("fa", 44); FC = CFG.get("fc", 100)
    slots[base + FA].mem.append(lambda A: A.vmem(ld_fa, "fa"))
    slots[base + FC].valu += [lambda A: A.wait_vm("fa"), lambda A: check(A, "fa", cmp_f)]
    pl = ploads(0) + ploads(1)
    place_ops(slots, [base + FC + 2 + k for k in range(nmem(pl))], pl)
    if CFG["early"]: slots[base + CFG.get("fbp", 120)].mem.append(lambda A: A.vmem(ld_fb, "fb"))
    emit_slots(A, slots)
    stamp(A, "mmdone")
    TAG = CFG["tag"]
    def tagcmp(A):
        b = vPA + 40; x = vT + 2
        A.e(f"v_xor_b32 {v(x)}, {v(b+1)}, {v(vNON)}")
        for k in range(1, 10):
            A.e(f"v_xor_b32 {v(x+1)}, {v(b+1+2*k)}, {v(vNON)}")
            A.e(f"v_or_b32 {v(x)}, {v(x)}, {v(x+1)}")
        A.e(f"v_cmp_ne_u32 vcc, 0, {v(x)}")
    vSUM = vAC
    def own(A):
        for n in range(6): red_write(11, n)(A)
        for r in range(5): padd(A, 0, r, vSUM + 4 * r, True); padd(A, 1, r, vSUM + 4 * r)
        A.e("s_waitcnt lgkmcnt(0)")
        A.e("s_barrier")
        for k in range(20): red_read(3, k // 4, k % 4)(A)
    if CFG["early"]:
        A.e("s_waitcnt vmcnt(0)")
        A.e(cmp_f); A.e("s_nop 4"); A.e("s_cbranch_vccnz L_fb_late")
        emit_ops(A, ploads(2))
        own(A)
        LATE = Asm()
        LATE.label("L_fb_late")
        LATE.e(ld_fb)
        own(LATE)
        LATE.e("s_waitcnt vmcnt(0)")
        check(LATE, "fb", cmp_f)
        emit_ops(LATE, ploads(2))
        LATE.e("s_branch L_fb_join")
        A.label("L_fb_join")
        stamp(A, "pready")
    else:
        A.vmem(ld_fb, "fb")
        A.wait_vm(("pl", 1))
        A.e("s_nop 0")
        own(A)
        A.wait_vm("fb")
        check(A, "fb", cmp_f)
        stamp(A, "pready")
        emit_ops(A, ploads(2))
    for r in range(5):
        A.wait_lds(("rr", 3, r))
        for l in red_adds(r): A.e(l)
        t = treg(r, 0)
        for e in range(4): A.e(f"v_add_f32 {v(t+e)}, {v(t+e)}, {v(vSUM+4*r+e)}")
    A.e("s_waitcnt vmcnt(0)")
    if TAG:
        ld_fb = "\n    ".join(lines(lambda B: emit_ops(B, ploads(2))))
        cmp_fb = "\n    ".join(lines(tagcmp))
        check(A, "fb", cmp_fb)
        stamp(A, "pready")
    else: cmp_fb = cmp_f
    for r in range(5):
        t = treg(r, 0)
        padd(A, 2, r, t)
        A.e(f"v_cvt_pk_bf16_f32 {v(t)}, {v(t)}, {v(t+1)}")
        A.e(f"v_cvt_pk_bf16_f32 {v(t+1)}, {v(t+2)}, {v(t+3)}")
        A.e(f"buffer_store_dwordx2 {v(t,2)}, {v(vOUT+r)}, {s(sOUT,4)}, 0 offen")
    A.label("L_fin")
    if CFG["stamps"]:
        A.e("s_waitcnt vmcnt(0)")
        stamp(A, "end")
        A.e(f"s_lshl_b32 {s(sT0)}, s2, 2")
        A.e(f"s_add_u32 {s(sT0)}, {s(sT0)}, {s(sW)}")
        A.e(f"s_lshl_b32 {s(sT0)}, {s(sT0)}, 8")
        A.e(f"s_cmp_eq_u32 {s(sT0)}, 0")
        A.e(f"s_cselect_b32 {s(sT1)}, 0, 256")
        A.e(f"s_add_u32 {s(sT0)}, {s(sT0)}, {WS_STAMP}")
        A.e(f"v_lshlrev_b32 v2, 2, {v(vLANE)}")
        A.e(f"buffer_store_dword v63, v2, {s(sWS,4)}, {s(sT0)} offen")
        A.e(f"s_add_u32 {s(sT0)}, {s(sT0)}, 0x40000")
        A.e(f"buffer_store_dword v62, v2, {s(sWS,4)}, {s(sT0)} offen")
        A.e("v_readlane_b32 s64, v63, 0")
        A.e(f"s_mov_b32 {s(sDBG+2)}, 64")
        A.e("s_nop 0")
        A.e("v_subrev_u32 v61, s64, v63")
        A.e(f"buffer_store_dword v61, v2, {s(sDBG,4)}, {s(sT1)} offen")
    if CFG.get("probe"):
        A.e(f"v_readlane_b32 s66, v63, {STAMPS.index(CFG['probe'])}")
        A.e(f"v_readlane_b32 s67, v63, {STAMPS.index(CFG.get('probe0', 'start'))}")
        A.e("v_readlane_b32 s68, v63, 0")
        A.e("s_nop 3")
        A.e("s_sub_u32 s66, s66, s67")
        A.e("s_min_u32 s66, s66, 6000")
        A.e("s_cmp_ge_u32 s2, 240")
        A.e("s_cselect_b32 s66, 0, s66")
        A.e("s_add_u32 s66, s66, 7000")
        A.label("L_pad")
        A.e("s_memrealtime s[64:65]")
        A.e("s_waitcnt lgkmcnt(0)")
        A.e("s_sub_u32 s64, s64, s68")
        A.e("s_cmp_lt_u32 s64, s66")
        A.e("s_cbranch_scc1 L_pad")
    A.label("L_end")
    A.e("s_endpgm")
    spin(A, "fo", ld_fo, cmp_f)
    spin(A, "fo2", ld_fo2, cmp_f)
    spin(A, "fa", ld_fa, cmp_f)
    spin(A, "fb", ld_fb, cmp_fb)
    if CFG["early"]: A.lines += LATE.lines

def kernel():
    A = Asm()
    A.raw(f".globl {KNAME}\n.p2align 8\n.type {KNAME},@function\n{KNAME}:")
    setup(A)
    out = A.text(); fb = ""
    for nq in (4, 3):
        A = Asm()
        A.label(f"L_role_q{nq}")
        qproj(A, nq)
        stamp(A, "qdone")
        fb += attention(A, nq)
        fb += epilogue(A, nq)
        out += A.text()
        F = Asm(); fallback(F, nq)
        if nq == 3: dq_slow(F, "p"); dq_slow(F, "l"); dq_slow(F, "m")
        fb += F.text()
    A = Asm(); phase2(A)
    return out + A.text() + "L_code_end:\n" + fb + f".fill {CFG.get('pad', 64)}, 4, 0xbf800000\nL_text_end:\n"

hdr = open("standalone__mha_block_cached__near_ridge.s.ref").read().split("; Override launch")[0]
txt = hdr + "; @launch grid=(256,1,1) block=(256,1,1) lds=163840\n" \
          + '.amdgcn_target "amdgcn-amd-amdhsa--gfx950"\n.text\n' + kernel() \
          + '.section .rodata,"a"\n' + descriptor(KNAME)
open(sys.argv[1], "w").write(txt)
```

```python
import sys, struct, math
from asmlib import *

CFG = dict(nt_kv=" nt", nt_x="", stamps=False, qkorder="C", qchain=False, dither=True, qpi=True, clus=34, gchain=2, itst=False, rot="rot8", touch="", mulh=1, mulb=2, rmask=7,
           kvq="0,0,0,4,8,12,12,12", kv7=8, pre=2, wo2early=True, woq="0,0,6,6,6,6,6,6", npoll=4, bl=8, pb=True, tag=False, prio=True, fline=True, tord=1, fwarm=2, pubA=15, early=True, lim0=45056, limr=14848, lim1=16384, lim1n=0, vth=16, midpoll=4, kvpos="end", vmw=36, spin=400000, fast=False, warm="v", D=11, wotouch="sl", wl0=12, wl1=60, wostart=70, won1=112, won2=32, nt_wt="", nt_ol=" sc1", selft=False, x_nops=False, x_nored=False, x_nold=False, nt_st=" sc1")
for arg in sys.argv[2:]:
    k, val = arg.split("=")
    CFG[k] = {"True": True, "False": False}.get(val, int(val) if val.lstrip("-").isdigit() else val)
    if k.startswith("nt_"): CFG[k] = (" " + val.replace("+", " ")) if val not in ("", "none") else ""
KNAME = "standalone__mha_block_cached__near_ridge_kernel"

def f32hex(x): return "0x%08x" % struct.unpack("<I", struct.pack("<f", x))[0]
SCALE = math.log2(math.e) / math.sqrt(128.0)

SLOT = 16384
VRING = 5 * SLOT
def KPOS(n): return SLOT * ((n + 3) % 5)
def VPOS(n): return VRING + SLOT * ((n + 4) % 5)
WS0 = 0
XS0 = VRING
def XS(kc): return XS0 + 32768 * ((kc + 1) % 2)
def WS(kc): return WS0 + SLOT * (kc % 3)
WOW = 36864
OVF = 9 * SLOT
RSTR = 384; RHALF = 48 * RSTR
WS_O = 0
OM = 32768
FSH = CFG.get("fsh", 8)
WS_FLAG = 16 << 20
WS_PFLAG = WS_FLAG + (512 << 10)
WS_CENS = WS_FLAG + (1 << 20)
WS_PART = 20 << 20
WS_STAMP = 40 << 20
WS_SIZE = 48 << 20
sX, sWQ, sK, sV, sK1, sWS, sWO, sOUT, sDBG = 4, 8, 12, 16, 20, 24, 28, 32, 36
sW, sB, sH = 40, 41, 42
sT0, sT1, sT2, sT3 = 43, 44, 45, 46
sWQO = 47
sKOFF, sDK, sM4, sP, sQ = 48, 49, 50, 51, 52
sCNT, sW4K, sSECOND = 53, 54, 55
sSC = 56
sXB, sXE, sWB = 58, 59, 60
sOST = 61
sOLD = 62
sHG, sIDX = 63, 68
sCH = 70
sPO = 96
sPS = 3
sWOW = 69
sXE2 = 100
sLIM, sINC, sNEED, sVM = 58, 59, 60, 47
sOS = 80
sFL = 84
sOV = 86
sPL = 79
vLANE = 1
vKA = 2; vVA = 6; vVD = 14; vOO = 16; vONE = 20
vT = 24
vWA = 32; vXA = 208
vWD2 = 42
vWT = 44
vFW = 17
vRW = 19
vRR = 46
vOUT = 51
vNON = 56
vFO = 58
vFP = 59
vFA = 60
vGRP = 30
vXD = 192; vWD = 202
vS = 64; vP = 128; vC = 160; vQ = 192; vACC = 64
aO = 0; aK = 128; aV = 160; aL = 192
aQA = 128; aQB = 192

class Slot:
    def __init__(self, m=None):
        self.m = m; self.sal = []; self.mem = []; self.valu = []
def emit_slots(A, slots):
    for sl in slots:
        if sl.m: A.e(sl.m)
        for f in sl.sal + sl.mem + sl.valu:
            if isinstance(f, str): A.e(f)
            else: f(A)

class Op:
    def __init__(self, x, units=1, deps=(), name=None):
        self.x = x; self.units = units; self.deps = list(deps); self.name = name
def merge(A, M, V, X):
    pos = {}; cur = [0]
    def ready(o): return all(n in pos and cur[0] - pos[n] - 1 >= d for n, d in o.deps)
    def put(o):
        n0 = len(A.lines)
        if isinstance(o.x, str): A.e(o.x)
        else: o.x(A)
        cur[0] += 1 if len(A.lines) > n0 else 0
        if o.name: pos[o.name] = cur[0] - 1
    M, V, X = list(M), list(V), list(X)
    while M or V or X:
        did = False; budget = 2
        if M and ready(M[0]): put(M.pop(0)); did = True
        while X and ready(X[0]) and budget > 0:
            o = X.pop(0); put(o); budget -= o.units; did = True
            if o.units: break
        while V and ready(V[0]) and budget > 0:
            o = V.pop(0); put(o); budget -= o.units; did = True
        if not did:
            heads = [q[0] for q in (M, V, X) if q]
            assert any(all(n in pos for n, _ in o.deps) for o in heads), [(o.x, o.deps) for o in heads]
            A.e("s_nop 0"); cur[0] += 1

STAMPS = CFG["stlist"].split(",") if CFG.get("stlist") else ["start", "bm1", "b3", "qdone", "loop", "loopend", "pvdone", "barX", "barY", "oready", "p1", "p2", "p3", "mmdone", "pready", "end"]
def stamp(A, name):
    if not CFG["stamps"] or name not in STAMPS: return
    i = STAMPS.index(name)
    A.e("s_memrealtime s[64:65]")
    A.e("s_memtime s[66:67]")
    A.e("s_waitcnt lgkmcnt(0)")
    A.e(f"v_writelane_b32 v63, s64, {i}")
    A.e(f"v_writelane_b32 v63, s66, {32+i}")

def dma(A, voff, srd, soff, imm, tag, flag):
    A.vmem(f"buffer_load_dwordx4 {v(voff)}, {s(srd,4)}, {soff} offen offset:{imm}{flag} lds", tag)
def lines(fn):
    B = Asm(); fn(B); return [l.strip() for l in B.lines]

def emit_ops(A, ops):
    prev = None
    for kind, o in ops:
        if kind == "mem" and prev == "m0": A.e("s_nop 0")
        if isinstance(o, str): A.e(o)
        else: o(A)
        prev = "m0" if isinstance(o, str) and " m0," in o else kind
def place_ops(slots, positions, ops):
    pend = []; k = 0
    for kind, o in ops:
        if kind == "sal": pend.append(o)
        else:
            p = positions[k]; k += 1
            if pend:
                if k > 1 and positions[k-2] == p: slots[p].mem += pend + ["s_nop 0"]
                elif k > 1 and positions[k-2] == p - 1: slots[p-1].valu += pend
                elif len(pend) == 2 and not (k > 1 and positions[k-2] == p - 2): slots[p-2].sal.append(pend[0]); slots[p-1].sal.append(pend[1])
                else: slots[p-1].sal += pend
                pend = []
            slots[p].mem.append(o)
def nmem(ops): return sum(1 for k, _ in ops if k == "mem")
def split_ops(ops, counts):
    out = []; cur = []; k = 0; n = 0
    for o in ops:
        while k < len(counts) and n == counts[k]:
            out.append(cur); cur = []; n = 0; k += 1
        cur.append(o)
        if o[0] == "mem": n += 1
    out.append(cur)
    while len(out) < len(counts) + 1: out.append([])
    return out
def weave(A, fn, ops):
    B = Asm(); B.lds = A.lds; B.vm = A.vm
    fn(B)
    groups = []; cur = []
    for o in ops:
        cur.append(o)
        if o[0] == "mem": groups.append(cur); cur = []
    pos = [(k + 1) * len(B.lines) // (len(groups) + 1) for k in range(len(groups))]
    k = 0
    for i, l in enumerate(B.lines):
        while k < len(groups) and pos[k] == i:
            emit_ops(A, groups[k]); k += 1
        A.lines.append(l)

def kv_quarter(kind, m0, soffset, tag):
    srd = sK if kind == "K" else sV
    return [("sal", soffset), ("sal", m0)] + \
           [("mem", lambda A, i=i: dma(A, vVD + (i & 1), srd, s(sT3), 1024 * i, tag, CFG["nt_kv"])) for i in range(4)]
def kv_full(kind, n):
    ops = []
    for w in range(4):
        base = (KPOS(n) if kind == "K" else VPOS(n)) + 4096 * w
        ops += kv_quarter(kind, f"s_mov_b32 m0, {base}", f"s_mov_b32 {s(sT3)}, {n*SLOT + 4096*w}", (kind, n))
    return ops
def kv_own(kind, n):
    base = KPOS(n) if kind == "K" else VPOS(n)
    return kv_quarter(kind, f"s_add_u32 m0, {s(sW4K)}, {base}", f"s_add_u32 {s(sT3)}, {s(sW4K)}, {n*SLOT}", (kind, n))
REGION = ["p"]
def enc(n): return (n & 15) | ((n >> 4) << 22)
sSS = sX; sSO = sINC
def dq_prep():
    inc = CFG["bl"] * 512
    return [[f"s_bitcmp1_b32 {s(sQ)}, {inc.bit_length() - 1}"], [f"s_cselect_b64 {s(sSS,2)}, {s(sV,2)}, {s(sK1,2)}"],
            [f"s_cselect_b32 {s(sSS+2)}, {s(sV+2)}, {s(sK1+2)}"], [f"s_cselect_b32 {s(sSO)}, {VRING - inc}, 0"],
            [f"s_add_u32 m0, {s(sP)}, {s(sSO)}"], [f"s_andn2_b32 {s(sSO)}, {s(sQ)}, {inc}"]]
def dq_block(A):
    inc = CFG["bl"] * 512
    for g in range(CFG["bl"] // 4):
        if g:
            A.e("s_add_u32 m0, m0, 4096")
            A.e(f"s_add_u32 {s(sSO)}, {s(sSO)}, 4096")
        for i in range(4): dma(A, vVD + (i & 1), sSS, s(sSO), 1024 * i, "dq", CFG["nt_kv"])
    A.e(f"s_add_u32 {s(sQ)}, {s(sQ)}, {inc}")
    A.e(f"s_add_u32 {s(sP)}, {s(sP)}, {inc}")
def dq_pieces(name):
    def br(A):
        lab = f"L_dq_{REGION[0]}_{name}"
        A.e(f"s_cbranch_scc0 {lab}")
        dq_block(A)
        A.label(lab)
    return dq_prep() + [[f"s_getreg_b32 {s(sVM)}, hwreg(HW_REG_IB_STS, 0, 24)"], [f"s_and_b32 {s(sVM)}, {s(sVM)}, 0xc0000f"],
            [f"s_cmp_le_u32 {s(sVM)}, {enc(CFG.get('vthm', CFG['vth']) if name[0] == 'm' else 37 if name == 'slow' else CFG['vth'])}"], [f"s_cselect_b32 {s(sVM)}, {s(sLIM)}, 0"],
            [f"s_cmp_lt_u32 {s(sQ)}, {s(sVM)}"], [br],
            [f"s_cmp_eq_u32 {s(sP)}, {5*SLOT}"], [f"s_cselect_b32 {s(sP)}, 0, {s(sP)}"]]
def dq_landed():
    return [[f"s_getreg_b32 {s(sVM)}, hwreg(HW_REG_IB_STS, 0, 24)"], [f"s_lshr_b32 {s(sINC)}, {s(sVM)}, 22"],
            [f"s_and_b32 {s(sVM)}, {s(sVM)}, 15"], [f"s_lshl4_add_u32 {s(sVM)}, {s(sINC)}, {s(sVM)}"],
            [f"s_lshl_b32 {s(sVM)}, {s(sVM)}, 9"], [f"s_add_u32 {s(sVM)}, {s(sVM)}, {s(sNEED)}"],
            [f"s_cmp_le_u32 {s(sVM)}, {s(sQ)}"]]
def emit_list(A, L):
    for grp in L:
        for x in grp:
            if isinstance(x, str): A.e(x)
            else: x(A)
def dq_slow(A, reg):
    REGION[0] = reg
    A.label(f"L_dqwait_{reg}")
    emit_list(A, dq_pieces("slow"))
    emit_list(A, dq_landed())
    A.e(f"s_cbranch_scc0 L_dqwait_{reg}")
    A.e(f"s_branch L_dqok_{reg}")

def x_own(kc):
    ops = []
    for j in range(8):
        if j % 4 == 0: ops.append(("sal", f"s_add_u32 m0, {s(sXB)}, {XS(kc) + 1024*j}"))
        ops.append(("mem", lambda A, j=j: dma(A, vXD + j, sX, s(sCH + kc), 1024 * (j % 4), ("x", kc), CFG["nt_x"])))
    return ops
def x_extra(kc):
    ops = [("sal", f"s_add_u32 m0, {s(sXE)}, {XS(kc)}")]
    for j in range(2):
        ops.append(("mem", lambda A, j=j: dma(A, vXD + 8 + j, sX, s(sCH + kc), 1024 * j, ("xe", kc), CFG["nt_x"])))
    return ops
def wq_ops(kc):
    ops = [("sal", f"s_lshl_b32 {s(sWQO)}, {s(sCH + kc)}, 12")]
    for j in range(6):
        if j % 3 == 0: ops.append(("sal", f"s_add_u32 m0, {s(sWB)}, {WS(kc) + 1024*j}"))
        ops.append(("mem", lambda A, j=j: dma(A, vWD + j, sWQ, s(sWQO), 1024 * (j % 3), ("wq", kc), CFG["nt_x"])))
    return ops
def wo_group(m0, soffset, tag):
    return [("sal", soffset), ("sal", m0)] + \
           [("mem", lambda A, i=i: dma(A, vWD2 + i, sWO, s(sT3), 1024 * i, tag, CFG.get("nt_wo", ""))) for i in range(2)]

def srd(A, r, lo, hi, off, size):
    if off is None:
        A.e(f"s_mov_b32 {s(r)}, {lo}"); A.e(f"s_mov_b32 {s(r+1)}, {hi}")
    else:
        A.e(f"s_add_u32 {s(r)}, {lo}, {off}"); A.e(f"s_addc_u32 {s(r+1)}, {hi}, 0")
    A.e(size if " " in str(size) else f"s_mov_b32 {s(r+2)}, {size}")
    A.e(f"s_mov_b32 {s(r+3)}, 0x20000")

def setup(A):
    A.e("s_cmp_ge_u32 s2, 256")
    A.e("s_cbranch_scc1 L_end")
    stamp(A, "start")
    A.e("s_load_dwordx8 s[80:87], s[0:1], 0")
    A.e("s_load_dwordx8 s[88:95], s[0:1], 32")
    if CFG["warm"] == "s":
        A.e("s_getpc_b64 s[98:99]")
        A.label("L_pc")
        for k in range(1, CFG.get("wn", 8) + 1): A.e(f"s_load_dword s97, s[98:99], {128*k}")
    A.e(f"s_lshr_b32 {s(sIDX)}, s2, 3")
    if CFG["warm"] == "v":
        A.e("s_getpc_b64 s[98:99]")
        A.e(f"s_lshl_b32 s96, {s(sIDX)}, 11")
        A.e("v_lshl_add_u32 v62, v0, 3, s96")
        A.e("global_load_dword v61, v62, s[98:99]")
    A.e(f"v_and_b32 {v(vLANE)}, 63, v0")
    A.e(f"v_lshrrev_b32 {v(vT+6)}, 6, v0")
    A.e("s_nop 0")
    A.e(f"v_readfirstlane_b32 {s(sW)}, {v(vT+6)}")
    if CFG["warm"] == "s":
        A.e(f"s_lshl2_add_u32 s96, {s(sIDX)}, {s(sW)}")
        A.e("s_lshl_b32 s96, s96, 7")
        A.e("s_add_u32 s98, s98, s96")
        A.e("s_addc_u32 s99, s99, 0")
        for k in range(4): A.e(f"s_load_dword s97, s[98:99], {16384*k}")
    A.e(f"s_and_b32 {s(sB)}, s2, 1")
    A.e(f"s_and_b32 {s(sT2)}, {s(sIDX)}, 3")
    A.e(f"s_lshl2_add_u32 {s(sB)}, {s(sB)}, {s(sT2)}")
    A.e(f"s_bfe_u32 {s(sHG)}, s2, 0x20001")
    A.e(f"s_lshr_b32 {s(sT2)}, {s(sIDX)}, 2")
    A.e(f"s_lshl3_add_u32 {s(sH)}, {s(sHG)}, {s(sT2)}")
    A.e(f"v_lshrrev_b32 {v(vT)}, 4, {v(vLANE)}")
    A.e(f"v_and_b32 {v(vT+1)}, 15, {v(vLANE)}")
    A.e(f"s_cmp_eq_u32 {s(sW)}, 3")
    A.e("s_cbranch_scc1 L_role_q3")

def chunk_order(A, steps):
    if CFG["rot"] == "lock":
        for t in steps: A.e(f"s_movk_i32 {s(sCH+t)}, {128*t}")
        return
    pos = {"rot8": 0, "rot8l": 8}[CFG["rot"]]
    if any(t != pos for t in steps):
        A.e(f"s_mul_i32 {s(sT0)}, {s(sH)}, {CFG['mulh']}")
        A.e(f"s_mul_i32 {s(sT1)}, {s(sB)}, {CFG['mulb']}")
        A.e(f"s_add_u32 {s(sT0)}, {s(sT0)}, {s(sT1)}")
        A.e(f"s_and_b32 {s(sT0)}, {s(sT0)}, {CFG['rmask']}")
        A.e(f"s_lshl_b32 {s(sT0)}, {s(sT0)}, 7")
    for t in steps:
        if t == pos: A.e(f"s_movk_i32 {s(sCH+t)}, {0 if CFG.get('common0') else 1024}"); continue
        A.e(f"s_add_u32 {s(sCH+t)}, {s(sT0)}, {128*(t - (1 if t > pos else 0))}")
        A.e(f"s_and_b32 {s(sCH+t)}, {s(sCH+t)}, 1023")
        if CFG.get("common0"): A.e(f"s_add_u32 {s(sCH+t)}, {s(sCH+t)}, 128")

def setup_wq_dma(A):
    t0, t1, t2, t3, t4, t5, tw = [v(vT + i) for i in range(7)]
    A.e(f"v_mad_u32_u24 {t2}, {tw}, 20, {t0}")
    A.e(f"v_lshlrev_b32 {t3}, {2 if CFG['qpi'] else 1}, {t0}")
    A.e(f"v_xor_b32 {t3}, {t3}, {t1}")
    if CFG["qpi"]:
        A.e(f"v_lshlrev_b32 {t5}, 13, {t2}")
        A.e(f"v_lshl_add_u32 {v(vWD)}, {t3}, 4, {t5}")
        for j in range(1, 6): A.e(f"v_add_u32 {v(vWD+j)}, {32768*j - 1024*(j%3)}, {v(vWD)}")
    else:
      for j in range(6):
        if j: A.e(f"v_add_u32 {t2}, 4, {t2}")
        A.e(f"v_and_b32 {t4}, 8, {t2}")
        A.e(f"v_xor_b32 {t4}, {t4}, {t3}")
        A.e(f"v_lshlrev_b32 {t5}, 13, {t2}")
        A.e(f"v_lshl_add_u32 {v(vWD+j)}, {t4}, 4, {t5}")
        if j % 3: A.e(f"v_subrev_u32 {v(vWD+j)}, {1024*(j%3)}, {v(vWD+j)}")
    A.e(f"s_mul_i32 {s(sWB)}, {s(sW)}, {5*1024}")
def setup_x_dma(A):
    L = v(vLANE); t0, t1, t2, t3, t4, t5, tw = [v(vT + i) for i in range(7)]
    A.e(f"v_lshrrev_b32 {t2}, 3, {L}")
    A.e(f"v_mul_u32_u24 {t2}, 1152, {t2}")
    A.e(f"v_and_b32 {t3}, 7, {L}")
    A.e(f"v_xor_b32 {t3}, {t3}, {t0}")
    A.e(f"v_lshl_add_u32 {t3}, {t3}, 4, {t2}")
    A.e(f"s_mul_i32 {s(sT0)}, {s(sW)}, {8*9216}")
    A.e(f"s_mul_i32 {s(sT1)}, {s(sW)}, {2*9216}")
    A.e(f"v_add_u32 {t2}, {s(sT1)}, {t3}")
    A.e(f"v_add_u32 {t3}, {s(sT0)}, {t3}")
    A.e(f"v_xor_b32 {t4}, 64, {t3}")
    A.e(f"v_xor_b32 {t5}, 64, {t2}")
    for j in range(8): A.e(f"v_add_u32 {v(vXD+j)}, {j*9216 - 1024*(j%4)}, {t3 if j%2==0 else t4}")
    for j in range(2): A.e(f"v_add_u32 {v(vXD+8+j)}, {(24+j)*9216 - 1024*j}, {t2 if j%2==0 else t5}")
    A.e(f"s_lshl_b32 {s(sXE)}, {s(sW)}, 11")
    A.e(f"s_add_u32 {s(sXE)}, {s(sXE)}, {24*1024}")
def setup_srd_q(A):
    A.e(f"s_lshl_b32 {s(sXB)}, {s(sW)}, 13")
    A.e(f"s_lshl_b32 {s(sT0)}, {s(sH)}, 8")
    A.e(f"s_mul_i32 {s(sT1)}, {s(sB)}, 276480")
    A.e("s_waitcnt lgkmcnt(0)")
    stamp(A, "karg")
    srd(A, sWQ, "s86", "s87", s(sT0), f"s_sub_u32 {s(sWQ+2)}, {576*8192}, {s(sT0)}")
    srd(A, sX, "s80", "s81", s(sT1), 276480)

def setup_kv(A):
    t0, t1, t2, t3 = [v(vT + i) for i in range(4)]
    A.e(f"v_lshlrev_b32 {t2}, 1, {t0}")
    A.e(f"v_xor_b32 {t2}, {t2}, {t1}")
    A.e(f"v_lshlrev_b32 {t2}, 4, {t2}")
    A.e(f"v_lshl_add_u32 {v(vVD)}, {t0}, 8, {t2}")
    A.e(f"v_xor_b32 {v(vVD+1)}, 128, {v(vVD)}")
    A.e(f"s_lshl_b32 {s(sW4K)}, {s(sW)}, 12")
    A.e(f"s_lshl_b32 {s(sT0)}, {s(sB)}, 5")
    A.e(f"s_add_u32 {s(sT0)}, {s(sT0)}, {s(sH)}")
    A.e(f"s_lshl_b32 {s(sT0)}, {s(sT0)}, 18")
    srd(A, sK, "s82", "s83", s(sT0), 262144)
    srd(A, sV, "s84", "s85", s(sT0), 262144)
    srd(A, sK1, s(sK), s(sK+1), SLOT, 262144 - SLOT)
    srd(A, sDBG, "s92", "s93", None, 256)
    A.e(f"s_getreg_b32 {s(sXE2)}, hwreg(HW_REG_XCC_ID, 0, 4)")
    A.e(f"s_lshl_b32 {s(sXE2)}, {s(sXE2)}, 28")
    A.e(f"s_and_b32 {s(sXE2+1)}, s2, 7")
    A.e(f"s_lshl_b32 {s(sXE2+1)}, {s(sXE2+1)}, 8")
    A.e(f"s_add_u32 {s(sXE2+1)}, {s(sXE2+1)}, {WS_CENS}")

def setup_q(A):
    L = v(vLANE); t0, t1, t2, t3, t4, tw, tv = [v(vT + i) for i in range(7)]
    A.e(f"v_lshrrev_b32 {t0}, 4, {L}")
    A.e(f"v_and_b32 {t1}, 15, {L}")
    A.e(f"v_lshrrev_b32 {t2}, 1, {t1}")
    A.e(f"v_xor_b32 {t2}, {t2}, {t0}")
    A.e(f"v_lshlrev_b32 {t3}, 4, {t2}")
    A.e(f"v_lshl_add_u32 {t3}, {t1}, 7, {t3}")
    A.e(f"s_sub_u32 {s(sT0)}, {s(sB)}, {s(sHG)}")
    A.e(f"s_sub_u32 {s(sT0)}, {s(sT0)}, 1")
    A.e(f"s_and_b32 {s(sT0)}, {s(sT0)}, 3")
    A.e(f"s_sub_u32 {s(sT0)}, 3, {s(sT0)}")
    A.e(f"s_lshl_b32 {s(sT0)}, {s(sT0)}, 2")
    A.e(f"s_lshr_b32 {s(sT0)}, {0x32140321 if CFG['prio'] else 0x43210000}, {s(sT0) if CFG['prio'] else 12}")
    for sl in range(4):
        r = s(sOS + sl)
        A.e(f"s_add_u32 {r}, {s(sW)}, {4*sl}")
        A.e(f"s_min_u32 {r}, {r}, 14")
        A.e(f"s_mul_i32 {s(sT1)}, {r}, 11")
        A.e(f"s_lshr_b32 {s(sT1)}, {s(sT1)}, 5")
        A.e(f"s_lshl_b32 {s(sT2)}, {s(sT1)}, 2")
        A.e(f"s_lshr_b32 {s(sT2)}, {s(sT0)}, {s(sT2)}")
        A.e(f"s_and_b32 {s(sT2)}, {s(sT2)}, 15")
        A.e(f"s_sub_u32 {s(sT2)}, {s(sT2)}, {s(sT1)}")
        A.e(f"s_mul_i32 {s(sT2)}, {s(sT2)}, 3")
        A.e(f"s_add_u32 {r}, {r}, {s(sT2)}")
        A.e(f"s_lshl_b32 {s(sT1)}, {r}, 11")
        A.e(f"s_add_u32 {s(sT1)}, {s(sT1)}, {XS0}")
        A.e(f"v_add_u32 {v(vXA+2*sl)}, {s(sT1)}, {t3}")
        A.e(f"v_xor_b32 {v(vXA+2*sl+1)}, 64, {v(vXA+2*sl)}")
    A.e(f"v_lshrrev_b32 {t2}, 2, {t1}")
    A.e(f"v_and_b32 {t3}, 1, {t0}")
    A.e(f"v_lshl_add_u32 {t3}, {t3}, 2, {t2}")
    A.e(f"v_and_b32 {t4}, 3, {L}")
    A.e(f"v_lshlrev_b32 {t4}, {4 if CFG['qpi'] else 3}, {t4}")
    A.e(f"v_lshl_add_u32 {tw}, {t0}, 3, {t2}")
    A.e(f"v_lshl_add_u32 {tw}, {tw}, 8, {t4}")
    if WS0: A.e(f"v_add_u32 {tw}, {WS0}, {tw}")
    if CFG["qpi"]:
        for u in range(4):
            A.e(f"v_xor_b32 {tv}, {u}, {t2}")
            A.e(f"v_lshl_add_u32 {v(vWA+2*u)}, {tv}, 6, {tw}")
            A.e(f"v_add_u32 {v(vWA+2*u+1)}, 8, {v(vWA+2*u)}")
    else:
        for t in range(8):
            A.e(f"v_xor_b32 {tv}, {t}, {t3}")
            A.e(f"v_lshl_add_u32 {v(vWA+t)}, {tv}, 5, {tw}")

def attn_init(A):
    L = v(vLANE); t0, t1, t2, t3, t4, tw, tv = [v(vT + i) for i in range(7)]
    A.e(f"v_lshrrev_b32 {t0}, 4, {L}")
    A.e(f"v_and_b32 {t1}, 15, {L}")
    A.e(f"v_and_b32 {t2}, 7, {t1}")
    A.e(f"v_lshlrev_b32 {t2}, 1, {t2}")
    A.e(f"v_xor_b32 {t2}, {t0}, {t2}")
    A.e(f"v_lshlrev_b32 {t4}, 8, {t1}")
    A.e(f"v_add_u32 {t4}, {KPOS(0)}, {t4}")
    for s_ in range(4):
        A.e(f"v_xor_b32 {t3}, {4*s_}, {t2}")
        A.e(f"v_lshl_add_u32 {v(vKA+s_)}, {t3}, 4, {t4}")
    A.e(f"v_lshrrev_b32 {t2}, 2, {t1}")
    A.e(f"v_and_b32 {t3}, 1, {t0}")
    A.e(f"v_lshl_add_u32 {t3}, {t3}, 2, {t2}")
    A.e(f"v_and_b32 {t4}, 3, {L}")
    A.e(f"v_cmp_eq_u32 vcc, 0, {t4}")
    A.e(f"v_lshlrev_b32 {t4}, 3, {t4}")
    A.e(f"v_lshl_add_u32 {tw}, {t0}, 2, {t2}")
    A.e(f"v_lshl_add_u32 {tw}, {tw}, 8, {t4}")
    A.e(f"v_add_u32 {tw}, {VPOS(-1)}, {tw}")
    for t in range(8):
        A.e(f"v_xor_b32 {tv}, {t}, {t3}")
        A.e(f"v_lshl_add_u32 {v(vVA+t)}, {tv}, 5, {tw}")
    A.e(f"v_mov_b32 {t3}, 0x3f803f80")
    for i in range(4): A.e(f"v_cndmask_b32 {v(vONE+i)}, 0, {t3}, vcc")
    A.e(f"s_mov_b32 {s(sKOFF)}, {KPOS(0)}")
    A.e(f"s_mov_b32 {s(sM4)}, {-4*SLOT}")
    A.e(f"s_mov_b32 {s(sP)}, {KPOS(CFG['pre'] + 1)}")
    A.e(f"s_mov_b32 {s(sQ)}, {CFG['pre']*SLOT}")

def zero_acc(A, nq):
    for r in range(32 * nq): A.e(f"v_accvgpr_write_b32 {a(aO+r)}, 0")
def zero_l(A, nq):
    for r in range(4 * nq): A.e(f"v_accvgpr_write_b32 {a(aL+r)}, 0")

def setup_p2(A):
    L = v(vLANE); t0, t1, t2, t3, t4, t5, t6 = [v(vT + i) for i in range(7)]
    T0, T1, T2 = s(sT0), s(sT1), s(sT2)
    srd(A, sWS, "s94", "s95", (CFG["wsoff"] << 20) if CFG.get("wsoff") else None, WS_SIZE)
    srd(A, sOUT, "s90", "s91", None, 1920 * 1152)
    A.e(f"s_mov_b32 {s(sSC)}, {f32hex(SCALE)}")
    A.e(f"s_mov_b32 {s(sSC+1)}, {f32hex(SCALE)}")
    A.e(f"s_mov_b32 {s(sSECOND)}, 0")
    A.e(f"v_lshlrev_b32 {v(vOO)}, 4, {L}")
    A.e(f"s_and_b32 {T2}, s2, 7")
    A.e(f"s_mul_i32 {s(sOLD)}, {T2}, {60*OM}")
    A.e(f"s_and_b32 {T0}, {s(sB)}, 3")
    A.e(f"s_mul_i32 {T0}, {T0}, 15")
    A.e(f"s_lshl_b32 {T0}, {T0}, 15")
    A.e(f"s_and_b32 {T1}, {s(sH)}, 7")
    A.e(f"s_lshl_b32 {T1}, {T1}, 12")
    A.e(f"s_add_u32 {T0}, {T0}, {T1}")
    A.e(f"s_add_u32 {T0}, {T0}, {s(sOLD)}")
    for sl in range(4):
        A.e(f"s_lshl_b32 {s(sOS+sl)}, {s(sOS+sl)}, 15")
        A.e(f"s_add_u32 {s(sOS+sl)}, {s(sOS+sl)}, {T0}")
    A.e(f"s_lshl_b32 {T0}, {s(sB)}, 5")
    A.e(f"s_add_u32 {T0}, {T0}, {s(sH)}")
    A.e(f"s_lshl2_add_u32 {T0}, {T0}, {s(sW)}")
    A.e(f"s_lshl_b32 {T0}, {T0}, {FSH}")
    A.e(f"s_add_u32 {s(sFL)}, {T0}, {WS_FLAG}")
    A.e(f"s_add_u32 {s(sFL+1)}, {T0}, {WS_FLAG + (1 << (FSH - 1))}")
    A.e(f"s_min_u32 {T0}, {s(sIDX)}, 29")
    A.e(f"s_mul_i32 {T1}, {T0}, 43")
    A.e(f"s_lshr_b32 {T1}, {T1}, 8")
    A.e(f"s_mul_i32 {T2}, {T1}, 6")
    A.e(f"s_sub_u32 {T0}, {T0}, {T2}")
    A.e(f"s_mul_i32 {T0}, {T0}, 192")
    A.e(f"s_mul_i32 {T1}, {T1}, 12")
    A.e(f"s_lshl_b32 {T2}, {T1}, 15")
    A.e(f"s_add_u32 {s(sOLD)}, {s(sOLD)}, {T2}")
    A.e(f"s_and_b32 {T2}, s2, 1")
    A.e(f"s_mul_i32 {T2}, {T2}, 60")
    A.e(f"s_add_u32 {T1}, {T1}, {T2}")
    A.e(f"s_mul_i32 {T2}, {s(sHG)}, {1024*1152}")
    A.e(f"s_add_u32 {T2}, {T2}, {T0}")
    srd(A, sWO, "s88", "s89", T2, f"s_sub_u32 {s(sWO+2)}, {4096*1152}, {T2}")
    A.e(f"s_lshl_b32 {T2}, {s(sW)}, 13")
    A.e(f"s_add_u32 {s(sOLD)}, {s(sOLD)}, {T2}")
    for q in range(4):
        A.e(f"s_add_u32 {T2}, {s(sHG)}, {q+1}")
        A.e(f"s_and_b32 {T2}, {T2}, 3")
        A.e(f"s_mul_i32 {T2}, {T2}, {3*OM}")
        A.e(f"s_add_u32 {s(sPO+q)}, {T2}, {s(sOLD)}")
    A.e(f"v_and_b32 {t0}, 2, {L}")
    A.e(f"v_mul_u32_u24 {t0}, 5, {t0}")
    A.e(f"v_add_u32 {t0}, {T1}, {t0}")
    A.e(f"v_mul_u32_u24 {t0}, 137, {t0}")
    A.e(f"v_lshrrev_b32 {t0}, 11, {t0}")
    A.e(f"v_and_b32 {t1}, 1, {L}")
    A.e(f"v_lshl_add_u32 {t0}, {t0}, 5, {t1}")
    A.e(f"s_lshl_b32 {T2}, {s(sHG)}, 3")
    A.e(f"s_lshl_b32 {s(sPS)}, {s(sW)}, 1")
    A.e(f"s_add_u32 {T2}, {T2}, {s(sPS)}")
    A.e(f"v_add_u32 {t0}, {T2}, {t0}")
    A.e(f"v_lshlrev_b32 {t0}, {FSH + 2}, {t0}")
    A.e(f"v_and_b32 {t1}, 12, {L}")
    A.e(f"v_lshl_add_u32 {t0}, {t1}, {FSH - 2}, {t0}")
    A.e(f"v_add_u32 {v(vFO)}, {WS_FLAG}, {t0}")
    A.e(f"s_mul_i32 {T2}, {s(sHG)}, 3")
    A.e(f"s_add_u32 {T1}, {T1}, {T2}")
    A.e(f"s_lshl_b32 {T1}, {T1}, 4")
    A.e(f"s_mul_i32 {T2}, {s(sW)}, 12")
    A.e(f"s_add_u32 {T1}, {T1}, {T2}")
    A.e(f"s_mul_i32 {T1}, {T1}, 1152")
    A.e(f"s_add_u32 {T1}, {T1}, {T0}")
    A.e(f"s_mul_i32 {T2}, {T2}, {RSTR}")
    A.e(f"s_lshl_b32 {s(sPS)}, {s(sW)}, 2")
    for r in range(5):
        A.e(f"v_add_u32 {t0}, {64*r}, {L}")
        if r == 4: A.e(f"v_min_u32 {t0}, 287, {t0}")
        A.e(f"v_mul_u32_u24 {t1}, 171, {t0}")
        A.e(f"v_lshrrev_b32 {t1}, 12, {t1}")
        A.e(f"v_mul_u32_u24 {t2}, 24, {t1}")
        A.e(f"v_sub_u32 {t2}, {t0}, {t2}")
        A.e(f"v_add_u32 {t4}, {s(sPS)}, {t1}")
        A.e(f"v_and_b32 {t4}, 7, {t4}")
        A.e(f"v_xor_b32 {t4}, {t4}, {t2}")
        A.e(f"v_mul_u32_u24 {t3}, {RSTR}, {t1}")
        A.e(f"v_lshl_add_u32 {t3}, {t4}, 4, {t3}")
        A.e(f"v_add_u32 {v(vRR+r)}, {T2}, {t3}")
        A.e(f"v_mul_u32_u24 {t3}, 1152, {t1}")
        A.e(f"v_lshl_add_u32 {t3}, {t2}, 3, {t3}")
        A.e(f"v_add_u32 {v(vOUT+r)}, {T1}, {t3}")
    A.e(f"v_cmp_gt_u32 vcc, 32, {L}")
    A.e(f"v_mov_b32 {t0}, 0x7ffffff0")
    A.e(f"v_lshrrev_b32 {t1}, 4, {L}")
    A.e(f"v_cndmask_b32 {v(vOUT+4)}, {t0}, {v(vOUT+4)}, vcc")
    A.e(f"v_cmp_eq_u32 vcc, 0, v0")
    A.e(f"v_and_b32 {t2}, 15, {L}")
    A.e(f"s_mul_i32 {T2}, {s(sW)}, {WOW}")
    A.e(f"v_cndmask_b32 {v(vFP)}, {t0}, 0, vcc")
    A.e(f"v_mul_u32_u24 {t3}, {RSTR}, {t2}")
    A.e(f"v_and_b32 {t4}, 7, {t2}")
    A.e(f"v_xor_b32 {t4}, {t4}, {t1}")
    A.e(f"v_lshl_add_u32 {t3}, {t4}, 4, {t3}")
    A.e(f"v_add_u32 {v(vRW)}, {T2}, {t3}")
    A.e(f"v_xor_b32 {v(vRW-1)}, 64, {v(vRW)}")
    if CFG["fline"]:
        A.e(f"v_lshlrev_b32 {v(vFW)}, 26, {t1}")
        A.e(f"v_lshl_add_u32 {v(vFW)}, {t2}, 3, {v(vFW)}")
    else: A.e(f"v_lshlrev_b32 {v(vFW)}, 26, {L}")
    A.e(f"s_mul_i32 {s(sWOW)}, {s(sW)}, {WOW}")
    A.e(f"v_lshrrev_b32 {t3}, 2, {L}")
    A.e(f"v_and_b32 {t4}, 3, {L}")
    A.e(f"v_lshlrev_b32 {t5}, 3, {t4}")
    A.e(f"v_lshl_add_u32 {t5}, {t3}, 6, {t5}")
    A.e(f"v_and_b32 {t6}, 1, {t1}")
    A.e(f"v_lshl_add_u32 {t5}, {t6}, 5, {t5}")
    A.e(f"v_add_u32 {v(vWT)}, {s(sWOW)}, {t5}")
    A.e(f"v_xor_b32 {v(vWT+1)}, 32, {v(vWT)}")
    A.e(f"v_lshlrev_b32 {t6}, 1, {t6}")
    A.e(f"v_xor_b32 {t4}, {t4}, {t6}")
    A.e(f"v_mul_u32_u24 {t3}, 1152, {t3}")
    A.e(f"v_lshl_add_u32 {v(vWD2)}, {t4}, 4, {t3}")
    A.e(f"v_add_u32 {v(vWD2+1)}, {16*1152 - 1024}, {v(vWD2)}")
    A.e(f"s_lshl_b32 {T2}, s2, 11")
    A.e(f"s_add_u32 {T2}, {T2}, {WS_PFLAG}")
    A.e(f"s_lshl_b32 {s(sPL)}, {s(sW)}, 9")
    A.e(f"s_add_u32 {T2}, {T2}, {s(sPL)}")
    A.e(f"v_and_b32 {t0}, 1, {L}")
    A.e(f"v_lshlrev_b32 {t0}, 7, {t0}")
    A.e(f"v_add_u32 {v(vFA)}, {T2}, {t0}")
    A.e(f"s_mul_i32 {T2}, s2, {12*5120}")
    A.e(f"s_mul_i32 {s(sPL)}, {s(sW)}, 5120")
    A.e(f"s_add_u32 {s(sPL)}, {s(sPL)}, {T2}")
    A.e(f"s_add_u32 {s(sPL)}, {s(sPL)}, {WS_PART}")

def prewarm_flags(A):
    if not CFG["fwarm"]: return
    A.e(f"v_mov_b32 {v(vT)}, 0"); A.e(f"v_mov_b32 {v(vT+1)}, 0")
    for k in range(2): A.vmem(f"buffer_store_dwordx2 {v(vT,2)}, {v(vFW)}, {s(sWS,4)}, {s(sFL+k)} offen sc1", "fw")
    if CFG["fwarm"] == 2:
        for q in range(3):
            for x in [f"s_add_u32 {s(sT0)}, {s(sHG)}, {q+1}", f"s_and_b32 {s(sT0)}, {s(sT0)}, 3", f"s_sub_u32 {s(sT0)}, {s(sT0)}, {s(sHG)}",
                      f"s_lshl1_add_u32 {s(sT0)}, {s(sT0)}, s2", f"s_lshl2_add_u32 {s(sT0)}, {s(sT0)}, {s(sW)}", f"s_lshl_b32 {s(sT0)}, {s(sT0)}, 9",
                      f"s_add_u32 {s(sT0)}, {s(sT0)}, {WS_PFLAG + 128*q}"]: A.e(x)
            A.vmem(f"buffer_store_dwordx2 {v(vT,2)}, {v(vFW)}, {s(sWS,4)}, {s(sT0)} offen sc1", "fw")
LD_NON = f"buffer_load_dwordx2 {v(vNON,2)}, off, {s(sDBG,4)}, 0 offset:128 sc1"
CMP_NON = f"v_cmp_eq_u64 vcc, 0, {v(vNON,2)}"
def census(A):
    if CFG["fast"]:
        A.wait_vm("non0")
        A.e(f"v_xor_b32 {v(vNON+1)}, {s(sXE2)}, {v(vNON+1)}")
        A.e(f"s_lshl_b32 {s(sT0)}, {s(sIDX)}, 3")
        A.e(f"s_add_u32 {s(sT0)}, {s(sT0)}, {s(sXE2+1)}")
        A.e(f"v_lshlrev_b32 v254, 26, {v(vLANE)}")
        A.vmem(f"buffer_store_dwordx2 {v(vNON,2)}, v254, {s(sWS,4)}, {s(sT0)} offen sc1", "cens")
    if CFG["wotouch"] == "pro": wotouch(A)
    if CFG["wotouch"] == "spread": wotouch(A, 0)
    if CFG["wotouch"] == "sl":
        wo_slice(A)
        for k in range(6): A.e(f"v_add_u32 v{244+k}, {6144*k}, v254")
    if CFG["wotouch"] in ("dyn", "end"):
        wo_slice(A)
        A.e(f"s_mov_b32 {s(sT2)}, {16*SLOT - 2}")
def wo_slice(A):
    A.e(f"s_mul_i32 {s(sT0)}, {s(sHG)}, {1024*1152}")
    A.e(f"s_mul_i32 {s(sT1)}, {s(sIDX)}, 36864")
    A.e(f"s_add_u32 {s(sT0)}, {s(sT0)}, {s(sT1)}")
    A.e(f"s_add_u32 {s(sT0)}, {s(sT0)}, 4096")
    A.e(f"v_add_u32 v254, {s(sT0)}, {v(vOO)}")
def wotouch(A, n=5):
    A.e(f"s_mul_i32 {s(sT0)}, {s(sHG)}, {1024*1152}")
    A.e(f"s_mul_i32 {s(sT1)}, {s(sIDX)}, 36864")
    A.e(f"s_add_u32 {s(sT0)}, {s(sT0)}, {s(sT1)}")
    A.e(f"v_lshlrev_b32 v254, 7, {v(vLANE)}")
    A.e(f"v_add_u32 v254, {s(sT0)}, v254")
    for k in range(n):
        A.vmem(f"global_load_dword v255, v254, s[88:89]{CFG['nt_wt']}", "wot")
        if k < 4: A.e(f"v_add_u32 v254, {8192 if k < 3 else 4096}, v254")

def write_nonce(A):
    A.e("s_memrealtime s[64:65]")
    A.e("s_cmp_eq_u32 s2, 0")
    A.e(f"s_cselect_b32 {s(sT0)}, 0, 256")
    A.e(f"v_lshlrev_b32 {v(vT+2)}, 8, {v(vLANE)}")
    A.e("s_waitcnt lgkmcnt(0)")
    A.e(f"v_mov_b32 {v(vT)}, s64")
    A.e(f"v_mov_b32 {v(vT+1)}, s65")
    A.vmem(f"buffer_store_dwordx2 {v(vT,2)}, {v(vT+2)}, {s(sDBG,4)}, {s(sT0)} offen offset:128 sc1", "nonce")
    if CFG["warm"] is True:
        A.e("s_getpc_b64 s[64:65]")
        A.label("L_pc")
        A.e(f"s_sub_u32 s64, s64, L_pc-{KNAME}")
        A.e("s_subb_u32 s65, s65, 0")
        A.e(f"s_and_b32 {s(sT0)}, {s(sIDX)}, 7")
        A.e(f"s_lshl_b32 {s(sT0)}, {s(sT0)}, 13")
        A.e(f"v_lshlrev_b32 {v(vT+3)}, 7, {v(vLANE)}")
        A.e(f"v_add_u32 {v(vT+3)}, {s(sT0)}, {v(vT+3)}")
        A.e(f"v_min_u32 {v(vT+3)}, L_code_end-{KNAME}-4, {v(vT+3)}")
        A.vmem(f"global_load_dword v255, {v(vT+3)}, s[64:65]", "warm")

def touch_setup(A):
    L = v(vLANE)
    A.e(f"v_and_b32 v252, 31, {L}")
    A.e(f"v_lshrrev_b32 v253, 1, v252")
    A.e(f"v_min_u32 v252, 29, v252")
    A.e(f"s_and_b32 {s(sT0)}, {s(sH)}, 7")
    A.e(f"s_mul_i32 {s(sT0)}, {s(sT0)}, 30")
    A.e(f"v_add_u32 v252, {s(sT0)}, v252")
    A.e(f"v_mul_u32_u24 v252, 1152, v252")
    A.e(f"v_lshrrev_b32 v251, 5, {L}")
    A.e(f"v_lshl_add_u32 v252, v251, 7, v252")
    A.e(f"v_lshl_add_u32 v253, v251, 6, v253")
    A.e(f"s_and_b32 {s(sT0)}, {s(sB)}, 3")
    A.e(f"s_lshl_b32 {s(sT0)}, {s(sT0)}, 4")
    A.e(f"v_add_u32 v253, {s(sT0)}, v253")
    A.e(f"v_lshlrev_b32 v253, 13, v253")
    A.e(f"v_and_b32 v251, 1, {L}")
    A.e(f"v_lshl_add_u32 v253, v251, 7, v253")
def touch_ops(c):
    return [("mem", lambda A: A.vmem(f"buffer_load_dword v255, v252, {s(sX,4)}, 0 offen offset:{128*c}{CFG['nt_x']}", "touch")),
            ("sal", f"s_mov_b32 {s(sT3)}, {64*8192*c}"),
            ("mem", lambda A: A.vmem(f"buffer_load_dword v255, v253, {s(sWQ,4)}, {s(sT3)} offen{CFG['nt_x']}", "touch"))]

def qproj(A, nq):
    main = nq == 4
    tch = [[int(c) for c in x.split("+") if c] for x in str(CFG["touch"]).split(",")] + [[]] * 10
    if main:
        setup_wq_dma(A)
        chunk_order(A, [0])
        setup_srd_q(A)
        emit_ops(A, wq_ops(0))
        setup_x_dma(A)
        emit_ops(A, x_own(0) + x_extra(0))
        stamp(A, "iss0")
        chunk_order(A, range(1, 9))
    else:
        if any(tch): touch_setup(A)
        setup_srd_q(A)
        for c in tch[0]: emit_ops(A, touch_ops(c))
    setup_kv(A)
    if not main: write_nonce(A)
    setup_q(A)
    if not main: setup_p2(A); attn_init(A); zero_acc(A, nq)
    stamp(A, "setq")
    if main: emit_ops(A, wq_ops(1) + x_own(1) + x_extra(1))
    stamp(A, "iss1")
    kvq = [int(x) for x in str(CFG["kvq"]).split(",")]
    assert len(kvq) == 8 and sum(kvq) == 48
    kvp = split_ops(kv_full("K", 0) + kv_full("K", 1) + kv_full("V", 0), kvq[:-1])
    if not main: emit_ops(A, kvp[0])
    woq = [int(x) for x in str(CFG["woq"]).split(",")]
    wops = []
    for k in range(36):
        wops.append(("mem", lambda A, k=k: A.vmem(f"global_load_dwordx4 v[240:243], v254, s[88:89] offset:{1024*(k%6) - 4096}", "wot")))
        if k % 6 == 5: wops.append(("sal", "v_add_u32 v254, 6144, v254"))
    wop = split_ops(wops, woq[:-1]) if CFG["wotouch"] == "q" else [[]] * 8
    if not main and CFG["wotouch"] == "q": wo_slice(A)
    NS = 16 * nq; BAR = 12 * nq; LEAD = NS - BAR
    slots = [Slot() for _ in range(LEAD + 9 * NS)]
    def G(kc, i): return LEAD + kc * NS + i
    for kc in range(9):
        bb = aQB + 32 * ((kc + 1) % 2)
        QC = CFG["qchain"]
        for i in range(NS):
            if QC: t, qt, s2 = i // (2 * nq), (i // 2) % nq, i % 2; f = 2 * t + s2
            else: f, qt = i // nq, i % nq; s2, t = f // 8, f % 8
            d = v(vACC + 32 * qt + 4 * t, 4)
            slots[G(kc, i)].m = mfma(d, a(aQA + 4 * f, 4), a(bb + 8 * qt + 4 * s2, 4), d if (kc or s2) else "0")
        def rdA(f, j, kc=kc):
            s2, t = (f % 2, f // 2) if QC else (f // 8, f % 8)
            off = WS(kc) - WS0 + (32 * s2 + 4 * j) * 256
            return lambda A: A.ds(f"ds_read_b64_tr_b16 {a(aQA + 4*f + 2*j, 2)}, {v(vWA+t)} offset:{off}", ("A", kc, f, j))
        def rdB(qt, s2, kc=kc, bb=bb):
            off = XS(kc) - XS0
            return lambda A: A.ds(f"ds_read_b128 {a(bb + 8*qt + 4*s2, 4)}, {v(vXA+2*qt+s2)} offset:{off}", ("B", kc, qt, s2))
        head = [rdB(0, 0), rdA(0, 0), rdA(0, 1)] + [rdB(q, 0) for q in range(1, nq)] + [rdA(1, 0), rdA(1, 1), rdA(2, 0), rdA(2, 1)] \
             + [rdB(q, 1) for q in range(nq)] + [rdA(3, 0), rdA(3, 1)]
        if QC: head = [rdB(0, 0), rdA(0, 0), rdA(0, 1), rdB(0, 1), rdA(1, 0), rdA(1, 1)] + [rdB(q, z) for q in range(1, nq) for z in range(2)] \
                    + [rdA(2, 0), rdA(2, 1), rdA(3, 0), rdA(3, 1)]
        p0 = G(kc, -LEAD)
        for k, r in enumerate(head): slots[p0 + k * LEAD // len(head)].mem.append(r)
        tail = [rdA(f, j) for f in range(4, 16) for j in range(2)]
        span = BAR - 2 * nq if kc < 8 else 6 * nq
        for k, r in enumerate(tail): slots[G(kc, k * span // len(tail))].mem.append(r)
        if QC:
            slots[G(kc, -1)].valu.append(lambda A, kc=kc: A.wait_lds(("B", kc, 1, 1)))
            slots[G(kc, 3)].sal.append(lambda A, kc=kc: A.wait_lds(("B", kc, nq - 1, 1)))
            for t in range(1, 7):
                slots[G(kc, 2 * t * nq - 1)].sal.append(lambda A, tag=("A", kc, 2 * t + 1, 1): A.wait_lds(tag))
        else:
            slots[G(kc, -1)].valu.append(lambda A, kc=kc: A.wait_lds(("B", kc, nq - 1, 0)))
            for f in range(1, 13):
                slots[G(kc, f * nq - 1)].sal.append(lambda A, tag=("A", kc, f, 1): A.wait_lds(tag))
        def bar(A, kc=kc):
            if main and kc == 1:
                def bgw(A): attn_init(A); zero_acc(A, nq)
                setup_p2(A)
                if CFG.get("bgweave", False): weave(A, bgw, wq_ops(2) + x_own(2) + x_extra(2))
                else: bgw(A); emit_ops(A, wq_ops(2) + x_own(2) + x_extra(2))
            if main: A.wait_vm(("xe", kc))
            A.e("s_waitcnt lgkmcnt(0)")
            A.e("s_barrier")
            stamp(A, "bm1" if kc == 0 else f"b{kc-1}")
        slots[p0].sal.insert(0, bar)
        if kc <= 7: slots[G(kc, 3 * nq - 1)].sal.append("s_barrier")
        if main:
            early = []; late = []
            if 1 <= kc <= 6: early += wq_ops(kc + 2)
            if 1 <= kc <= 6: late += x_own(kc + 2) + x_extra(kc + 2)
            pe = [p0 + 2 + 4 * k for k in range(nmem(early))]
            pl = [G(kc, 3 * nq + 1 + 3 * k) for k in range(nmem(late))]
            if CFG["clus"]:
                c0, c1 = CFG.get("cl0", 4), CFG["clus"]
                pe = [G(kc, c0 + k * (13 - c0) // 6) for k in range(nmem(early))]
                pl = [G(kc, 14 + k * (c1 - 14) // 10) for k in range(nmem(late))]
            place_ops(slots, pe, early); place_ops(slots, pl, late)
        else:
            if kc <= 6:
                ops = sum((touch_ops(c) for c in tch[kc + 1]), []) + kvp[kc + 1] + wop[kc + 1]
                ne = nmem(ops)
                if CFG["kvpos"] == "end": pe = [G(kc, BAR - 2 - ne + k) for k in range(ne)]
                elif CFG["kvpos"] == "mid": pe = [G(kc, 3 * nq + 2 + k) for k in range(ne)]
                elif CFG["kvpos"] == "even": pe = [p0 + 2 + k * (NS - 4) // ne for k in range(ne)]
                else: pe = [p0 + 2 + k for k in range(ne)]
                place_ops(slots, pe, ops)
            elif kc == 7:
                place_ops(slots, [p0 + 2 + k for k in range(16)], kv_full("K", 2))
                n7 = CFG["kv7"]
                late78 = split_ops(kv_full("V", 1) + (kv_full("V", 2) + kv_full("K", 3) if CFG["pre"] == 3 else []), [n7])
                if n7: place_ops(slots, [G(7, 3 * nq + 2) + k * (BAR - 3 * nq - 4) // n7 for k in range(n7)], late78[0])
            else:
                ne = nmem(late78[1])
                if ne: place_ops(slots, [p0 + 2 + k * (12 * nq - 4) // ne for k in range(ne)], late78[1])
    def bar8(A):
        if not main: A.wait_vm(("K", 0))
        A.e("s_waitcnt lgkmcnt(0)")
        A.e("s_barrier")
    p8 = G(8, 8 * nq - 1)
    slots[p8].sal = [bar8]
    slots[G(7, -LEAD + 1)].mem.append(lambda A: A.vmem(LD_NON, "nonce"))
    for k, l in enumerate(lines(lambda B: zero_l(B, nq))): slots[G(8, 2 + k)].valu.append(l)
    emit_slots(A, slots[:p8 + 1])
    lim = CFG["lim0"]
    assert lim <= 4 * SLOT and CFG["lim1"] <= SLOT
    for n in range(14):
        assert lim >= (n + 1) * SLOT, n
        lim = min(lim + (CFG["lim1"] if n < CFG["lim1n"] else CFG["limr"]), (n + 5) * SLOT)
    if not main:
        if CFG["dither"]:
            A.e(f"s_and_b32 {s(sLIM)}, {s(sIDX)}, 7")
            A.e(f"s_lshl_b32 {s(sLIM)}, {s(sLIM)}, 9")
            A.e(f"s_add_u32 {s(sLIM)}, {s(sLIM)}, {CFG['lim0']}")
            assert CFG["lim0"] + 4096 <= 4 * SLOT
        else: A.e(f"s_mov_b32 {s(sLIM)}, {CFG['lim0']}")
        A.e(f"s_mov_b32 {s(sNEED)}, {SLOT}")

def prologue(A, nq, slots, P):
    M = []; V = []; X = []
    bb = aQB + 32
    QC = CFG["qchain"]
    for qt in range(nq):
        for k in range(8):
            t, s2 = (4 + k // 2, k % 2) if QC else (k, 1)
            d = v(vACC + 32 * qt + 4 * t, 4)
            M.append(Op(mfma(d, a(aQA + 32 + 4 * k, 4), a(bb + 8 * qt + 4 * s2, 4), d), name=("qp", qt, t) if s2 else None))
    for f in range(8): X.append(Op(k_read(0, f)))
    X.append(Op(lambda A: A.wait_lds(("K", 7)), 0, deps=[(("pk", 1), 0)], name="k0"))
    for f in range(8):
        kt, s_ = f // 4, f % 4
        X.append(Op(lambda A, f=f, kt=kt, s_=s_: A.ds(f"ds_read_b128 {a(aV+4*f,4)}, {v(vKA+s_)} offset:{8192+4096*kt}", ("K1", f)),
                    deps=[(("qp", nq - 1, 7), 0)]))
    def conv(qt):
        if qt:
            for j in range(16):
                r = v(vACC + 32 * qt + 2 * j, 2)
                V.append(Op(f"v_pk_mul_f32 {r}, {r}, {s(sSC,2)}", deps=[(("qp", nq - 1, 7), 8)], name=("pk", qt) if j == 15 else None))
        for u in range(4):
            src = vACC + 32 * qt + 8 * u; dst = vQ + 16 * qt + 4 * u
            if qt == 0:
                for j in range(8): V.append(Op(f"v_mul_f32 {v(src+j)}, {s(sSC)}, {v(src+j)}", deps=[(("qp", qt, 2*u + j//4), 8)] if (u >= 2 or not QC) else []))
            for j in range(4): V.append(Op(f"v_cvt_pk_bf16_f32 {v(dst+j)}, {v(src+2*j)}, {v(src+2*j+1)}", name=("cv", qt) if (CFG["qpi"] and (u, j) == (3, 3)) else ("c", qt, u, j)))
        for k, sw in enumerate(("v_permlane32_swap_b32", "v_permlane16_swap_b32") if not CFG["qpi"] else ()):
            for u in range(4):
                dst = vQ + 16 * qt + 4 * u
                for j in range(2):
                    V.append(Op(f"{sw} {v(dst+j)}, {v(dst+j+2)}", 2, deps=[(("c", qt, u, 3), 2)], name=("cv", qt) if (k, u, j) == (1, 3, 1) else None))
    def qk(T, qt, kreg, c0, deps):
        for kt in range(2):
            for s_ in range(4):
                d = v(vS + 32 * T + 8 * qt + 4 * kt, 4)
                M.append(Op(mfma(d, a(kreg + 4 * (4 * kt + s_), 4), v(vQ + 16 * qt + 4 * s_, 4), d if s_ else c0), deps=deps, name=("qk", T, qt, kt) if s_ == 3 else None))
    def rowmax(qt):
        b = vS + 8 * qt; m = vT + qt; t = vT + 4
        V.append(Op(f"v_max3_f32 {v(m)}, {v(b)}, {v(b+1)}, {v(b+2)}", deps=[(("qk", 0, qt, 1), 8)]))
        V.append(Op(f"v_max3_f32 {v(t)}, {v(b+3)}, {v(b+4)}, {v(b+5)}"))
        V.append(Op(f"v_max3_f32 {v(m)}, {v(m)}, {v(b+6)}, {v(b+7)}"))
        V.append(Op(f"v_max_f32 {v(m)}, {v(m)}, {v(t)}"))
        for k, sw in enumerate(("v_permlane32_swap_b32", "v_permlane16_swap_b32")):
            V.append(Op(f"v_mov_b32 {v(t)}, {v(m)}", name=("mv", qt, k)))
            V.append(Op(f"{sw} {v(t)}, {v(m)}", 2, deps=[(("mv", qt, k), 2)]))
            V.append(Op(f"v_max_f32 {v(m)}, {v(m)}, {v(t)}"))
        for e in range(8): V.append(Op(f"v_sub_f32 {v(b+e)}, {v(b+e)}, {v(m)}"))
    def setc(qt):
        for e in range(4): V.append(Op(f"v_sub_f32 {v(vC+4*qt+e)}, 0, {v(vT+qt)}", name=("C", qt) if e == 3 else None))
    for qt in range(nq):
        conv(qt)
        qk(0, qt, aK, "0", [(("cv", qt), 2), ("k0", 0)] + ([(("pk", qt + 1), 0)] if qt + 1 < nq else []))
        if qt: rowmax(qt - 1)
    for qt in range(nq - 1): setc(qt)
    X.append(Op(lambda A: A.wait_lds(("K1", 7)), 0, deps=[(("cv", nq - 1), 0)], name="k1"))
    gen = [x for sl in slots[:2 * P] for x in sl.valu if isinstance(x, str) and x.startswith(("v_exp", "v_cvt"))]
    for k in range(len(gen) - 1):
        if gen[k].startswith("v_cvt") and k % 3 == 2: gen[k], gen[k + 1] = gen[k + 1], gen[k]
    def soft(lst):
        for x in lst:
            if x.startswith("v_exp"):
                r = int(x.split()[1][1:-1])
                V.append(Op(x, 2, deps=[(("qk", 1, 0, 0), 8)] if r >= vS + 32 else [], name=("e", r)))
            else: V.append(Op(x, deps=[(("e", int(x.split()[3][1:])), 1)]))
    soft(gen[:12])
    rowmax(nq - 1); setc(nq - 1)
    for qt in range(nq): qk(1, qt, aV, v(vC + 4 * qt, 4), [(("C", qt), 2), ("k1", 0)])
    X.append(Op(f"s_cmp_eq_u32 {s(sKOFF)}, {4*SLOT}", 0)); X.append(Op(f"s_cselect_b32 {s(sDK)}, {s(sM4)}, {SLOT}", 0))
    X.append(Op(f"s_add_u32 {s(sKOFF)}, {s(sKOFF)}, {s(sDK)}", 1, name="ring"))
    for i in range(12): V.append(Op(f"v_add_u32 {v(vKA+i)}, {s(sDK)}, {v(vKA+i)}", deps=[("ring", 0)], name=("addr", i)))
    soft(gen[12:])
    def bar0(A):
        if nq == 3:
            emit_list(A, dq_landed())
            A.e("s_cbranch_scc0 L_dqwait_m"); A.label("L_dqok_m")
        A.e("s_barrier")
        if nq == 3:
            A.e(f"s_add_u32 {s(sNEED)}, {s(sNEED)}, {SLOT}"); A.e(f"s_add_u32 {s(sLIM)}, {s(sLIM)}, {CFG['lim1'] if CFG['lim1n'] else min(CFG['limr'], SLOT)}")
    X.append(Op(bar0, 1, deps=[(("qk", 0, nq - 1, 1), 0), (("addr", 3), 0)]))
    rd = [x for sl in slots[P:2 * P] for x in sl.mem]
    for k, x in enumerate(rd): X.append(Op(x, deps=[(("qk", 1, nq - 1, 1), 0), (("addr", 11), 0)] if k >= 8 else []))
    X.append(Op(lambda A: A.wait_lds(("K", 7)), 0, deps=[(("e", vS + 33), 0)]))
    if nq == 3:
        n = CFG["midpoll"]
        for k in range(n): V.insert((n - k) * len(V) // (n + 1), Op(lambda A, k=k: emit_list(A, dq_pieces(f"m{k}")), 2))
    if nq == 4 and CFG["wotouch"] == "mid":
        pre = [f"s_mul_i32 {s(sT0)}, {s(sHG)}, {1024*1152}", f"s_mul_i32 {s(sT1)}, {s(sIDX)}, 36864", f"s_add_u32 {s(sT0)}, {s(sT0)}, {s(sT1)}",
               f"s_mul_i32 {s(sT1)}, {s(sW)}, 12288", f"s_add_u32 {s(sT0)}, {s(sT0)}, {s(sT1)}", f"s_add_u32 {s(sT0)}, {s(sT0)}, 4096",
               f"v_add_u32 v32, {s(sT0)}, {v(vOO)}", "v_add_u32 v33, 6144, v32"]
        for x in pre: A.e(x)
        n0 = len(V)
        for k in range(12):
            V.insert((12 - k) * n0 // 13, Op(lambda A, k=k: A.vmem(f"global_load_dwordx4 v[36:39], v{32 + k // 6}, s[88:89] offset:{1024*(k%6) - 4096}", "wot")))
    REGION[0] = "m"
    merge(A, M, V, X)

def qconvert(A, nq):
    A.e("s_nop 7")
    for qt in range(nq):
        for u in range(4):
            src = vACC + 32 * qt + 8 * u; dst = vQ + 16 * qt + 4 * u
            for j in range(4): A.e(f"v_pk_mul_f32 {v(src+2*j,2)}, {v(src+2*j,2)}, {s(sSC,2)}")
            for j in range(4): A.e(f"v_cvt_pk_bf16_f32 {v(dst+j)}, {v(src+2*j)}, {v(src+2*j+1)}")
        for sw in ("v_permlane32_swap_b32", "v_permlane16_swap_b32"):
            for u in range(4):
                dst = vQ + 16 * qt + 4 * u
                A.e(f"{sw} {v(dst)}, {v(dst+2)}")
                A.e(f"{sw} {v(dst+1)}, {v(dst+3)}")

def k_read(T, f):
    kt, s_ = f // 4, f % 4
    off = 8192 * (T % 2) + 4096 * kt
    return lambda A: A.ds(f"ds_read_b128 {a(aK+4*f,4)}, {v(vKA+s_)} offset:{off}", ("K", f))
def v_read(T, i):
    t, j = i // 2, i % 2
    off = 8192 * (T % 2) + 4096 * j
    return lambda A: A.ds(f"ds_read_b64_tr_b16 {a(aV+4*t+2*j,2)}, {v(vVA+t)} offset:{off}", ("V", i))
def qk_list(T, nq, czero=False):
    if CFG["qkorder"] == "A": order = [(kt, s_, qt) for kt in range(2) for s_ in range(4) for qt in range(nq)]
    else: order = [(kt, s_, qt) for qt in range(nq) for kt in range(2) for s_ in range(4)]
    out = []
    for kt, s_, qt in order:
        d = v(vS + 32 * (T % 2) + 8 * qt + 4 * kt, 4)
        c = d if s_ else ("0" if czero else v(vC + 4 * qt, 4))
        out.append(mfma(d, a(aK + 4 * (4 * kt + s_), 4), v(vQ + 16 * qt + 4 * s_, 4), c))
    return out
def crosslane_max(A, regs, tmp):
    for sw in ("v_permlane32_swap_b32", "v_permlane16_swap_b32"):
        for i, r in enumerate(regs): A.e(f"v_mov_b32 {v(tmp+i)}, {v(r)}")
        A.e("s_nop 1")
        for i, r in enumerate(regs): A.e(f"{sw} {v(tmp+i)}, {v(r)}")
        A.e("s_nop 1")
        for i, r in enumerate(regs): A.e(f"v_max_f32 {v(r)}, {v(r)}, {v(tmp+i)}")
def first_tile(A, nq):
    A.e("s_waitcnt lgkmcnt(0)")
    A.e("s_nop 0")
    for m in qk_list(0, nq, czero=True): A.e(m)
    A.e("s_nop 7")
    for qt in range(nq):
        b = vS + 8 * qt; c = vC + 4 * qt
        A.e(f"v_max3_f32 {v(c)}, {v(b)}, {v(b+1)}, {v(b+2)}")
        A.e(f"v_max3_f32 {v(c+1)}, {v(b+3)}, {v(b+4)}, {v(b+5)}")
        A.e(f"v_max3_f32 {v(c)}, {v(c)}, {v(b+6)}, {v(b+7)}")
        A.e(f"v_max_f32 {v(c)}, {v(c)}, {v(c+1)}")
    crosslane_max(A, [vC + 4 * qt for qt in range(nq)], vT)
    for qt in range(nq):
        b = vS + 8 * qt; c = vC + 4 * qt
        for e in range(8): A.e(f"v_sub_f32 {v(b+e)}, {v(b+e)}, {v(c)}")
        for e in (3, 2, 1, 0): A.e(f"v_sub_f32 {v(c+e)}, 0, {v(c)}")

WO3 = []
NLOOP = {4: 15, 3: 13}
def attn_slots(nq):
    P = 17 * nq; NT = 34
    slots = [Slot() for _ in range(NT * P)]
    E = [2 * e - 4 for e in range(8 * nq)]
    Em = set(x % P for x in E)
    others = [j for j in range(P) if j not in Em]
    BARP = 8 * nq - 2
    aft = [j for j in others if j > BARP]
    kpos = aft[:8]
    seq = aft[12 if nq == 4 else 8:] + [j + P for j in others if j < BARP]
    vpos = [x for x in seq if x % 2 == 1][:16] if nq == 4 else seq[:16]
    assert vpos[-1] + 6 <= P + BARP, vpos
    peel = 2 * (NLOOP[nq] + 1) * P
    unit = 0
    for T in range(NT):
        g = T * P
        if T < 32:
            for i, m in enumerate(qk_list(T, nq)): slots[g + i].m = m
        if 0 < T <= 32: slots[g - 1].sal.append(lambda A: A.wait_lds(("K", 7)))
        Tp = T - 2
        if 0 <= Tp < 32:
            pb = vP + 16 * (Tp % 2); k = 8 * nq
            for t in range(8):
                for qt in range(nq):
                    d = a(aO + 32 * qt + 4 * t, 4)
                    slots[g + k].m = mfma(d, a(aV + 4 * t, 4), v(pb + 4 * qt, 4), d); k += 1
            for qt in range(nq):
                d = a(aL + 4 * qt, 4)
                slots[g + k].m = mfma(d, v(vONE, 4), v(pb + 4 * qt, 4), d); k += 1
            for i in range(16): slots[g - P + vpos[i]].mem.append(v_read(Tp, i))
            slots[g + BARP].sal.append(lambda A: A.wait_lds(("V", 15)))
        Ts = T - 1
        if 0 <= Ts < 32:
            sb = vS + 32 * (Ts % 2); pb = vP + 16 * (Ts % 2)
            for e in range(8 * nq):
                slots[g + E[e]].valu.append(f"v_exp_f32 {v(sb+e)}, {v(sb+e)}")
                if e % 2: slots[g + E[e] + 1].valu.append(f"v_cvt_pk_bf16_f32 {v(pb+e//2)}, {v(sb+e-1)}, {v(sb+e)}")
        if T < 32:
            for f in range(8): slots[g + kpos[f]].mem.append(k_read(T + 1, f))
        if T < 32 and T % 2 == 1:
            n = T // 2
            if nq == 3:
                if g < peel:
                    for k, grp in enumerate(dq_landed()): slots[g + BARP - 7 + k].sal += grp
                    def chk(A):
                        A.e(f"s_cbranch_scc0 L_dqwait_{REGION[0]}")
                        A.label(f"L_dqok_{REGION[0]}")
                    slots[g + BARP].sal.append(chk)
                    slots[g + BARP + 1].sal += [f"s_cmp_lt_u32 {s(sNEED)}, {(CFG['lim1n'] + 1) * SLOT}", f"s_cselect_b32 {s(sVM)}, {(CFG['limr'] - CFG['lim1']) // 512}, 0"]
                    slots[g + BARP + 2].sal += [f"s_lshl_b32 {s(sVM)}, {s(sVM)}, 9", f"s_sub_u32 {s(sLIM)}, {s(sLIM)}, {s(sVM)}"]
                    slots[g + BARP + 3].sal += [f"s_add_u32 {s(sLIM)}, {s(sLIM)}, {CFG['limr']}", f"s_add_u32 {s(sVM)}, {s(sNEED)}, {4*SLOT}"]
                    slots[g + BARP + 4].sal += [f"s_min_u32 {s(sLIM)}, {s(sLIM)}, {s(sVM)}", f"s_min_u32 {s(sLIM)}, {s(sLIM)}, {16*SLOT}",
                                                f"s_add_u32 {s(sNEED)}, {s(sNEED)}, {SLOT}"]
                else: slots[g + BARP].sal.append(lambda A, n=n: A.wait_vm(("u", 8 * (n - 3) - 1)))
            slots[g + BARP].sal.append("s_barrier")
            slots[g].sal += [f"s_cmp_eq_u32 {s(sKOFF)}, {4*SLOT}", f"s_cselect_b32 {s(sDK)}, {s(sM4)}, {SLOT}"]
            slots[g + 1].sal.append(f"s_add_u32 {s(sKOFF)}, {s(sKOFF)}, {s(sDK)}")
            cv = set((x + 1) % P for k, x in enumerate(E) if k % 2)
            free = [j for j in others if j not in cv]
            kfree = [j for j in free if 2 < j < kpos[0]][:4]
            for i in range(4): slots[g + kfree[i]].valu.append(f"v_add_u32 {v(vKA+i)}, {s(sDK)}, {v(vKA+i)}")
            vfree = [j for j in free if vpos[-1] - P < j < vpos[0] and j not in kfree]
            while len(vfree) < 8: vfree = sorted(vfree + vfree[:8 - len(vfree)])
            for i in range(8): slots[g + vfree[i]].valu.append(f"v_add_u32 {v(vVA+i)}, {s(sDK)}, {v(vVA+i)}")
            if nq == 3:
                PP = {2: [78, 132], 3: [78, 110, 140], 4: [78, 106, 132, 156], 5: [78, 105, 122, 139, 156]}[CFG["npoll"]]
                for u, pp in enumerate(PP):
                    p = g - P + pp
                    if p >= peel: break
                    pc = dq_pieces(f"{u}")
                    pc = [pc[0] + pc[1], pc[2] + pc[3], pc[4] + pc[5]] + pc[6:]
                    assert not any((p + k) % (2 * P) in (0, 1, 2, P, P + 1, 2 * P - 3, 2 * P - 2, 2 * P - 1) for k in range(len(pc)))
                    assert p + len(pc) <= g + 2 * P + BARP - 7 and not any(isinstance(x, str) for k in range(len(pc)) for x in slots[p + k].sal), (u, p - g)
                    for k, grp in enumerate(pc): slots[p + k].sal += grp
    if nq == 3:
        freeat = {0: 12, 1: 13, 2: 14, 3: 15, 4: 11, 5: 12, 6: 13, 7: 14, 8: 15}
        byb = {13: [], 14: [], 15: []}
        for gidx in range(72):
            w, gi = gidx // 18, gidx % 18
            ks, j = 8 * w + gi // 3, gi % 3
            byb[max(13, freeat[gidx * 2048 // SLOT])] += wo_group(f"s_mov_b32 m0, {gidx*2048}", f"s_mov_b32 {s(sT3)}, {ks*36864 + 64*j}", "wo1")
        b14 = 29 * P + BARP; b15 = 31 * P + BARP
        if CFG["wotouch"] == "sl":
            wops = []
            for k in range(36):
                wops.append(("mem", lambda A, k=k: A.vmem(f"global_load_dwordx4 v[240:243], v{254 - 2*0 if False else 244 + k // 6}, s[88:89] offset:{1024*(k%6) - 4096}", "wot")))
            w0, w1 = CFG.get("wl0", 2), CFG.get("wl1", 50)
            place_ops(slots, [peel + w0 + k * (w1 - w0) // 36 for k in range(36)], wops)
        cand = [p for p in range(peel + CFG["wostart"], b15 - 1)]
        n1 = CFG["won1"]; n2 = min(CFG["won2"], 144 - n1)
        o1, o2, o3 = split_ops(byb[13] + byb[14] + byb[15], [n1, n2])
        assert n1 <= 112
        pos = [cand[k * len(cand) // n1] for k in range(n1)]
        assert n1 <= 80 or pos[80] > b14 + 1
        place_ops(slots, pos, o1)
        room = 32 * P - 1 - (b15 + 2)
        place_ops(slots, [b15 + 2 + 2 * (k // 2) * room // n2 for k in range(n2)], o2)
        WO3[:] = o3
    return slots, P

def fix_nomfma(slots):
    for sl in slots:
        if sl.m is None and (sl.valu or sl.mem): sl.sal.insert(0, "s_nop 0")

def attention(A, nq):
    R = f"q{nq}"
    slots, P = attn_slots(nq)
    prologue(A, nq, slots, P)
    F = Asm()
    F.label(f"L_attn_{R}")
    for i in range(8 * nq): slots[i].m = None
    pro = slots[8 * nq:2 * P]; fix_nomfma(pro)
    for sl in slots[:8 * nq]:
        for f in sl.mem: f(F)
    REGION[0] = "p"
    emit_slots(F, pro)
    F.e(f"s_branch L_steady_{R}")
    assert F.lds[-15:] == A.lds[-15:]
    A.e(f"s_waitcnt vmcnt({0 if nq == 4 else 32})")
    prewarm_flags(A)
    A.e(CMP_NON); A.e("s_nop 4"); A.e(f"s_cbranch_vccnz L_non{nq}_spin"); A.label(f"L_non{nq}_ok")
    spin(F, f"non{nq}", LD_NON, CMP_NON)
    A.label(f"L_steady_{R}")
    if nq == 3: census(A)
    REGION[0] = "l"
    NL = NLOOP[nq]
    A.e(f"s_mov_b32 {s(sCNT)}, {NL}")
    stamp(A, "loop")
    B = Asm(); B.lds = list(A.lds); B.vm = list(A.vm); texts = []
    for n in range(1, NL + 1):
        B.lines = []; emit_slots(B, slots[2 * n * P:2 * (n + 1) * P]); texts.append(B.text())
    assert all(t == texts[0] for t in texts), "steady state mismatch"
    A.raw(".p2align 6")
    A.label(f"L_loop_{R}")
    body = slots[2 * P:4 * P]
    body[-3].sal.append(f"s_sub_u32 {s(sCNT)}, {s(sCNT)}, 1")
    body[-2].sal.append(f"s_cmp_lg_u32 {s(sCNT)}, 0")
    if nq == 3 and CFG["wotouch"] == "loop":
        def tb(A):
            A.e(f"s_cmp_eq_u32 {s(sCNT)}, {CFG.get('wtit', 2)}")
            A.e("s_cbranch_scc0 L_nowt")
            wotouch(A)
            A.label("L_nowt")
        body[2].sal.append(tb)
    if nq == 3 and CFG["wotouch"] == "spread":
        lo = CFG.get("wtit", 5)
        def tb(A):
            A.e(f"s_sub_u32 {s(sT0)}, {s(sCNT)}, {lo}")
            A.e(f"s_cmp_lt_u32 {s(sT0)}, 5")
            A.e("s_cbranch_scc0 L_nowt")
            A.vmem(f"global_load_dword v255, v254, s[88:89]{CFG['nt_wt']}", "wot")
            A.e(f"v_add_u32 v254, 7168, v254")
            A.label("L_nowt")
        body[2].sal.append(tb)
    if nq == 3 and CFG["wotouch"] == "dyn":
        def br(A):
            A.e("s_cbranch_scc0 L_nowt")
            for h in range(3):
                for j in range(6): A.vmem(f"global_load_dwordx4 v[240:243], v254, s[88:89] offset:{1024*j - 4096}{CFG['nt_wt']}", "wot")
                A.e("v_add_u32 v254, 6144, v254")
            A.e(f"s_add_u32 {s(sT2)}, {s(sT2)}, 1")
            A.label("L_nowt")
        body[1].sal += [f"s_cmp_lt_u32 {s(sT2)}, {s(sQ)}"]
        body[2].sal += [br]
    if CFG["itst"] and nq == 3:
        B7 = P + 8 * nq - 2 - 1
        body[B7].sal = [f"s_add_u32 s64, {s(sQ)}, {s(sNEED)}", f"s_sub_u32 s64, s64, {s(sVM)}", f"v_cmp_eq_u32 vcc, {s(sCNT)}, {v(vLANE)}",
                        "v_mov_b32 v61, s64", "s_nop 0", "v_cndmask_b32 v62, v62, v61, vcc"] + body[B7].sal
    if CFG["itst"] and nq == 4:
        body[P + 8*nq].sal += ["s_memrealtime s[64:65]"]
        body[P + 8*nq + 24].sal += ["s_waitcnt lgkmcnt(0)", f"v_cmp_eq_u32 vcc, {s(sCNT)}, {v(vLANE)}", "v_mov_b32 v61, s64", "s_nop 0", "v_cndmask_b32 v62, v62, v61, vcc"]
    emit_slots(A, body)
    A.e(f"s_cbranch_scc1 L_loop_{R}")
    A.lds = B.lds; A.vm = B.vm
    if nq == 3:
        A.label("L_dqrest")
        emit_list(A, dq_prep())
        A.e(f"s_cmp_lt_u32 {s(sQ)}, {16*SLOT}")
        A.e("s_cbranch_scc0 L_dqdone")
        dq_block(A)
        A.e(f"s_cmp_eq_u32 {s(sP)}, {5*SLOT}")
        A.e(f"s_cselect_b32 {s(sP)}, 0, {s(sP)}")
        A.e("s_branch L_dqrest")
        A.label("L_dqdone")
        A.vm = [("u", 87)] + [("u", 95)] * 32
    if nq == 3 and CFG["wotouch"] == "t28": wotouch(A)
    if nq == 3 and CFG["wotouch"] in ("dyn", "end"):
        A.label("L_wtrest")
        A.e(f"s_cmp_lt_u32 {s(sT2)}, {s(sQ)}")
        A.e("s_cbranch_scc0 L_wtdone")
        for h in range(3):
            for j in range(6): A.e(f"global_load_dwordx4 v[240:243], v254, s[88:89] offset:{1024*j - 4096}{CFG['nt_wt']}")
            A.e("v_add_u32 v254, 6144, v254")
        A.e(f"s_add_u32 {s(sT2)}, {s(sT2)}, 1")
        A.e("s_branch L_wtrest")
        A.label("L_wtdone")
        A.vm += ["wot"] * 36
    emit_slots(A, slots[2 * (NL + 1) * P:32 * P])
    stamp(A, "loopend")
    tail(A, nq, slots, P)
    return F.text()

def tail(A, nq, slots, P):
    M = []; V = []; X = []
    X.append(Op(f"s_mov_b64 {s(sOV,2)}, 0", 0))
    for sl in slots[32 * P:32 * P + 8 * nq - 2]:
        for x in sl.mem: X.append(Op(x))
    def v31(i):
        t, j = i // 2, i % 2
        return lambda A: A.ds(f"ds_read_b64_tr_b16 {a(aK+4*t+2*j,2)}, {v(vVA+t)} offset:{8192+4096*j}", ("V31", i))
    NV = 4 if CFG["tord"] == 0 else 8
    if CFG["tord"]:
        for o in X: o.units = 0
    for i in range(NV): X.append(Op(v31(i), 0 if CFG["tord"] else 1))
    X.append(Op(lambda A: A.wait_lds(("V", 15)), 0, deps=[(("e", 0, 5), 0)] if CFG["tord"] else [], name="v30"))
    for i in range(NV, 16): X.append(Op(v31(i)))
    if nq == 3:
        grp = split_ops(WO3, [2] * (nmem(WO3) // 2))
        for k, g in enumerate(grp):
            if g: V.append(Op(lambda A, g=g: emit_ops(A, g), 2))
        WV = list(V); V.clear()
    X.append(Op(lambda A: A.wait_lds(("V31", 15)), 0, deps=[(("pv", 0, 1 if CFG["tord"] == 0 else 0), 0)], name="v31"))
    X.append(Op(f"s_mov_b32 {s(sT0)}, {f32hex(2.0**40)}", 0, name="thr"))
    def pv(T, qt):
        pb = vP + 16 * T + 4 * qt
        deps = [("v30", 0)] if T == 0 else [("v31", 0), (("p", qt), 2)]
        d = a(aL + 4 * qt, 4)
        M.append(Op(mfma(d, v(vONE, 4), v(pb, 4), d), deps=deps, name=("sum", T, qt)))
        for t in range(8):
            d = a(aO + 32 * qt + 4 * t, 4)
            M.append(Op(mfma(d, a((aK if T else aV) + 4 * t, 4), v(pb, 4), d), name=("pv", T, qt) if t == 7 else ("pvt", T, qt, t)))
    def soft(qt):
        sb = vS + 32 + 8 * qt; pb = vP + 16 + 4 * qt
        for e in range(2 if qt == 0 else 0, 8): V.append(Op(f"v_exp_f32 {v(sb+e)}, {v(sb+e)}", 2, name=("e", qt, e)))
        for j in range(1 if qt == 0 else 0, 4):
            V.append(Op(f"v_cvt_pk_bf16_f32 {v(pb+j)}, {v(sb+2*j)}, {v(sb+2*j+1)}", deps=[(("e", qt, 2*j+1), 1)], name=("p", qt) if j == 3 else None))
    def pub_a(A):
        A.e(f"s_cmp_lg_u32 {s(sSECOND)}, 0")
        A.e(f"s_cselect_b64 {s(sOV,2)}, 0, {s(sOV,2)}")
        A.e(f"s_cmp_eq_u64 {s(sOV,2)}, 0")
        A.e(f"s_cselect_b32 {s(sT1)}, {s(sFL)}, {WS_SIZE}")
        A.wait_vm(("st", 0))
        A.vmem(f"buffer_store_dwordx2 {v(vNON,2)}, {v(vFW)}, {s(sWS,4)}, {s(sT1)} offen sc1", "pubA")
        for r in (sFL, sOS, sOS + 1): A.e(f"s_cselect_b32 {s(r)}, {WS_SIZE}, {s(r)}")
    cnt = [0]
    def norm(qt):
        r = vT + 2 * (qt % 2)
        V.append(Op(f"v_accvgpr_read_b32 {v(r)}, {a(aL+4*qt)}", deps=[(("sum", 1, qt), 8), ("thr", 0)]))
        V.append(Op(f"v_cmp_ngt_f32 vcc, {s(sT0)}, {v(r)}", name=("cmp", qt)))
        V.append(Op(f"v_rcp_f32 {v(r)}, {v(r)}", 2))
        for u in range(4):
            k = cnt[0]; cnt[0] += 1
            tb = vS + 8 * (k % 4); pb = vC + 4 * (k % 8)
            for j in range(8):
                t = 2 * u + j // 4
                V.append(Op(f"v_accvgpr_read_b32 {v(tb+j)}, {a(aO + 32*qt + 8*u + j)}", deps=[(("pv", 1, qt) if t == 7 else ("pvt", 1, qt, t), 8)]))
            if u == 0:
                if qt < 2: V.append(Op(f"s_or_b64 {s(sOV,2)}, {s(sOV,2)}, vcc", deps=[(("cmp", qt), 4)]))
                V.append(Op(f"v_addc_co_u32 {v(vT+4)}, vcc, 0, {v(vT+4)}, vcc", deps=[(("cmp", qt), 2)]))
            if k >= ((5 if nq == 4 else 3) if CFG["tord"] == 0 else (6 if nq == 4 else 5)):
                for j in range(4): V.append(Op(f"v_pk_mul_f32 {v(tb+2*j,2)}, {v(tb+2*j,2)}, {v(r,2)} op_sel_hi:[1,0]"))
            else:
                for j in range(8): V.append(Op(f"v_mul_f32 {v(tb+j)}, {v(tb+j)}, {v(r)}"))
            for j in range(4):
                V.append(Op(f"v_cvt_pk_bf16_f32 {v(pb+j)}, {v(tb+2*j)}, {v(tb+2*j+1)}", deps=[(("st", k - 8), 2)] if k >= 8 else [], name=("o", k) if j == 3 else None))
            X.append(Op(lambda A, pb=pb, u=u, qt=qt: A.vmem(f"buffer_store_dwordx4 {v(pb,4)}, {v(vOO)}, {s(sWS,4)}, {s(sOS+qt)} offen offset:{1024*u} sc1", ("st", qt // 2)),
                        2, deps=[(("o", k), 0)], name=("st", k)))
            if k == min(CFG["pubA"], 4 * nq - 1): X.append(Op(pub_a))
    V.append(Op(f"v_mov_b32 {v(vT+4)}, 0"))
    if CFG["tord"] == 0:
        for qt in range(nq): soft(qt)
        if nq == 3:
            n0 = len(V)
            for k, o in enumerate(reversed(WV)): V.insert((len(WV) - 1 - k) * n0 // max(len(WV), 1), o)
        pv(0, 0); pv(0, 1); pv(1, 0); pv(1, 1)
        for qt in range(2, nq): pv(0, qt); pv(1, qt)
        for qt in range(nq): norm(qt)
    else:
        assert nq == 4 or not WV
        soft(0); soft(1); norm(0)
        for qt in range(2, nq): soft(qt)
        for qt in range(1, nq): norm(qt)
        pv(0, 0); pv(1, 0); pv(0, 1); pv(1, 1)
        for qt in range(2, nq): pv(0, qt)
        for qt in range(2, nq): pv(1, qt)
    merge(A, M, V, X)
    stamp(A, "pvdone")

def wo_read(ksl, n, jj):
    gi = ksl * 3 + n // 2
    off = 2048 * (gi if gi < 18 else gi - 18) + 1024 * jj
    return lambda A: A.ds(f"ds_read_b64_tr_b16 {a((ksl*6+n)*4 + 2*jj, 2)}, {v(vWT + n % 2)} offset:{off}", ("W", ksl))

def wo2(A):
    A.e(f"s_mul_i32 {s(sT2)}, {s(sW)}, {8*36864}")
    for gi in range(18, 24):
        emit_ops(A, wo_group(f"s_add_u32 m0, {s(sWOW)}, {2048*(gi-18)}", f"s_add_u32 {s(sT3)}, {s(sT2)}, {(gi//3)*36864 + 64*(gi%3)}", "wo2"))
def epilogue(A, nq):
    R = f"q{nq}"
    if nq == 3: A.wait_vm("wo1")
    A.e("s_barrier")
    stamp(A, "barX")
    A.e(f"v_lshlrev_b32 {v(vT+5)}, 2, v0")
    A.e(f"v_add_u32 {v(vT+5)}, {OVF}, {v(vT+5)}")
    A.ds(f"ds_write_b32 {v(vT+5)}, {v(vT+4)}", "flag")
    for ksl in range(6):
        for n in range(6):
            for jj in range(2): wo_read(ksl, n, jj)(A)
        if ksl == 3 and CFG["wo2early"]:
            A.wait_lds(("W", 1))
            wo2(A)
    A.e(f"v_add_u32 {v(vT+5)}, {OVF}, {v(vOO)}")
    A.e("s_waitcnt lgkmcnt(0)")
    A.e("s_barrier")
    stamp(A, "barY")
    A.e(f"ds_read_b128 {v(vT,4)}, {v(vT+5)}")
    A.e("s_waitcnt lgkmcnt(0)")
    A.e(f"v_or_b32 {v(vT)}, {v(vT)}, {v(vT+1)}")
    A.e(f"v_or3_b32 {v(vT)}, {v(vT)}, {v(vT+2)}, {v(vT+3)}")
    A.e(f"v_cmp_ne_u32 vcc, 0, {v(vT)}")
    A.e(f"s_cmp_lg_u32 {s(sSECOND)}, 0")
    A.e("s_cbranch_scc1 L_phase2")
    A.e("s_nop 2")
    A.e(f"s_cbranch_vccnz L_fallback_{R}")
    if nq == 4: A.e("s_branch L_phase2")
    return ""

def fallback(A, nq):
    R = f"q{nq}"
    A.label(f"L_fallback_{R}")
    A.e(f"s_mov_b32 {s(sSECOND)}, 1")
    attn_init(A)
    for qt in range(nq): A.e(f"v_mov_b32 {v(vC+4*qt)}, 0xff800000")
    A.e(f"s_mov_b32 {s(sT2)}, {s(sW4K)}")
    A.e(f"s_mov_b32 {s(sCNT)}, 16")
    A.e("s_waitcnt vmcnt(0)")
    A.label(f"L_fb_loop_{R}")
    A.e("s_barrier")
    emit_ops(A, kv_quarter("K", f"s_add_u32 m0, {s(sW4K)}, {KPOS(0)}", f"s_mov_b32 {s(sT3)}, {s(sT2)}", "fb"))
    A.e("s_waitcnt vmcnt(0)")
    A.e("s_barrier")
    for T in range(2):
        for f in range(8): k_read(T, f)(A)
        A.e("s_waitcnt lgkmcnt(0)")
        for m in qk_list(T, nq, czero=True): A.e(m)
        A.e("s_nop 7")
        for qt in range(nq):
            b = vS + 32 * T + 8 * qt; c = vC + 4 * qt
            for e in range(0, 8, 2): A.e(f"v_max3_f32 {v(c)}, {v(c)}, {v(b+e)}, {v(b+e+1)}")
    A.e(f"s_add_u32 {s(sT2)}, {s(sT2)}, {SLOT}")
    A.e(f"s_sub_u32 {s(sCNT)}, {s(sCNT)}, 1")
    A.e(f"s_cmp_lg_u32 {s(sCNT)}, 0")
    A.e(f"s_cbranch_scc1 L_fb_loop_{R}")
    crosslane_max(A, [vC + 4 * qt for qt in range(nq)], vT)
    for qt in range(nq):
        c = vC + 4 * qt
        for e in (3, 2, 1, 0): A.e(f"v_sub_f32 {v(c+e)}, 0, {v(c)}")
    A.e("s_barrier")
    for kind, n in (("K", 0), ("K", 1), ("V", 0), ("K", 2), ("V", 1), ("K", 3), ("V", 2), ("K", 4), ("V", 3)):
        emit_ops(A, kv_own(kind, n))
    zero_acc(A, nq); zero_l(A, nq)
    A.e(f"s_mov_b32 {s(sP)}, {KPOS(5)}")
    A.e(f"s_mov_b32 {s(sQ)}, {4*SLOT}")
    A.e(f"s_mov_b32 {s(sLIM)}, {4*SLOT}")
    A.e(f"s_mov_b32 {s(sNEED)}, {SLOT}")
    A.e("s_waitcnt vmcnt(0)")
    A.e("s_barrier")
    for f in range(8): k_read(0, f)(A)
    A.e("s_waitcnt lgkmcnt(0)")
    for m in qk_list(0, nq): A.e(m)
    A.e("s_nop 7")
    A.e(f"s_branch L_attn_{R}")

def spin(A, name, load, cmp_):
    A.label(f"L_{name}_spin")
    A.e(f"s_mov_b32 {s(sCNT)}, {CFG['spin']}")
    A.label(f"L_{name}_again")
    A.e(load)
    A.e("s_waitcnt vmcnt(0)")
    A.e(cmp_)
    A.e(f"s_sub_u32 {s(sCNT)}, {s(sCNT)}, 1")
    A.e("s_nop 2")
    A.e(f"s_cbranch_vccz L_{name}_ok")
    A.e(f"s_sleep {CFG.get('slp', 1)}")
    A.e(f"s_cmp_lg_u32 {s(sCNT)}, 0")
    A.e(f"s_cbranch_scc1 L_{name}_again")
    A.e(f"s_branch L_{name}_ok")

def phase2(A):
    vF = vT
    vAC = 64
    vTR = 112
    vPA = 192
    vRR2 = 32
    vOH = 37
    PB = CFG["pb"]
    vO4 = 38
    sPS2 = sCH; sPF2 = sCH + 2
    aOF = 192
    ld_non = f"buffer_load_dwordx2 {v(vNON,2)}, off, {s(sDBG,4)}, 0 offset:128 sc1"
    cmp_non = f"v_cmp_eq_u64 vcc, 0, {v(vNON,2)}"
    ld_fo = f"buffer_load_dwordx2 {v(vF,2)}, {v(vFO)}, {s(sWS,4)}, 0 offen sc1"
    ld_fa = f"buffer_load_dwordx2 {v(vF,2)}, {v(vFA)}, {s(sWS,4)}, 0 offen sc1"
    ld_fb = f"buffer_load_dwordx2 {v(vF,2)}, {v(vFA+1)}, {s(sWS,4)}, 0 offen sc1"
    cmp_f = f"v_cmp_ne_u64 vcc, {v(vF,2)}, {v(vNON,2)}"
    def check(A, name, cmp_):
        A.e(cmp_); A.e("s_nop 4"); A.e(f"s_cbranch_vccnz L_{name}_spin"); A.label(f"L_{name}_ok")
    A.label("L_phase2")
    pub_b = f"buffer_store_dwordx2 {v(vNON,2)}, {v(vFW)}, {s(sWS,4)}, {s(sFL+1)} offen sc1"
    ld_fo2 = ld_fo.replace(" offen", f" offen offset:{1 << (FSH - 1)}")
    A.e(f"s_cmp_lt_u32 {s(sIDX)}, 30")
    A.e("s_cbranch_scc1 L_tile")
    A.e("s_waitcnt vmcnt(0)")
    A.e(pub_b)
    A.e("s_branch L_fin")
    A.label("L_tile")
    A.vmem(ld_fo, "fo")
    A.e(f"v_and_b32 {v(vFA+1)}, 0xffffff7f, {v(vFA)}")
    A.e(f"v_add_u32 {v(vFA+1)}, 256, {v(vFA+1)}")
    for r in range(5): A.e(f"v_add_u32 {v(vRR2+r)}, {2*WOW}, {v(vRR+r)}")
    A.e(f"v_add_u32 {v(vO4)}, 4096, {v(vOO)}")
    A.e(f"v_lshrrev_b32 {v(vOH)}, 5, {v(vLANE)}")
    A.e(f"v_lshlrev_b32 {v(vOH)}, 30, {v(vOH)}")
    A.e(f"v_lshl_add_u32 {v(vOH)}, {v(vLANE)}, {3 if PB else 4}, {v(vOH)}")
    if not PB: A.e(f"v_add_u32 {v(vOH)}, 4096, {v(vOH)}")
    A.e("s_waitcnt vmcnt(1)")
    A.vmem(pub_b, "pubB")
    if not CFG["wo2early"]: wo2(A)
    A.wait_vm("fo")
    check(A, "fo", cmp_f)
    stamp(A, "oready")
    D = CFG["D"]; NB = 16
    NST = 96
    slots = [Slot() for _ in range(NST * 6)]
    def load(st):
        q, i, ksl = st // 24, (st // 8) % 3, st % 8
        ops = []
        if ksl % 4 == 0: ops.append(("sal", f"s_add_u32 {s(sT1)}, {s(sPO+q)}, {OM*i + 1024*ksl}"))
        ops.append(("mem", lambda A: A.vmem(
            f"buffer_load_dwordx4 {a(aOF + 4*(st%NB), 4)}, {v(vOO)}, {s(sWS,4)}, {s(sT1)} offen offset:{1024*(ksl%4)}{CFG['nt_ol']}", ("o", st))))
        return ops
    for st in range(D): emit_ops(A, load(st))
    if not CFG["wo2early"]: A.wait_vm("wo2")
    for ksl in (6, 7):
        for n in range(6):
            for jj in range(2): wo_read(ksl, n, jj)(A)
    A.wait_vm(("o", 0))
    def acc(blk, n): return vAC + 24 * (blk % 2) + 4 * n
    CH = CFG["gchain"]
    for st in range(NST):
        blk, ksl = st // 8, st % 8
        g0 = st - st % CH
        for n in range(6):
            d = v(acc(blk, n), 4)
            slots[6 * g0 + CH * n + st % CH].m = mfma(d, a((ksl * 6 + n) * 4, 4), a(aOF + 4 * (st % NB), 4), d if ksl else "0")
        if st: slots[6 * g0 + st % CH - 1].sal.append(lambda A, st=st: A.wait_vm(("o", st)))
    pB = 6 * (40 - D)
    slots[pB - 50].mem.append(lambda A: A.vmem(ld_fo2, "fo2"))
    slots[pB - 2].valu += [lambda A: A.wait_vm("fo2"), lambda A: check(A, "fo2", cmp_f)]
    assert D + CH <= NB
    LE = CFG.get("le", 16 - CH)
    nxt = D
    for st in range(NST):
        want = min(NST, st + 1 + (D if st < 62 else min(LE, D + (st - 62) // 2)))
        k = 0
        while nxt < want:
            place_ops(slots, [6 * st + 1 + 3 * k], load(nxt)); nxt += 1; k += 1
    slots[22].sal.append("s_waitcnt lgkmcnt(0)")
    def red_write(blk, n):
        return lambda A: A.ds(f"ds_write_b128 {v(vRW - n % 2)}, {v(acc(blk, n), 4)} offset:{RHALF*((blk//3)%2) + 16*(blk%3)*RSTR + 128*(n//2)}", ("rw", blk))
    def treg(r, src): return vTR + 16 * r + 4 * src
    def red_read(q, r, src):
        return lambda A: A.ds(f"ds_read_b128 {v(treg(r, src), 4)}, {v((vRR if src < 2 else vRR2)+r)} offset:{WOW*(src%2) + RHALF*(q%2)}", ("rr", q, r))
    def red_adds(r):
        t = [treg(r, k) for k in range(4)]
        return [f"v_add_f32 {v(t[0]+e)}, {v(t[0]+e)}, {v(t[1]+e)}" for e in range(4)] + \
               [f"v_add_f32 {v(t[2]+e)}, {v(t[2]+e)}, {v(t[3]+e)}" for e in range(4)] + \
               [f"v_add_f32 {v(t[0]+e)}, {v(t[0]+e)}, {v(t[2]+e)}" for e in range(4)]
    WSP = CFG.get("wsp", 4); WSP2 = CFG.get("wsp2", 4); R2 = CFG.get("r2", 130)
    for blk in range(11):
        first = 48 * (blk + 1) + (3 if (blk % 3 or blk == 0) else 14)
        for n in range(6): slots[first + (WSP2 if blk == 8 else WSP) * n].mem.append(red_write(blk, n))
        slots[48 * (blk + 2) - 2].sal.append(lambda A, blk=blk: A.wait_lds(("rw", blk)))
    for q in range(3):
        base = 144 * (q + 1)
        R1 = 4 + 6 * (WSP2 if q == 2 else WSP) + (4 if q == 2 and WSP2 < 4 else 0)
        if CFG["stamps"]: slots[base].sal.append(lambda A, q=q: stamp(A, f"p{q+1}"))
        slots[base + R1].sal += ["s_waitcnt lgkmcnt(0)", "s_barrier"]
        for k in range(20):
            if not CFG.get("x_nor") or k % 4 == 0: slots[base + R1 + 1 + k].mem.append(red_read(q, k // 4, k % 4))
        sal = [f"s_add_u32 {s(sT0)}, {s(sHG)}, {q+1}", f"s_and_b32 {s(sT0)}, {s(sT0)}, 3", f"s_sub_u32 {s(sT0)}, {s(sT0)}, {s(sHG)}",
               f"s_mul_i32 {s(sPS)}, {s(sT0)}, {2*12*5120}", f"s_add_u32 {s(sPS)}, {s(sPS)}, {s(sPL)}", f"s_add_u32 {s(sPS2 + q % 2)}, {s(sPS)}, {q*4*5120}",
               f"s_lshl_b32 {s(sT0)}, {s(sT0)}, 1", f"s_add_u32 {s(sT0)}, {s(sT0)}, s2", f"s_lshl_b32 {s(sT0)}, {s(sT0)}, 11",
               f"s_add_u32 {s(sT0)}, {s(sT0)}, {WS_PFLAG + 128*q}", f"s_lshl_b32 {s(sT2)}, {s(sW)}, 9",
               f"s_add_u32 {s(sPF2 + q % 2)}, {s(sT0)}, {s(sT2)}"]
        for k, x in enumerate(sal): slots[base - 14 + 2 * k].sal.append(x)
        p = base + R1 + 12
        for r in range(5):
            slots[p].sal.append(lambda A, q=q, r=r: A.wait_lds(("rr", q, r)))
            t = treg(r, 0); pk = treg(r & ~1, 1) + 2 * (r & 1)
            ls = red_adds(r)
            TG = CFG["tag"] and q == 2
            if TG:
                pk = treg(r, 1)
                ls = ls[:8] + [f"v_mov_b32 {v(pk+1)}, {v(vNON)}", f"v_mov_b32 {v(pk+3)}, {v(vNON)}"] + ls[8:] + \
                     [f"v_cvt_pk_bf16_f32 {v(pk)}, {v(t)}, {v(t+1)}", f"v_cvt_pk_bf16_f32 {v(pk+2)}, {v(t+2)}, {v(t+3)}"]
            elif PB: ls += [f"v_cvt_pk_bf16_f32 {v(pk)}, {v(t)}, {v(t+1)}", f"v_cvt_pk_bf16_f32 {v(pk+1)}, {v(t+2)}, {v(t+3)}"]
            for l in ls:
                while len(slots[p].valu) + len(slots[p].mem) >= 2: p += 1
                slots[p].valu.append(l)
            p += 1
            so = s(sPS2 + q % 2)
            if TG:
                txt = f"buffer_store_dwordx4 {v(pk, 4)}, {v(vOO if r < 4 else vO4)}, {s(sWS,4)}, {so} offen offset:{1024*(r%4)} sc1"
            elif PB:
                if r in (1, 3): txt = f"buffer_store_dwordx4 {v(treg(r-1, 1), 4)}, {v(vOO)}, {s(sWS,4)}, {so} offen offset:{1024*(r//2)} sc1"
                elif r == 4: txt = f"buffer_store_dwordx2 {v(pk, 2)}, {v(vOH)}, {s(sWS,4)}, {so} offen offset:2048 sc1"
                else: continue
            else:
                txt = f"buffer_store_dwordx4 {v(t, 4)}, {v(vOO if r < 4 else vOH)}, {s(sWS,4)}, {so} offen offset:{1024*(r%4)} sc1"
            slots[p].mem.append(lambda A, q=q, txt=txt: A.vmem(txt, ("ps", q)))
        if TG: continue
        pf = p + CFG.get("ackd", 50) if q < 2 else base + R2
        slots[pf].sal += [lambda A, q=q: A.wait_vm(("ps", q))]
        slots[pf].mem.append(lambda A, q=q: A.vmem(f"buffer_store_dwordx2 {v(vNON,2)}, {v(vFW)}, {s(sWS,4)}, {s(sPF2 + q % 2)} offen sc1", "pub"))
    def ploads(slot):
        ops = [("sal", f"s_add_u32 {s(sT3)}, {s(sPL)}, {4 * 5120 * slot}")]
        b = vPA + 20 * slot
        if CFG["tag"] and slot == 2:
            L = [f"buffer_load_dwordx4 {v(b+4*r, 4)}, {v(vOO if r < 4 else vO4)}, {s(sWS,4)}, {s(sT3)} offen offset:{1024*(r%4)} sc1" for r in range(5)]
        elif PB:
            L = [f"buffer_load_dwordx4 {v(b+4*k, 4)}, {v(vOO)}, {s(sWS,4)}, {s(sT3)} offen offset:{1024*k} sc1" for k in range(2)]
            L.append(f"buffer_load_dwordx2 {v(b+8, 2)}, {v(vOH)}, {s(sWS,4)}, {s(sT3)} offen offset:2048 sc1")
        else:
            L = [f"buffer_load_dwordx4 {v(b+4*r, 4)}, {v(vOO if r < 4 else vOH)}, {s(sWS,4)}, {s(sT3)} offen offset:{1024*(r%4)} sc1" for r in range(5)]
        return ops + [("mem", lambda A, x=x: A.vmem(x, ("pl", slot))) for x in L]
    def padd(A, slot, r, dst, first=False):
        b = vPA + 20 * slot
        for e in range(4):
            if PB:
                src = (b + 4 * r + 2 * (e // 2)) if (CFG["tag"] and slot == 2) else (b + 2 * r + e // 2); tmp = dst + e if first else vT + 2 + e
                A.e(f"v_and_b32 {v(tmp)}, 0xffff0000, {v(src)}" if e % 2 else f"v_lshlrev_b32 {v(tmp)}, 16, {v(src)}")
            else:
                tmp = b + 4 * r + e
                if first: A.e(f"v_mov_b32 {v(dst+e)}, {v(tmp)}")
        if not first:
            for e in range(4): A.e(f"v_add_f32 {v(dst+e)}, {v(dst+e)}, {v(vT+2+e if PB else b+4*r+e)}")
    base = 432
    FA = CFG.get("fa", 44); FC = CFG.get("fc", 100)
    slots[base + FA].mem.append(lambda A: A.vmem(ld_fa, "fa"))
    slots[base + FC].valu += [lambda A: A.wait_vm("fa"), lambda A: check(A, "fa", cmp_f)]
    pl = ploads(0) + ploads(1)
    place_ops(slots, [base + FC + 2 + k for k in range(nmem(pl))], pl)
    if CFG["early"]: slots[base + CFG.get("fbp", 120)].mem.append(lambda A: A.vmem(ld_fb, "fb"))
    emit_slots(A, slots)
    stamp(A, "mmdone")
    TAG = CFG["tag"]
    def tagcmp(A):
        b = vPA + 40; x = vT + 2
        A.e(f"v_xor_b32 {v(x)}, {v(b+1)}, {v(vNON)}")
        for k in range(1, 10):
            A.e(f"v_xor_b32 {v(x+1)}, {v(b+1+2*k)}, {v(vNON)}")
            A.e(f"v_or_b32 {v(x)}, {v(x)}, {v(x+1)}")
        A.e(f"v_cmp_ne_u32 vcc, 0, {v(x)}")
    vSUM = vAC
    def own(A):
        for n in range(6): red_write(11, n)(A)
        for r in range(5): padd(A, 0, r, vSUM + 4 * r, True); padd(A, 1, r, vSUM + 4 * r)
        A.e("s_waitcnt lgkmcnt(0)")
        A.e("s_barrier")
        for k in range(20): red_read(3, k // 4, k % 4)(A)
    if CFG["early"]:
        A.e("s_waitcnt vmcnt(0)")
        A.e(cmp_f); A.e("s_nop 4"); A.e("s_cbranch_vccnz L_fb_late")
        emit_ops(A, ploads(2))
        own(A)
        LATE = Asm()
        LATE.label("L_fb_late")
        LATE.e(ld_fb)
        own(LATE)
        LATE.e("s_waitcnt vmcnt(0)")
        check(LATE, "fb", cmp_f)
        emit_ops(LATE, ploads(2))
        LATE.e("s_branch L_fb_join")
        A.label("L_fb_join")
        stamp(A, "pready")
    else:
        A.vmem(ld_fb, "fb")
        A.wait_vm(("pl", 1))
        A.e("s_nop 0")
        own(A)
        A.wait_vm("fb")
        check(A, "fb", cmp_f)
        stamp(A, "pready")
        emit_ops(A, ploads(2))
    for r in range(5):
        A.wait_lds(("rr", 3, r))
        for l in red_adds(r): A.e(l)
        t = treg(r, 0)
        for e in range(4): A.e(f"v_add_f32 {v(t+e)}, {v(t+e)}, {v(vSUM+4*r+e)}")
    A.e("s_waitcnt vmcnt(0)")
    if TAG:
        ld_fb = "\n    ".join(lines(lambda B: emit_ops(B, ploads(2))))
        cmp_fb = "\n    ".join(lines(tagcmp))
        check(A, "fb", cmp_fb)
        stamp(A, "pready")
    else: cmp_fb = cmp_f
    for r in range(5):
        t = treg(r, 0)
        padd(A, 2, r, t)
        A.e(f"v_cvt_pk_bf16_f32 {v(t)}, {v(t)}, {v(t+1)}")
        A.e(f"v_cvt_pk_bf16_f32 {v(t+1)}, {v(t+2)}, {v(t+3)}")
        A.e(f"buffer_store_dwordx2 {v(t,2)}, {v(vOUT+r)}, {s(sOUT,4)}, 0 offen")
    A.label("L_fin")
    if CFG["stamps"]:
        A.e("s_waitcnt vmcnt(0)")
        stamp(A, "end")
        A.e(f"s_lshl_b32 {s(sT0)}, s2, 2")
        A.e(f"s_add_u32 {s(sT0)}, {s(sT0)}, {s(sW)}")
        A.e(f"s_lshl_b32 {s(sT0)}, {s(sT0)}, 8")
        A.e(f"s_cmp_eq_u32 {s(sT0)}, 0")
        A.e(f"s_cselect_b32 {s(sT1)}, 0, 256")
        A.e(f"s_add_u32 {s(sT0)}, {s(sT0)}, {WS_STAMP}")
        A.e(f"v_lshlrev_b32 v2, 2, {v(vLANE)}")
        A.e(f"buffer_store_dword v63, v2, {s(sWS,4)}, {s(sT0)} offen")
        A.e(f"s_add_u32 {s(sT0)}, {s(sT0)}, 0x40000")
        A.e(f"buffer_store_dword v62, v2, {s(sWS,4)}, {s(sT0)} offen")
        A.e("v_readlane_b32 s64, v63, 0")
        A.e(f"s_mov_b32 {s(sDBG+2)}, 64")
        A.e("s_nop 0")
        A.e("v_subrev_u32 v61, s64, v63")
        A.e(f"buffer_store_dword v61, v2, {s(sDBG,4)}, {s(sT1)} offen")
    if CFG.get("probe"):
        A.e(f"v_readlane_b32 s66, v63, {STAMPS.index(CFG['probe'])}")
        A.e(f"v_readlane_b32 s67, v63, {STAMPS.index(CFG.get('probe0', 'start'))}")
        A.e("v_readlane_b32 s68, v63, 0")
        A.e("s_nop 3")
        A.e("s_sub_u32 s66, s66, s67")
        A.e("s_min_u32 s66, s66, 6000")
        A.e("s_cmp_ge_u32 s2, 240")
        A.e("s_cselect_b32 s66, 0, s66")
        A.e("s_add_u32 s66, s66, 7000")
        A.label("L_pad")
        A.e("s_memrealtime s[64:65]")
        A.e("s_waitcnt lgkmcnt(0)")
        A.e("s_sub_u32 s64, s64, s68")
        A.e("s_cmp_lt_u32 s64, s66")
        A.e("s_cbranch_scc1 L_pad")
    A.label("L_end")
    A.e("s_endpgm")
    spin(A, "fo", ld_fo, cmp_f)
    spin(A, "fo2", ld_fo2, cmp_f)
    spin(A, "fa", ld_fa, cmp_f)
    spin(A, "fb", ld_fb, cmp_fb)
    if CFG["early"]: A.lines += LATE.lines

def kernel():
    A = Asm()
    A.raw(f".globl {KNAME}\n.p2align 8\n.type {KNAME},@function\n{KNAME}:")
    setup(A)
    out = A.text(); fb = ""
    for nq in (4, 3):
        A = Asm()
        A.label(f"L_role_q{nq}")
        qproj(A, nq)
        stamp(A, "qdone")
        fb += attention(A, nq)
        fb += epilogue(A, nq)
        out += A.text()
        F = Asm(); fallback(F, nq)
        if nq == 3: dq_slow(F, "p"); dq_slow(F, "l"); dq_slow(F, "m")
        fb += F.text()
    A = Asm(); phase2(A)
    return out + A.text() + "L_code_end:\n" + fb + f".fill {CFG.get('pad', 64)}, 4, 0xbf800000\nL_text_end:\n"

hdr = open("standalone__mha_block_cached__near_ridge.s.ref").read().split("; Override launch")[0]
txt = hdr + "; @launch grid=(256,1,1) block=(256,1,1) lds=163840\n" \
          + '.amdgcn_target "amdgcn-amd-amdhsa--gfx950"\n.text\n' + kernel() \
          + '.section .rodata,"a"\n' + descriptor(KNAME)
open(sys.argv[1], "w").write(txt)
```

```python
import sys, struct, math
from asmlib import *

CFG = dict(nt_kv=" nt", nt_x="", stamps=False, qkorder="C", qchain=False, dither=True, qpi=True, common=True, split=True, latesum=True, hold=2, holdpos=1, npre=4, nmid=0, pad=900, bgpre=True, clus=34, gchain=2, itst=False, rot="rot8l", touch="", mulh=4, mulb=2, rmask=7,
           kvq="0,0,0,4,8,12,12,12", kv7=8, pre=2, wo2early=True, woq="0,0,6,6,6,6,6,6", npoll=4, bl=8, pb=True, tag=False, prio=True, fline=True, tord=1, fwarm=2, pubA=15, early=True, lim0=45056, limr=14848, lim1=16384, lim1n=0, vth=18, midpoll=4, kvpos="end", vmw=36, spin=400000, fast=False, warm="v", D=11, wotouch="sl", restp=0, wl0=8, wl1=54, wostart=64, won1=144, won2=32, nt_wt="", nt_ol=" sc1", selft=False, x_nops=False, x_nored=False, x_nold=False, nt_st=" sc1")
for arg in sys.argv[2:]:
    k, val = arg.split("=")
    CFG[k] = {"True": True, "False": False}.get(val, int(val) if val.lstrip("-").isdigit() else val)
    if k.startswith("nt_"): CFG[k] = (" " + val.replace("+", " ")) if val not in ("", "none") else ""
KNAME = "standalone__mha_block_cached__near_ridge_kernel"

def f32hex(x): return "0x%08x" % struct.unpack("<I", struct.pack("<f", x))[0]
SCALE = math.log2(math.e) / math.sqrt(128.0)

SLOT = 16384
VRING = 5 * SLOT
def KPOS(n): return SLOT * ((n + 3) % 5)
def VPOS(n): return VRING + SLOT * ((n + 4) % 5)
WS0 = 0
XS0 = VRING
def XS(kc): return XS0 + 32768 * ((kc + 1) % 2)
def WS(kc): return WS0 + SLOT * (kc % 3)
WOW = 36864
OVF = 9 * SLOT
RSTR = 384; RHALF = 48 * RSTR
WS_O = 0
OM = 32768
FSH = CFG.get("fsh", 8)
WS_FLAG = 16 << 20
WS_PFLAG = WS_FLAG + (512 << 10)
WS_CENS = WS_FLAG + (1 << 20)
WS_PART = 20 << 20
WS_STAMP = 40 << 20
WS_SIZE = 48 << 20
sX, sWQ, sK, sV, sK1, sWS, sWO, sOUT, sDBG = 4, 8, 12, 16, 20, 24, 28, 32, 36
sW, sB, sH = 40, 41, 42
sT0, sT1, sT2, sT3 = 43, 44, 45, 46
sWQO = 47
sKOFF, sDK, sM4, sP, sQ = 48, 49, 50, 51, 52
sCNT, sW4K, sSECOND = 53, 54, 55
sSC = 56
sXB, sXE, sWB = 58, 59, 60
sOST = 61
sOLD = 62
sHG, sIDX = 63, 68
sCH = 70
sPO = 96
sPS = 3
sWOW = 69
sXE2 = 100
sLIM, sINC, sNEED, sVM = 58, 59, 60, 47
sOS = 80
sFL = 84
sOV = 86
sPL = 79
vLANE = 1
vKA = 2; vVA = 6; vVD = 14; vOO = 16; vONE = 20
vT = 24
vWA = 32; vXA = 208
vWD2 = 41
vWT = 44
vFW = 17
vRW = 19
vRR = 46
vOUT = 51
vNON = 56
vFO = 58
vFP = 59
vFA = 60
vGRP = 30
vXD = 192; vWD = 202
vS = 64; vP = 128; vC = 160; vQ = 192; vACC = 64
aO = 0; aK = 128; aV = 160; aL = 192
aQA = 128; aQB = 192

class Slot:
    def __init__(self, m=None):
        self.m = m; self.sal = []; self.mem = []; self.valu = []
def emit_slots(A, slots):
    for sl in slots:
        if sl.m: A.e(sl.m)
        for f in sl.sal + sl.mem + sl.valu:
            if isinstance(f, str): A.e(f)
            else: f(A)

class Op:
    def __init__(self, x, units=1, deps=(), name=None):
        self.x = x; self.units = units; self.deps = list(deps); self.name = name
def merge(A, M, V, X):
    pos = {}; cur = [0]
    def ready(o): return all(n in pos and cur[0] - pos[n] - 1 >= d for n, d in o.deps)
    def put(o):
        n0 = len(A.lines)
        if isinstance(o.x, str): A.e(o.x)
        else: o.x(A)
        cur[0] += 1 if len(A.lines) > n0 else 0
        if o.name: pos[o.name] = cur[0] - 1
    M, V, X = list(M), list(V), list(X)
    while M or V or X:
        did = False; budget = 2
        if M and ready(M[0]): put(M.pop(0)); did = True
        while X and ready(X[0]) and budget > 0:
            o = X.pop(0); put(o); budget -= o.units; did = True
            if o.units: break
        while V and ready(V[0]) and budget > 0:
            o = V.pop(0); put(o); budget -= o.units; did = True
        if not did:
            heads = [q[0] for q in (M, V, X) if q]
            assert any(all(n in pos for n, _ in o.deps) for o in heads), [(o.x, o.deps) for o in heads]
            A.e("s_nop 0"); cur[0] += 1

STAMPS = CFG["stlist"].split(",") if CFG.get("stlist") else ["start", "bm1", "b3", "qdone", "loop", "loopend", "pvdone", "barX", "barY", "oready", "p1", "p2", "p3", "mmdone", "pready", "end"]
def stamp(A, name):
    if not CFG["stamps"] or name not in STAMPS: return
    i = STAMPS.index(name)
    A.e("s_memrealtime s[64:65]")
    A.e("s_memtime s[66:67]")
    A.e("s_waitcnt lgkmcnt(0)")
    A.e(f"v_writelane_b32 v63, s64, {i}")
    A.e(f"v_writelane_b32 v63, s66, {32+i}")

def dma(A, voff, srd, soff, imm, tag, flag):
    A.vmem(f"buffer_load_dwordx4 {v(voff)}, {s(srd,4)}, {soff} offen offset:{imm}{flag} lds", tag)
def lines(fn):
    B = Asm(); fn(B); return [l.strip() for l in B.lines]

def emit_ops(A, ops):
    prev = None
    for kind, o in ops:
        if kind == "mem" and prev == "m0": A.e("s_nop 0")
        if isinstance(o, str): A.e(o)
        else: o(A)
        prev = "m0" if isinstance(o, str) and " m0," in o else kind
def place_ops(slots, positions, ops):
    pend = []; k = 0
    for kind, o in ops:
        if kind == "sal": pend.append(o)
        else:
            p = positions[k]; k += 1
            if pend:
                if k > 1 and positions[k-2] == p: slots[p].mem += pend + ["s_nop 0"]
                elif k > 1 and positions[k-2] == p - 1: slots[p-1].valu += pend
                elif len(pend) == 2 and not (k > 1 and positions[k-2] == p - 2): slots[p-2].sal.append(pend[0]); slots[p-1].sal.append(pend[1])
                else: slots[p-1].sal += pend
                pend = []
            slots[p].mem.append(o)
def nmem(ops): return sum(1 for k, _ in ops if k == "mem")
def split_ops(ops, counts):
    out = []; cur = []; k = 0; n = 0
    for o in ops:
        while k < len(counts) and n == counts[k]:
            out.append(cur); cur = []; n = 0; k += 1
        cur.append(o)
        if o[0] == "mem": n += 1
    out.append(cur)
    while len(out) < len(counts) + 1: out.append([])
    return out
def weave(A, fn, ops):
    B = Asm(); B.lds = A.lds; B.vm = A.vm
    fn(B)
    groups = []; cur = []
    for o in ops:
        cur.append(o)
        if o[0] == "mem": groups.append(cur); cur = []
    pos = [(k + 1) * len(B.lines) // (len(groups) + 1) for k in range(len(groups))]
    k = 0
    for i, l in enumerate(B.lines):
        while k < len(groups) and pos[k] == i:
            emit_ops(A, groups[k]); k += 1
        A.lines.append(l)

def kv_quarter(kind, m0, soffset, tag):
    srd = sK if kind == "K" else sV
    return [("sal", soffset), ("sal", m0)] + \
           [("mem", lambda A, i=i: dma(A, vVD + (i & 1), srd, s(sT3), 1024 * i, tag, CFG["nt_kv"])) for i in range(4)]
def kv_full(kind, n):
    ops = []
    for w in range(4):
        base = (KPOS(n) if kind == "K" else VPOS(n)) + 4096 * w
        ops += kv_quarter(kind, f"s_mov_b32 m0, {base}", f"s_mov_b32 {s(sT3)}, {n*SLOT + 4096*w}", (kind, n))
    return ops
def kv_own(kind, n):
    base = KPOS(n) if kind == "K" else VPOS(n)
    return kv_quarter(kind, f"s_add_u32 m0, {s(sW4K)}, {base}", f"s_add_u32 {s(sT3)}, {s(sW4K)}, {n*SLOT}", (kind, n))
REGION = ["p"]
def enc(n): return (n & 15) | ((n >> 4) << 22)
sSS = sX; sSO = sINC
def dq_prep():
    inc = CFG["bl"] * 512
    return [[f"s_bitcmp1_b32 {s(sQ)}, {inc.bit_length() - 1}"], [f"s_cselect_b64 {s(sSS,2)}, {s(sV,2)}, {s(sK1,2)}"],
            [f"s_cselect_b32 {s(sSS+2)}, {s(sV+2)}, {s(sK1+2)}"], [f"s_cselect_b32 {s(sSO)}, {VRING - inc}, 0"],
            [f"s_add_u32 m0, {s(sP)}, {s(sSO)}"], [f"s_andn2_b32 {s(sSO)}, {s(sQ)}, {inc}"]]
def dq_block(A):
    inc = CFG["bl"] * 512
    for g in range(CFG["bl"] // 4):
        if g:
            A.e("s_add_u32 m0, m0, 4096")
            A.e(f"s_add_u32 {s(sSO)}, {s(sSO)}, 4096")
        for i in range(4): dma(A, vVD + (i & 1), sSS, s(sSO), 1024 * i, "dq", CFG["nt_kv"])
    A.e(f"s_add_u32 {s(sQ)}, {s(sQ)}, {inc}")
    A.e(f"s_add_u32 {s(sP)}, {s(sP)}, {inc}")
def dq_pieces(name):
    def br(A):
        lab = f"L_dq_{REGION[0]}_{name}"
        A.e(f"s_cbranch_scc0 {lab}")
        dq_block(A)
        A.label(lab)
    return dq_prep() + [[f"s_getreg_b32 {s(sVM)}, hwreg(HW_REG_IB_STS, 0, 24)"], [f"s_and_b32 {s(sVM)}, {s(sVM)}, 0xc0000f"],
            [f"s_cmp_le_u32 {s(sVM)}, {enc(CFG.get('vthm', CFG['vth']) if name[0] == 'm' else 37 if name == 'slow' else CFG['vth'])}"], [f"s_cselect_b32 {s(sVM)}, {s(sLIM)}, 0"],
            [f"s_cmp_lt_u32 {s(sQ)}, {s(sVM)}"], [br],
            [f"s_cmp_eq_u32 {s(sP)}, {5*SLOT}"], [f"s_cselect_b32 {s(sP)}, 0, {s(sP)}"]]
def dq_landed():
    return [[f"s_getreg_b32 {s(sVM)}, hwreg(HW_REG_IB_STS, 0, 24)"], [f"s_lshr_b32 {s(sINC)}, {s(sVM)}, 22"],
            [f"s_and_b32 {s(sVM)}, {s(sVM)}, 15"], [f"s_lshl4_add_u32 {s(sVM)}, {s(sINC)}, {s(sVM)}"],
            [f"s_lshl_b32 {s(sVM)}, {s(sVM)}, 9"], [f"s_add_u32 {s(sVM)}, {s(sVM)}, {s(sNEED)}"],
            [f"s_cmp_le_u32 {s(sVM)}, {s(sQ)}"]]
def emit_list(A, L):
    for grp in L:
        for x in grp:
            if isinstance(x, str): A.e(x)
            else: x(A)
def dq_slow(A, reg):
    REGION[0] = reg
    A.label(f"L_dqwait_{reg}")
    emit_list(A, dq_pieces("slow"))
    emit_list(A, dq_landed())
    A.e(f"s_cbranch_scc0 L_dqwait_{reg}")
    A.e(f"s_branch L_dqok_{reg}")

def x_own(kc):
    ops = []
    for j in range(8):
        if j % 4 == 0: ops.append(("sal", f"s_add_u32 m0, {s(sXB)}, {XS(kc) + 1024*j}"))
        ops.append(("mem", lambda A, j=j: dma(A, vXD + j, sX, s(sCH + kc), 1024 * (j % 4), ("x", kc), CFG["nt_x"])))
    return ops
def x_extra(kc):
    ops = [("sal", f"s_add_u32 m0, {s(sXE)}, {XS(kc)}")]
    for j in range(2):
        ops.append(("mem", lambda A, j=j: dma(A, vXD + 8 + j, sX, s(sCH + kc), 1024 * j, ("xe", kc), CFG["nt_x"])))
    return ops
def wq_ops(kc):
    ops = [("sal", f"s_lshl_b32 {s(sWQO)}, {s(sCH + kc)}, 12")]
    for j in range(6):
        if j % 3 == 0: ops.append(("sal", f"s_add_u32 m0, {s(sWB)}, {WS(kc) + 1024*j}"))
        ops.append(("mem", lambda A, j=j: dma(A, vWD + j, sWQ, s(sWQO), 1024 * (j % 3), ("wq", kc), CFG["nt_x"])))
    return ops
def wo_group(m0, soffset, tag):
    return [("sal", soffset), ("sal", m0)] + \
           [("mem", lambda A, i=i: dma(A, vWD2 + i, sWO, s(sT3), 1024 * i, tag, CFG.get("nt_wo", ""))) for i in range(3)]

def srd(A, r, lo, hi, off, size):
    if off is None:
        A.e(f"s_mov_b32 {s(r)}, {lo}"); A.e(f"s_mov_b32 {s(r+1)}, {hi}")
    else:
        A.e(f"s_add_u32 {s(r)}, {lo}, {off}"); A.e(f"s_addc_u32 {s(r+1)}, {hi}, 0")
    A.e(size if " " in str(size) else f"s_mov_b32 {s(r+2)}, {size}")
    A.e(f"s_mov_b32 {s(r+3)}, 0x20000")

VM0 = []
def setup(A):
    A.e("s_cmp_ge_u32 s2, 256")
    A.e("s_cbranch_scc1 L_end")
    stamp(A, "start")
    for _ in range(CFG.get("x_sleep0", 0)): A.e("s_sleep 18")
    A.e("s_load_dwordx8 s[80:87], s[0:1], 0")
    A.e("s_load_dwordx8 s[88:95], s[0:1], 32")
    if CFG["warm"] == "s":
        A.e("s_getpc_b64 s[98:99]")
        A.label("L_pc")
        for k in range(1, CFG.get("wn", 8) + 1): A.e(f"s_load_dword s97, s[98:99], {128*k}")
    A.e(f"s_lshr_b32 {s(sIDX)}, s2, 3")
    if CFG["warm"] == "v":
        A.e("s_getpc_b64 s[98:99]")
        A.e(f"s_lshl_b32 s96, {s(sIDX)}, 11")
        A.e("v_lshl_add_u32 v62, v0, 3, s96")
        A.e("global_load_dword v61, v62, s[98:99]")
    A.e(f"v_and_b32 {v(vLANE)}, 63, v0")
    A.e(f"v_lshrrev_b32 {v(vT+6)}, 6, v0")
    A.e("s_nop 0")
    A.e(f"v_readfirstlane_b32 {s(sW)}, {v(vT+6)}")
    if CFG["warm"] == "s":
        A.e(f"s_lshl2_add_u32 s96, {s(sIDX)}, {s(sW)}")
        A.e("s_lshl_b32 s96, s96, 7")
        A.e("s_add_u32 s98, s98, s96")
        A.e("s_addc_u32 s99, s99, 0")
        for k in range(4): A.e(f"s_load_dword s97, s[98:99], {16384*k}")
    A.e(f"s_and_b32 {s(sB)}, s2, 1")
    A.e(f"s_and_b32 {s(sT2)}, {s(sIDX)}, 3")
    A.e(f"s_lshl2_add_u32 {s(sB)}, {s(sB)}, {s(sT2)}")
    A.e(f"s_bfe_u32 {s(sHG)}, s2, 0x20001")
    A.e(f"s_lshr_b32 {s(sT2)}, {s(sIDX)}, 2")
    A.e(f"s_lshl3_add_u32 {s(sH)}, {s(sHG)}, {s(sT2)}")
    A.e(f"v_lshrrev_b32 {v(vT)}, 4, {v(vLANE)}")
    A.e(f"v_and_b32 {v(vT+1)}, 15, {v(vLANE)}")
    if CFG["common"]:
        assert CFG["bgpre"]
        setup_wq_dma(A)
        setup_x_dma(A)
        chunk_order(A, [0])
        setup_srd_q(A)
        A.e(f"s_cmp_eq_u32 {s(sW)}, 3")
        A.e("s_cbranch_scc1 L_noload")
        first, held = split_ops(wq_ops(0) + x_own(0) + x_extra(0), [16 - CFG["hold"]])
        emit_ops(A, first)
        A.label("L_noload")
        stamp(A, "iss0")
        chunk_order(A, range(1, 9))
        setup_kv(A)
        A.e("s_cmp_lg_u32 s2, 0")
        A.e("s_cbranch_scc1 L_notag")
        A.e(f"s_cmp_lg_u32 {s(sW)}, 3")
        A.e("s_cbranch_scc1 L_notag")
        n0 = len(A.vm); write_nonce(A); del A.vm[n0:]
        A.label("L_notag")
        parts = [setup_q, setup_p2, attn_init, lambda A: zero_acc(A, 4)][:CFG["npre"]]
        for k, f in enumerate(parts):
            if k == CFG["holdpos"] and held:
                A.e(f"s_cmp_eq_u32 {s(sW)}, 3")
                A.e("s_cbranch_scc1 L_noload2")
                emit_ops(A, held)
                A.label("L_noload2")
            f(A)
        VM0[:] = A.vm
    A.e(f"s_cmp_eq_u32 {s(sW)}, 3")
    A.e("s_cbranch_scc1 L_role_q3")

def chunk_order(A, steps):
    if CFG["rot"] == "lock":
        for t in steps: A.e(f"s_movk_i32 {s(sCH+t)}, {128*t}")
        return
    pos = {"rot8": 0, "rot8l": 8}[CFG["rot"]]
    if any(t != pos for t in steps):
        A.e(f"s_mul_i32 {s(sT0)}, {s(sH)}, {CFG['mulh']}")
        A.e(f"s_mul_i32 {s(sT1)}, {s(sB)}, {CFG['mulb']}")
        A.e(f"s_add_u32 {s(sT0)}, {s(sT0)}, {s(sT1)}")
        A.e(f"s_and_b32 {s(sT0)}, {s(sT0)}, {CFG['rmask']}")
        A.e(f"s_lshl_b32 {s(sT0)}, {s(sT0)}, 7")
    for t in steps:
        if t == pos: A.e(f"s_movk_i32 {s(sCH+t)}, {0 if CFG.get('common0') else 1024}"); continue
        A.e(f"s_add_u32 {s(sCH+t)}, {s(sT0)}, {128*(t - (1 if t > pos else 0))}")
        A.e(f"s_and_b32 {s(sCH+t)}, {s(sCH+t)}, 1023")
        if CFG.get("common0"): A.e(f"s_add_u32 {s(sCH+t)}, {s(sCH+t)}, 128")

def setup_wq_dma(A):
    t0, t1, t2, t3, t4, t5, tw = [v(vT + i) for i in range(7)]
    A.e(f"v_mad_u32_u24 {t2}, {tw}, 20, {t0}")
    A.e(f"v_lshlrev_b32 {t3}, {2 if CFG['qpi'] else 1}, {t0}")
    A.e(f"v_xor_b32 {t3}, {t3}, {t1}")
    if CFG["qpi"]:
        A.e(f"v_lshlrev_b32 {t5}, 13, {t2}")
        A.e(f"v_lshl_add_u32 {v(vWD)}, {t3}, 4, {t5}")
        for j in range(1, 6): A.e(f"v_add_u32 {v(vWD+j)}, {32768*j - 1024*(j%3)}, {v(vWD)}")
    else:
      for j in range(6):
        if j: A.e(f"v_add_u32 {t2}, 4, {t2}")
        A.e(f"v_and_b32 {t4}, 8, {t2}")
        A.e(f"v_xor_b32 {t4}, {t4}, {t3}")
        A.e(f"v_lshlrev_b32 {t5}, 13, {t2}")
        A.e(f"v_lshl_add_u32 {v(vWD+j)}, {t4}, 4, {t5}")
        if j % 3: A.e(f"v_subrev_u32 {v(vWD+j)}, {1024*(j%3)}, {v(vWD+j)}")
    A.e(f"s_mul_i32 {s(sWB)}, {s(sW)}, {5*1024}")
def setup_x_dma(A):
    L = v(vLANE); t0, t1, t2, t3, t4, t5, tw = [v(vT + i) for i in range(7)]
    A.e(f"v_lshrrev_b32 {t2}, 3, {L}")
    A.e(f"v_mul_u32_u24 {t2}, 1152, {t2}")
    A.e(f"v_and_b32 {t3}, 7, {L}")
    A.e(f"v_xor_b32 {t3}, {t3}, {t0}")
    A.e(f"v_lshl_add_u32 {t3}, {t3}, 4, {t2}")
    A.e(f"s_mul_i32 {s(sT0)}, {s(sW)}, {8*9216}")
    A.e(f"s_mul_i32 {s(sT1)}, {s(sW)}, {2*9216}")
    A.e(f"v_add_u32 {t2}, {s(sT1)}, {t3}")
    A.e(f"v_add_u32 {t3}, {s(sT0)}, {t3}")
    A.e(f"v_xor_b32 {t4}, 64, {t3}")
    A.e(f"v_xor_b32 {t5}, 64, {t2}")
    for j in range(8): A.e(f"v_add_u32 {v(vXD+j)}, {j*9216 - 1024*(j%4)}, {t3 if j%2==0 else t4}")
    for j in range(2): A.e(f"v_add_u32 {v(vXD+8+j)}, {(24+j)*9216 - 1024*j}, {t2 if j%2==0 else t5}")
    A.e(f"s_lshl_b32 {s(sXE)}, {s(sW)}, 11")
    A.e(f"s_add_u32 {s(sXE)}, {s(sXE)}, {24*1024}")
def setup_srd_q(A):
    A.e(f"s_lshl_b32 {s(sXB)}, {s(sW)}, 13")
    A.e(f"s_lshl_b32 {s(sT0)}, {s(sH)}, 8")
    A.e(f"s_mul_i32 {s(sT1)}, {s(sB)}, 276480")
    A.e("s_waitcnt lgkmcnt(0)")
    stamp(A, "karg")
    srd(A, sWQ, "s86", "s87", s(sT0), f"s_sub_u32 {s(sWQ+2)}, {576*8192}, {s(sT0)}")
    srd(A, sX, "s80", "s81", s(sT1), 276480)

def setup_kv(A):
    t0, t1, t2, t3 = [v(vT + i) for i in range(4)]
    A.e(f"v_lshlrev_b32 {t2}, 1, {t0}")
    A.e(f"v_xor_b32 {t2}, {t2}, {t1}")
    A.e(f"v_lshlrev_b32 {t2}, 4, {t2}")
    A.e(f"v_lshl_add_u32 {v(vVD)}, {t0}, 8, {t2}")
    A.e(f"v_xor_b32 {v(vVD+1)}, 128, {v(vVD)}")
    A.e(f"s_lshl_b32 {s(sW4K)}, {s(sW)}, 12")
    A.e(f"s_lshl_b32 {s(sT0)}, {s(sB)}, 5")
    A.e(f"s_add_u32 {s(sT0)}, {s(sT0)}, {s(sH)}")
    A.e(f"s_lshl_b32 {s(sT0)}, {s(sT0)}, 18")
    srd(A, sK, "s82", "s83", s(sT0), 262144)
    srd(A, sV, "s84", "s85", s(sT0), 262144)
    srd(A, sK1, s(sK), s(sK+1), SLOT, 262144 - SLOT)
    srd(A, sDBG, "s92", "s93", None, 256)
    A.e(f"s_getreg_b32 {s(sXE2)}, hwreg(HW_REG_XCC_ID, 0, 4)")
    A.e(f"s_lshl_b32 {s(sXE2)}, {s(sXE2)}, 28")
    A.e(f"s_and_b32 {s(sXE2+1)}, s2, 7")
    A.e(f"s_lshl_b32 {s(sXE2+1)}, {s(sXE2+1)}, 8")
    A.e(f"s_add_u32 {s(sXE2+1)}, {s(sXE2+1)}, {WS_CENS}")

def setup_q(A):
    L = v(vLANE); t0, t1, t2, t3, t4, tw, tv = [v(vT + i) for i in range(7)]
    A.e(f"v_lshrrev_b32 {t0}, 4, {L}")
    A.e(f"v_and_b32 {t1}, 15, {L}")
    A.e(f"v_lshrrev_b32 {t2}, 1, {t1}")
    A.e(f"v_xor_b32 {t2}, {t2}, {t0}")
    A.e(f"v_lshlrev_b32 {t3}, 4, {t2}")
    A.e(f"v_lshl_add_u32 {t3}, {t1}, 7, {t3}")
    A.e(f"s_sub_u32 {s(sT0)}, {s(sB)}, {s(sHG)}")
    A.e(f"s_sub_u32 {s(sT0)}, {s(sT0)}, 1")
    A.e(f"s_and_b32 {s(sT0)}, {s(sT0)}, 3")
    A.e(f"s_sub_u32 {s(sT0)}, 3, {s(sT0)}")
    A.e(f"s_lshl_b32 {s(sT0)}, {s(sT0)}, 2")
    A.e(f"s_lshr_b32 {s(sT0)}, {0x32140321 if CFG['prio'] else 0x43210000}, {s(sT0) if CFG['prio'] else 12}")
    for sl in range(4):
        r = s(sOS + sl)
        A.e(f"s_add_u32 {r}, {s(sW)}, {4*sl}")
        A.e(f"s_min_u32 {r}, {r}, 14")
        A.e(f"s_mul_i32 {s(sT1)}, {r}, 11")
        A.e(f"s_lshr_b32 {s(sT1)}, {s(sT1)}, 5")
        A.e(f"s_lshl_b32 {s(sT2)}, {s(sT1)}, 2")
        A.e(f"s_lshr_b32 {s(sT2)}, {s(sT0)}, {s(sT2)}")
        A.e(f"s_and_b32 {s(sT2)}, {s(sT2)}, 15")
        A.e(f"s_sub_u32 {s(sT2)}, {s(sT2)}, {s(sT1)}")
        A.e(f"s_mul_i32 {s(sT2)}, {s(sT2)}, 3")
        A.e(f"s_add_u32 {r}, {r}, {s(sT2)}")
        A.e(f"s_lshl_b32 {s(sT1)}, {r}, 11")
        A.e(f"s_add_u32 {s(sT1)}, {s(sT1)}, {XS0}")
        A.e(f"v_add_u32 {v(vXA+2*sl)}, {s(sT1)}, {t3}")
        A.e(f"v_xor_b32 {v(vXA+2*sl+1)}, 64, {v(vXA+2*sl)}")
    A.e(f"v_lshrrev_b32 {t2}, 2, {t1}")
    A.e(f"v_and_b32 {t3}, 1, {t0}")
    A.e(f"v_lshl_add_u32 {t3}, {t3}, 2, {t2}")
    A.e(f"v_and_b32 {t4}, 3, {L}")
    A.e(f"v_lshlrev_b32 {t4}, {4 if CFG['qpi'] else 3}, {t4}")
    A.e(f"v_lshl_add_u32 {tw}, {t0}, 3, {t2}")
    A.e(f"v_lshl_add_u32 {tw}, {tw}, 8, {t4}")
    if WS0: A.e(f"v_add_u32 {tw}, {WS0}, {tw}")
    if CFG["qpi"]:
        for u in range(4):
            A.e(f"v_xor_b32 {tv}, {u}, {t2}")
            A.e(f"v_lshl_add_u32 {v(vWA+2*u)}, {tv}, 6, {tw}")
            A.e(f"v_add_u32 {v(vWA+2*u+1)}, 8, {v(vWA+2*u)}")
    else:
        for t in range(8):
            A.e(f"v_xor_b32 {tv}, {t}, {t3}")
            A.e(f"v_lshl_add_u32 {v(vWA+t)}, {tv}, 5, {tw}")

def attn_init(A):
    L = v(vLANE); t0, t1, t2, t3, t4, tw, tv = [v(vT + i) for i in range(7)]
    A.e(f"v_lshrrev_b32 {t0}, 4, {L}")
    A.e(f"v_and_b32 {t1}, 15, {L}")
    A.e(f"v_and_b32 {t2}, 7, {t1}")
    A.e(f"v_lshlrev_b32 {t2}, 1, {t2}")
    A.e(f"v_xor_b32 {t2}, {t0}, {t2}")
    A.e(f"v_lshlrev_b32 {t4}, 8, {t1}")
    A.e(f"v_add_u32 {t4}, {KPOS(0)}, {t4}")
    for s_ in range(4):
        A.e(f"v_xor_b32 {t3}, {4*s_}, {t2}")
        A.e(f"v_lshl_add_u32 {v(vKA+s_)}, {t3}, 4, {t4}")
    A.e(f"v_lshrrev_b32 {t2}, 2, {t1}")
    A.e(f"v_and_b32 {t3}, 1, {t0}")
    A.e(f"v_lshl_add_u32 {t3}, {t3}, 2, {t2}")
    A.e(f"v_and_b32 {t4}, 3, {L}")
    A.e(f"v_cmp_eq_u32 vcc, 0, {t4}")
    A.e(f"v_lshlrev_b32 {t4}, 3, {t4}")
    A.e(f"v_lshl_add_u32 {tw}, {t0}, 2, {t2}")
    A.e(f"v_lshl_add_u32 {tw}, {tw}, 8, {t4}")
    A.e(f"v_add_u32 {tw}, {VPOS(-1)}, {tw}")
    for t in range(8):
        A.e(f"v_xor_b32 {tv}, {t}, {t3}")
        A.e(f"v_lshl_add_u32 {v(vVA+t)}, {tv}, 5, {tw}")
    A.e(f"v_mov_b32 {t3}, 0x3f803f80")
    for i in range(4): A.e(f"v_cndmask_b32 {v(vONE+i)}, 0, {t3}, vcc")
    A.e(f"s_mov_b32 {s(sKOFF)}, {KPOS(0)}")
    A.e(f"s_mov_b32 {s(sM4)}, {-4*SLOT}")
    A.e(f"s_mov_b32 {s(sP)}, {KPOS(CFG['pre'] + 1)}")
    A.e(f"s_mov_b32 {s(sQ)}, {CFG['pre']*SLOT}")

def zero_acc(A, nq):
    for r in range(32 * nq): A.e(f"v_accvgpr_write_b32 {a(aO+r)}, 0")
def zero_l(A, nq):
    for r in range(4 * nq): A.e(f"v_accvgpr_write_b32 {a(aL+r)}, 0")

def setup_p2(A):
    L = v(vLANE); t0, t1, t2, t3, t4, t5, t6 = [v(vT + i) for i in range(7)]
    T0, T1, T2 = s(sT0), s(sT1), s(sT2)
    srd(A, sWS, "s94", "s95", (CFG["wsoff"] << 20) if CFG.get("wsoff") else None, WS_SIZE)
    srd(A, sOUT, "s90", "s91", None, 1920 * 1152)
    A.e(f"s_mov_b32 {s(sSC)}, {f32hex(SCALE)}")
    A.e(f"s_mov_b32 {s(sSC+1)}, {f32hex(SCALE)}")
    A.e(f"s_mov_b32 {s(sSECOND)}, 0")
    A.e(f"v_lshlrev_b32 {v(vOO)}, 4, {L}")
    A.e(f"s_and_b32 {T2}, s2, 7")
    A.e(f"s_mul_i32 {s(sOLD)}, {T2}, {60*OM}")
    A.e(f"s_and_b32 {T0}, {s(sB)}, 3")
    A.e(f"s_mul_i32 {T0}, {T0}, 15")
    A.e(f"s_lshl_b32 {T0}, {T0}, 15")
    A.e(f"s_and_b32 {T1}, {s(sH)}, 7")
    A.e(f"s_lshl_b32 {T1}, {T1}, 12")
    A.e(f"s_add_u32 {T0}, {T0}, {T1}")
    A.e(f"s_add_u32 {T0}, {T0}, {s(sOLD)}")
    for sl in range(4):
        A.e(f"s_lshl_b32 {s(sOS+sl)}, {s(sOS+sl)}, 15")
        A.e(f"s_add_u32 {s(sOS+sl)}, {s(sOS+sl)}, {T0}")
    A.e(f"s_lshl_b32 {T0}, {s(sB)}, 5")
    A.e(f"s_add_u32 {T0}, {T0}, {s(sH)}")
    A.e(f"s_lshl2_add_u32 {T0}, {T0}, {s(sW)}")
    A.e(f"s_lshl_b32 {T0}, {T0}, {FSH}")
    A.e(f"s_add_u32 {s(sFL)}, {T0}, {WS_FLAG}")
    A.e(f"s_add_u32 {s(sFL+1)}, {T0}, {WS_FLAG + (1 << (FSH - 1))}")
    A.e(f"s_min_u32 {T0}, {s(sIDX)}, 29")
    A.e(f"s_mul_i32 {T1}, {T0}, 43")
    A.e(f"s_lshr_b32 {T1}, {T1}, 8")
    A.e(f"s_mul_i32 {T2}, {T1}, 6")
    A.e(f"s_sub_u32 {T0}, {T0}, {T2}")
    A.e(f"s_mul_i32 {T0}, {T0}, 192")
    A.e(f"s_mul_i32 {T1}, {T1}, 12")
    A.e(f"s_lshl_b32 {T2}, {T1}, 15")
    A.e(f"s_add_u32 {s(sOLD)}, {s(sOLD)}, {T2}")
    A.e(f"s_and_b32 {T2}, s2, 1")
    A.e(f"s_mul_i32 {T2}, {T2}, 60")
    A.e(f"s_add_u32 {T1}, {T1}, {T2}")
    A.e(f"s_mul_i32 {T2}, {s(sHG)}, {1024*1152}")
    A.e(f"s_add_u32 {T2}, {T2}, {T0}")
    srd(A, sWO, "s88", "s89", T2, f"s_sub_u32 {s(sWO+2)}, {4096*1152}, {T2}")
    A.e(f"s_lshl_b32 {T2}, {s(sW)}, 13")
    A.e(f"s_add_u32 {s(sOLD)}, {s(sOLD)}, {T2}")
    for q in range(4):
        A.e(f"s_add_u32 {T2}, {s(sHG)}, {q+1}")
        A.e(f"s_and_b32 {T2}, {T2}, 3")
        A.e(f"s_mul_i32 {T2}, {T2}, {3*OM}")
        A.e(f"s_add_u32 {s(sPO+q)}, {T2}, {s(sOLD)}")
    A.e(f"v_and_b32 {t0}, 2, {L}")
    A.e(f"v_mul_u32_u24 {t0}, 5, {t0}")
    A.e(f"v_add_u32 {t0}, {T1}, {t0}")
    A.e(f"v_mul_u32_u24 {t0}, 137, {t0}")
    A.e(f"v_lshrrev_b32 {t0}, 11, {t0}")
    A.e(f"v_and_b32 {t1}, 1, {L}")
    A.e(f"v_lshl_add_u32 {t0}, {t0}, 5, {t1}")
    A.e(f"s_lshl_b32 {T2}, {s(sHG)}, 3")
    A.e(f"s_lshl_b32 {s(sPS)}, {s(sW)}, 1")
    A.e(f"s_add_u32 {T2}, {T2}, {s(sPS)}")
    A.e(f"v_add_u32 {t0}, {T2}, {t0}")
    A.e(f"v_lshlrev_b32 {t0}, {FSH + 2}, {t0}")
    A.e(f"v_and_b32 {t1}, 12, {L}")
    A.e(f"v_lshl_add_u32 {t0}, {t1}, {FSH - 2}, {t0}")
    A.e(f"v_add_u32 {v(vFO)}, {WS_FLAG}, {t0}")
    A.e(f"s_mul_i32 {T2}, {s(sHG)}, 3")
    A.e(f"s_add_u32 {T1}, {T1}, {T2}")
    A.e(f"s_mul_i32 {T1}, {T1}, {16*1152}")
    A.e(f"s_add_u32 {T1}, {T1}, {T0}")
    A.e(f"s_lshl_b32 {s(sPS)}, {s(sW)}, 2")
    for r in range(5):
        A.e(f"v_add_u32 {t0}, {64*r}, {L}")
        if r == 4: A.e(f"v_min_u32 {t0}, 287, {t0}")
        A.e(f"v_mul_u32_u24 {t1}, 171, {t0}")
        A.e(f"v_lshrrev_b32 {t1}, 12, {t1}")
        A.e(f"v_mul_u32_u24 {t2}, 24, {t1}")
        A.e(f"v_sub_u32 {t2}, {t0}, {t2}")
        A.e(f"v_and_b32 {t4}, 12, {t1}")
        A.e(f"v_mad_u32_u24 {t1}, {t4}, 3, {t1}")
        A.e(f"v_add_u32 {t1}, {s(sPS)}, {t1}")
        A.e(f"v_and_b32 {t4}, 7, {t1}")
        A.e(f"v_xor_b32 {t4}, {t4}, {t2}")
        A.e(f"v_mul_u32_u24 {t3}, {RSTR}, {t1}")
        A.e(f"v_lshl_add_u32 {v(vRR+r)}, {t4}, 4, {t3}")
        A.e(f"v_mul_u32_u24 {t3}, 1152, {t1}")
        A.e(f"v_lshl_add_u32 {t3}, {t2}, 3, {t3}")
        A.e(f"v_add_u32 {v(vOUT+r)}, {T1}, {t3}")
    A.e(f"v_cmp_gt_u32 vcc, 32, {L}")
    A.e(f"v_mov_b32 {t0}, 0x7ffffff0")
    A.e(f"v_lshrrev_b32 {t1}, 4, {L}")
    A.e(f"v_cndmask_b32 {v(vOUT+4)}, {t0}, {v(vOUT+4)}, vcc")
    A.e(f"v_cmp_eq_u32 vcc, 0, v0")
    A.e(f"v_and_b32 {t2}, 15, {L}")
    A.e(f"s_mul_i32 {T2}, {s(sW)}, {WOW}")
    A.e(f"v_cndmask_b32 {v(vFP)}, {t0}, 0, vcc")
    A.e(f"v_mul_u32_u24 {t3}, {RSTR}, {t2}")
    A.e(f"v_and_b32 {t4}, 7, {t2}")
    A.e(f"v_xor_b32 {t4}, {t4}, {t1}")
    A.e(f"v_lshl_add_u32 {t3}, {t4}, 4, {t3}")
    A.e(f"v_add_u32 {v(vRW)}, {T2}, {t3}")
    A.e(f"v_xor_b32 {v(vRW-1)}, 64, {v(vRW)}")
    if CFG["fline"]:
        A.e(f"v_lshlrev_b32 {v(vFW)}, 26, {t1}")
        A.e(f"v_lshl_add_u32 {v(vFW)}, {t2}, 3, {v(vFW)}")
    else: A.e(f"v_lshlrev_b32 {v(vFW)}, 26, {L}")
    A.e(f"s_mul_i32 {s(sWOW)}, {s(sW)}, {WOW}")
    A.e(f"v_lshrrev_b32 {t3}, 2, {L}")
    A.e(f"v_and_b32 {t4}, 3, {L}")
    A.e(f"v_mul_u32_u24 {t5}, 192, {t3}")
    A.e(f"v_lshl_add_u32 {t5}, {t4}, 3, {t5}")
    A.e(f"v_and_b32 {t6}, 1, {t1}")
    A.e(f"v_lshl_add_u32 {t5}, {t6}, 5, {t5}")
    A.e(f"v_add_u32 {v(vWT)}, {s(sWOW)}, {t5}")
    A.e(f"v_xor_b32 {v(vWT+1)}, 32, {v(vWT)}")
    for i in range(3):
        A.e(f"v_add_u32 {t3}, {64*i}, {L}")
        A.e(f"v_mul_u32_u24 {t4}, 171, {t3}")
        A.e(f"v_lshrrev_b32 {t4}, 11, {t4}")
        A.e(f"v_mul_u32_u24 {t5}, 12, {t4}")
        A.e(f"v_sub_u32 {t3}, {t3}, {t5}")
        A.e(f"v_lshrrev_b32 {t5}, 1, {t4}")
        A.e(f"v_and_b32 {t5}, 2, {t5}")
        A.e(f"v_xor_b32 {t3}, {t3}, {t5}")
        A.e(f"v_mul_u32_u24 {t4}, 1152, {t4}")
        A.e(f"v_lshl_add_u32 {v(vWD2+i)}, {t3}, 4, {t4}")
        if i: A.e(f"v_subrev_u32 {v(vWD2+i)}, {1024*i}, {v(vWD2+i)}")
    A.e(f"s_lshl_b32 {T2}, s2, 11")
    A.e(f"s_add_u32 {T2}, {T2}, {WS_PFLAG}")
    A.e(f"s_lshl_b32 {s(sPL)}, {s(sW)}, 9")
    A.e(f"s_add_u32 {T2}, {T2}, {s(sPL)}")
    A.e(f"v_and_b32 {t0}, 1, {L}")
    A.e(f"v_lshlrev_b32 {t0}, 7, {t0}")
    A.e(f"v_add_u32 {v(vFA)}, {T2}, {t0}")
    A.e(f"s_mul_i32 {T2}, s2, {12*5120}")
    A.e(f"s_mul_i32 {s(sPL)}, {s(sW)}, 5120")
    A.e(f"s_add_u32 {s(sPL)}, {s(sPL)}, {T2}")
    A.e(f"s_add_u32 {s(sPL)}, {s(sPL)}, {WS_PART}")

def prewarm_flags(A):
    if not CFG["fwarm"]: return
    A.e(f"v_mov_b32 {v(vT)}, 0"); A.e(f"v_mov_b32 {v(vT+1)}, 0")
    for k in range(2): A.vmem(f"buffer_store_dwordx2 {v(vT,2)}, {v(vFW)}, {s(sWS,4)}, {s(sFL+k)} offen sc1", "fw")
    if CFG["fwarm"] == 2:
        for q in range(3):
            for x in [f"s_add_u32 {s(sT0)}, {s(sHG)}, {q+1}", f"s_and_b32 {s(sT0)}, {s(sT0)}, 3", f"s_sub_u32 {s(sT0)}, {s(sT0)}, {s(sHG)}",
                      f"s_lshl1_add_u32 {s(sT0)}, {s(sT0)}, s2", f"s_lshl2_add_u32 {s(sT0)}, {s(sT0)}, {s(sW)}", f"s_lshl_b32 {s(sT0)}, {s(sT0)}, 9",
                      f"s_add_u32 {s(sT0)}, {s(sT0)}, {WS_PFLAG + 128*q}"]: A.e(x)
            A.vmem(f"buffer_store_dwordx2 {v(vT,2)}, {v(vFW)}, {s(sWS,4)}, {s(sT0)} offen sc1", "fw")
LD_NON = f"buffer_load_dwordx2 {v(vNON,2)}, off, {s(sDBG,4)}, 0 offset:128 sc1"
CMP_NON = f"v_cmp_eq_u64 vcc, 0, {v(vNON,2)}"
def census(A):
    if CFG["fast"]:
        A.wait_vm("non0")
        A.e(f"v_xor_b32 {v(vNON+1)}, {s(sXE2)}, {v(vNON+1)}")
        A.e(f"s_lshl_b32 {s(sT0)}, {s(sIDX)}, 3")
        A.e(f"s_add_u32 {s(sT0)}, {s(sT0)}, {s(sXE2+1)}")
        A.e(f"v_lshlrev_b32 v254, 26, {v(vLANE)}")
        A.vmem(f"buffer_store_dwordx2 {v(vNON,2)}, v254, {s(sWS,4)}, {s(sT0)} offen sc1", "cens")
    if CFG["wotouch"] == "pro": wotouch(A)
    if CFG["wotouch"] == "spread": wotouch(A, 0)
    if CFG["wotouch"] == "sl":
        wo_slice(A)
        for k in range(6): A.e(f"v_add_u32 v{244+k}, {6144*k}, v254")
    if CFG["wotouch"] == "it":
        wo_slice(A)
        A.e(f"v_add_u32 v253, {36864 - 3072}, v254")
    if CFG["wotouch"] == "ad":
        wo_slice(A)
        A.e(f"s_mov_b32 {s(sT2)}, {36 // CFG.get('adn', 4)}")
    if CFG["wotouch"] in ("dyn", "end"):
        wo_slice(A)
        A.e(f"s_mov_b32 {s(sT2)}, {16*SLOT - 2}")
def wo_slice(A):
    A.e(f"s_mul_i32 {s(sT0)}, {s(sHG)}, {1024*1152}")
    A.e(f"s_mul_i32 {s(sT1)}, {s(sIDX)}, 36864")
    A.e(f"s_add_u32 {s(sT0)}, {s(sT0)}, {s(sT1)}")
    A.e(f"s_add_u32 {s(sT0)}, {s(sT0)}, 4096")
    A.e(f"v_add_u32 v254, {s(sT0)}, {v(vOO)}")
def wotouch(A, n=5):
    A.e(f"s_mul_i32 {s(sT0)}, {s(sHG)}, {1024*1152}")
    A.e(f"s_mul_i32 {s(sT1)}, {s(sIDX)}, 36864")
    A.e(f"s_add_u32 {s(sT0)}, {s(sT0)}, {s(sT1)}")
    A.e(f"v_lshlrev_b32 v254, 7, {v(vLANE)}")
    A.e(f"v_add_u32 v254, {s(sT0)}, v254")
    for k in range(n):
        A.vmem(f"global_load_dword v255, v254, s[88:89]{CFG['nt_wt']}", "wot")
        if k < 4: A.e(f"v_add_u32 v254, {8192 if k < 3 else 4096}, v254")

def write_nonce(A):
    A.e("s_memrealtime s[64:65]")
    A.e("s_cmp_eq_u32 s2, 0")
    A.e(f"s_cselect_b32 {s(sT0)}, 0, 256")
    A.e(f"v_lshlrev_b32 {v(vT+2)}, 8, {v(vLANE)}")
    A.e("s_waitcnt lgkmcnt(0)")
    A.e(f"v_mov_b32 {v(vT)}, s64")
    A.e(f"v_mov_b32 {v(vT+1)}, s65")
    A.vmem(f"buffer_store_dwordx2 {v(vT,2)}, {v(vT+2)}, {s(sDBG,4)}, {s(sT0)} offen offset:128 sc1", "nonce")
    if CFG["warm"] is True:
        A.e("s_getpc_b64 s[64:65]")
        A.label("L_pc")
        A.e(f"s_sub_u32 s64, s64, L_pc-{KNAME}")
        A.e("s_subb_u32 s65, s65, 0")
        A.e(f"s_and_b32 {s(sT0)}, {s(sIDX)}, 7")
        A.e(f"s_lshl_b32 {s(sT0)}, {s(sT0)}, 13")
        A.e(f"v_lshlrev_b32 {v(vT+3)}, 7, {v(vLANE)}")
        A.e(f"v_add_u32 {v(vT+3)}, {s(sT0)}, {v(vT+3)}")
        A.e(f"v_min_u32 {v(vT+3)}, L_code_end-{KNAME}-4, {v(vT+3)}")
        A.vmem(f"global_load_dword v255, {v(vT+3)}, s[64:65]", "warm")

def touch_setup(A):
    L = v(vLANE)
    A.e(f"v_and_b32 v252, 31, {L}")
    A.e(f"v_lshrrev_b32 v253, 1, v252")
    A.e(f"v_min_u32 v252, 29, v252")
    A.e(f"s_and_b32 {s(sT0)}, {s(sH)}, 7")
    A.e(f"s_mul_i32 {s(sT0)}, {s(sT0)}, 30")
    A.e(f"v_add_u32 v252, {s(sT0)}, v252")
    A.e(f"v_mul_u32_u24 v252, 1152, v252")
    A.e(f"v_lshrrev_b32 v251, 5, {L}")
    A.e(f"v_lshl_add_u32 v252, v251, 7, v252")
    A.e(f"v_lshl_add_u32 v253, v251, 6, v253")
    A.e(f"s_and_b32 {s(sT0)}, {s(sB)}, 3")
    A.e(f"s_lshl_b32 {s(sT0)}, {s(sT0)}, 4")
    A.e(f"v_add_u32 v253, {s(sT0)}, v253")
    A.e(f"v_lshlrev_b32 v253, 13, v253")
    A.e(f"v_and_b32 v251, 1, {L}")
    A.e(f"v_lshl_add_u32 v253, v251, 7, v253")
def touch_ops(c):
    return [("mem", lambda A: A.vmem(f"buffer_load_dword v255, v252, {s(sX,4)}, 0 offen offset:{128*c}{CFG['nt_x']}", "touch")),
            ("sal", f"s_mov_b32 {s(sT3)}, {64*8192*c}"),
            ("mem", lambda A: A.vmem(f"buffer_load_dword v255, v253, {s(sWQ,4)}, {s(sT3)} offen{CFG['nt_x']}", "touch"))]

def qproj(A, nq):
    main = nq == 4
    tch = [[int(c) for c in x.split("+") if c] for x in str(CFG["touch"]).split(",")] + [[]] * 10
    if CFG["common"]:
        if main: A.vm += VM0
    else:
        if main:
            setup_wq_dma(A)
            chunk_order(A, [0])
            setup_srd_q(A)
            emit_ops(A, wq_ops(0))
            setup_x_dma(A)
            emit_ops(A, x_own(0) + x_extra(0))
            stamp(A, "iss0")
            chunk_order(A, range(1, 9))
        else:
            if any(tch): touch_setup(A)
            setup_srd_q(A)
            for c in tch[0]: emit_ops(A, touch_ops(c))
        setup_kv(A)
        if not main: write_nonce(A)
        setup_q(A)
        if not main or CFG["bgpre"]: setup_p2(A); attn_init(A); zero_acc(A, nq)
    stamp(A, "setq")
    if main: emit_ops(A, wq_ops(1) + x_own(1) + x_extra(1))
    stamp(A, "iss1")
    rest_bg = [setup_q, setup_p2, attn_init, lambda A: zero_acc(A, nq)][CFG["npre"]:] if CFG["common"] else []
    nb = len(rest_bg) if not main else min(CFG["nmid"], len(rest_bg))
    for f in rest_bg[:nb]: f(A)
    kvq = [int(x) for x in str(CFG["kvq"]).split(",")]
    assert len(kvq) == 8 and sum(kvq) == 48
    kvp = split_ops(kv_full("K", 0) + kv_full("K", 1) + kv_full("V", 0), kvq[:-1])
    if not main: emit_ops(A, kvp[0])
    woq = [int(x) for x in str(CFG["woq"]).split(",")]
    wops = []
    for k in range(36):
        wops.append(("mem", lambda A, k=k: A.vmem(f"global_load_dwordx4 v[240:243], v254, s[88:89] offset:{1024*(k%6) - 4096}", "wot")))
        if k % 6 == 5: wops.append(("sal", "v_add_u32 v254, 6144, v254"))
    wop = split_ops(wops, woq[:-1]) if CFG["wotouch"] == "q" else [[]] * 8
    if not main and CFG["wotouch"] == "q": wo_slice(A)
    NS = 16 * nq; BAR = 12 * nq; LEAD = NS - BAR
    slots = [Slot() for _ in range(LEAD + 9 * NS)]
    def G(kc, i): return LEAD + kc * NS + i
    for kc in range(9):
        bb = aQB + 32 * ((kc + 1) % 2)
        QC = CFG["qchain"]
        for i in range(NS):
            if QC: t, qt, s2 = i // (2 * nq), (i // 2) % nq, i % 2; f = 2 * t + s2
            else: f, qt = i // nq, i % nq; s2, t = f // 8, f % 8
            d = v(vACC + 32 * qt + 4 * t, 4)
            slots[G(kc, i)].m = mfma(d, a(aQA + 4 * f, 4), a(bb + 8 * qt + 4 * s2, 4), d if (kc or s2) else "0")
        def rdA(f, j, kc=kc):
            s2, t = (f % 2, f // 2) if QC else (f // 8, f % 8)
            off = WS(kc) - WS0 + (32 * s2 + 4 * j) * 256
            return lambda A: A.ds(f"ds_read_b64_tr_b16 {a(aQA + 4*f + 2*j, 2)}, {v(vWA+t)} offset:{off}", ("A", kc, f, j))
        def rdB(qt, s2, kc=kc, bb=bb):
            off = XS(kc) - XS0
            return lambda A: A.ds(f"ds_read_b128 {a(bb + 8*qt + 4*s2, 4)}, {v(vXA+2*qt+s2)} offset:{off}", ("B", kc, qt, s2))
        head = [rdB(0, 0), rdA(0, 0), rdA(0, 1)] + [rdB(q, 0) for q in range(1, nq)] + [rdA(1, 0), rdA(1, 1), rdA(2, 0), rdA(2, 1)] \
             + [rdB(q, 1) for q in range(nq)] + [rdA(3, 0), rdA(3, 1)]
        if QC: head = [rdB(0, 0), rdA(0, 0), rdA(0, 1), rdB(0, 1), rdA(1, 0), rdA(1, 1)] + [rdB(q, z) for q in range(1, nq) for z in range(2)] \
                    + [rdA(2, 0), rdA(2, 1), rdA(3, 0), rdA(3, 1)]
        p0 = G(kc, -LEAD)
        for k, r in enumerate(head): slots[p0 + k * LEAD // len(head)].mem.append(r)
        tail = [rdA(f, j) for f in range(4, 16) for j in range(2)]
        span = BAR - 2 * nq if kc < 8 else 6 * nq
        for k, r in enumerate(tail): slots[G(kc, k * span // len(tail))].mem.append(r)
        if QC:
            slots[G(kc, -1)].valu.append(lambda A, kc=kc: A.wait_lds(("B", kc, 1, 1)))
            slots[G(kc, 3)].sal.append(lambda A, kc=kc: A.wait_lds(("B", kc, nq - 1, 1)))
            for t in range(1, 7):
                slots[G(kc, 2 * t * nq - 1)].sal.append(lambda A, tag=("A", kc, 2 * t + 1, 1): A.wait_lds(tag))
        else:
            slots[G(kc, -1)].valu.append(lambda A, kc=kc: A.wait_lds(("B", kc, nq - 1, 0)))
            for f in range(1, 13):
                slots[G(kc, f * nq - 1)].sal.append(lambda A, tag=("A", kc, f, 1): A.wait_lds(tag))
        def bar(A, kc=kc):
            if main and kc == 1 and not CFG["bgpre"]:
                def bgw(A): attn_init(A); zero_acc(A, nq)
                setup_p2(A)
                if CFG.get("bgweave", False): weave(A, bgw, wq_ops(2) + x_own(2) + x_extra(2))
                else: bgw(A); emit_ops(A, wq_ops(2) + x_own(2) + x_extra(2))
            if kc == 1:
                for f in rest_bg[nb:]: f(A)
            if main: A.wait_vm(("xe", kc))
            A.e("s_waitcnt lgkmcnt(0)")
            A.e("s_barrier")
            stamp(A, "bm1" if kc == 0 else f"b{kc-1}")
        slots[p0].sal.insert(0, bar)
        if kc <= 7: slots[G(kc, 3 * nq - 1)].sal.append("s_barrier")
        if main:
            early = []; late = []
            k0 = 0 if CFG["bgpre"] else 1
            if k0 <= kc <= 6: early += wq_ops(kc + 2)
            if k0 <= kc <= 6: late += x_own(kc + 2) + x_extra(kc + 2)
            pe = [p0 + 2 + 4 * k for k in range(nmem(early))]
            pl = [G(kc, 3 * nq + 1 + 3 * k) for k in range(nmem(late))]
            if CFG["clus"]:
                c0, c1 = CFG.get("cl0", 4), CFG["clus"]
                pe = [G(kc, c0 + k * (13 - c0) // 6) for k in range(nmem(early))]
                pl = [G(kc, 14 + k * (c1 - 14) // 10) for k in range(nmem(late))]
            place_ops(slots, pe, early); place_ops(slots, pl, late)
        else:
            if kc <= 6:
                ops = sum((touch_ops(c) for c in tch[kc + 1]), []) + kvp[kc + 1] + wop[kc + 1]
                ne = nmem(ops)
                if CFG["kvpos"] == "end": pe = [G(kc, BAR - 2 - ne + k) for k in range(ne)]
                elif CFG["kvpos"] == "mid": pe = [G(kc, 3 * nq + 2 + k) for k in range(ne)]
                elif CFG["kvpos"] == "even": pe = [p0 + 2 + k * (NS - 4) // ne for k in range(ne)]
                else: pe = [p0 + 2 + k for k in range(ne)]
                place_ops(slots, pe, ops)
            elif kc == 7:
                place_ops(slots, [p0 + 2 + k for k in range(16)], kv_full("K", 2))
                n7 = CFG["kv7"]
                late78 = split_ops(kv_full("V", 1) + (kv_full("V", 2) + kv_full("K", 3) if CFG["pre"] == 3 else []), [n7])
                if n7: place_ops(slots, [G(7, 3 * nq + 2) + k * (BAR - 3 * nq - 4) // n7 for k in range(n7)], late78[0])
            else:
                ne = nmem(late78[1])
                if ne: place_ops(slots, [p0 + 2 + k * (12 * nq - 4) // ne for k in range(ne)], late78[1])
    def bar8(A):
        if not main: A.wait_vm(("K", 0))
        A.e("s_waitcnt lgkmcnt(0)")
        A.e("s_barrier")
    p8 = G(8, 8 * nq - 1)
    slots[p8].sal = [bar8]
    slots[G(7, -LEAD + 1)].mem.append(lambda A: A.vmem(LD_NON, "nonce"))
    for k, l in enumerate(lines(lambda B: zero_l(B, nq))): slots[G(8, 2 + k)].valu.append(l)
    emit_slots(A, slots[:p8 + 1])
    lim = CFG["lim0"]
    assert lim <= 4 * SLOT and CFG["lim1"] <= SLOT
    for n in range(14):
        assert lim >= (n + 1) * SLOT, n
        lim = min(lim + (CFG["lim1"] if n < CFG["lim1n"] else CFG["limr"]), (n + 5) * SLOT)
    if not main:
        if CFG["dither"]:
            A.e(f"s_and_b32 {s(sLIM)}, {s(sIDX)}, 7")
            A.e(f"s_lshl_b32 {s(sLIM)}, {s(sLIM)}, 9")
            A.e(f"s_add_u32 {s(sLIM)}, {s(sLIM)}, {CFG['lim0']}")
            assert CFG["lim0"] + 4096 <= 4 * SLOT
        else: A.e(f"s_mov_b32 {s(sLIM)}, {CFG['lim0']}")
        A.e(f"s_mov_b32 {s(sNEED)}, {SLOT}")

def prologue(A, nq, slots, P):
    M = []; V = []; X = []
    bb = aQB + 32
    QC = CFG["qchain"]
    for qt in range(nq):
        for k in range(8):
            t, s2 = (4 + k // 2, k % 2) if QC else (k, 1)
            d = v(vACC + 32 * qt + 4 * t, 4)
            M.append(Op(mfma(d, a(aQA + 32 + 4 * k, 4), a(bb + 8 * qt + 4 * s2, 4), d), name=("qp", qt, t) if s2 else None))
    for f in range(8): X.append(Op(k_read(0, f)))
    X.append(Op(lambda A: A.wait_lds(("K", 7)), 0, deps=[(("pk", 1), 0)], name="k0"))
    for f in range(8):
        kt, s_ = f // 4, f % 4
        X.append(Op(lambda A, f=f, kt=kt, s_=s_: A.ds(f"ds_read_b128 {a(aV+4*f,4)}, {v(vKA+s_)} offset:{8192+4096*kt}", ("K1", f)),
                    deps=[(("qp", nq - 1, 7), 0)]))
    def conv(qt):
        if qt:
            for j in range(16):
                r = v(vACC + 32 * qt + 2 * j, 2)
                V.append(Op(f"v_pk_mul_f32 {r}, {r}, {s(sSC,2)}", deps=[(("qp", nq - 1, 7), 8)], name=("pk", qt) if j == 15 else None))
        for u in range(4):
            src = vACC + 32 * qt + 8 * u; dst = vQ + 16 * qt + 4 * u
            if qt == 0:
                for j in range(8): V.append(Op(f"v_mul_f32 {v(src+j)}, {s(sSC)}, {v(src+j)}", deps=[(("qp", qt, 2*u + j//4), 8)] if (u >= 2 or not QC) else []))
            for j in range(4): V.append(Op(f"v_cvt_pk_bf16_f32 {v(dst+j)}, {v(src+2*j)}, {v(src+2*j+1)}", name=("cv", qt) if (CFG["qpi"] and (u, j) == (3, 3)) else ("c", qt, u, j)))
        for k, sw in enumerate(("v_permlane32_swap_b32", "v_permlane16_swap_b32") if not CFG["qpi"] else ()):
            for u in range(4):
                dst = vQ + 16 * qt + 4 * u
                for j in range(2):
                    V.append(Op(f"{sw} {v(dst+j)}, {v(dst+j+2)}", 2, deps=[(("c", qt, u, 3), 2)], name=("cv", qt) if (k, u, j) == (1, 3, 1) else None))
    def qk(T, qt, kreg, c0, deps):
        for kt in range(2):
            for s_ in range(4):
                d = v(vS + 32 * T + 8 * qt + 4 * kt, 4)
                M.append(Op(mfma(d, a(kreg + 4 * (4 * kt + s_), 4), v(vQ + 16 * qt + 4 * s_, 4), d if s_ else c0), deps=deps, name=("qk", T, qt, kt) if s_ == 3 else None))
    def rowmax(qt):
        b = vS + 8 * qt; m = vT + qt; t = vT + 4
        V.append(Op(f"v_max3_f32 {v(m)}, {v(b)}, {v(b+1)}, {v(b+2)}", deps=[(("qk", 0, qt, 1), 8)]))
        V.append(Op(f"v_max3_f32 {v(t)}, {v(b+3)}, {v(b+4)}, {v(b+5)}"))
        V.append(Op(f"v_max3_f32 {v(m)}, {v(m)}, {v(b+6)}, {v(b+7)}"))
        V.append(Op(f"v_max_f32 {v(m)}, {v(m)}, {v(t)}"))
        for k, sw in enumerate(("v_permlane32_swap_b32", "v_permlane16_swap_b32")):
            V.append(Op(f"v_mov_b32 {v(t)}, {v(m)}", name=("mv", qt, k)))
            V.append(Op(f"{sw} {v(t)}, {v(m)}", 2, deps=[(("mv", qt, k), 2)]))
            V.append(Op(f"v_max_f32 {v(m)}, {v(m)}, {v(t)}"))
        for e in range(8): V.append(Op(f"v_sub_f32 {v(b+e)}, {v(b+e)}, {v(m)}"))
    def setc(qt):
        for e in range(4): V.append(Op(f"v_sub_f32 {v(vC+4*qt+e)}, 0, {v(vT+qt)}", name=("C", qt) if e == 3 else None))
    for qt in range(nq):
        conv(qt)
        qk(0, qt, aK, "0", [(("cv", qt), 2), ("k0", 0)] + ([(("pk", qt + 1), 0)] if qt + 1 < nq else []))
        if qt: rowmax(qt - 1)
    for qt in range(nq - 1): setc(qt)
    X.append(Op(lambda A: A.wait_lds(("K1", 7)), 0, deps=[(("cv", nq - 1), 0)], name="k1"))
    gen = [x for sl in slots[:2 * P] for x in sl.valu if isinstance(x, str) and x.startswith(("v_exp", "v_cvt"))]
    for k in range(len(gen) - 1):
        if gen[k].startswith("v_cvt") and k % 3 == 2: gen[k], gen[k + 1] = gen[k + 1], gen[k]
    def soft(lst):
        for x in lst:
            if x.startswith("v_exp"):
                r = int(x.split()[1][1:-1])
                V.append(Op(x, 2, deps=[(("qk", 1, 0, 0), 8)] if r >= vS + 32 else [], name=("e", r)))
            else: V.append(Op(x, deps=[(("e", int(x.split()[3][1:])), 1)]))
    soft(gen[:12])
    rowmax(nq - 1); setc(nq - 1)
    for qt in range(nq): qk(1, qt, aV, v(vC + 4 * qt, 4), [(("C", qt), 2), ("k1", 0)])
    X.append(Op(f"s_cmp_eq_u32 {s(sKOFF)}, {4*SLOT}", 0)); X.append(Op(f"s_cselect_b32 {s(sDK)}, {s(sM4)}, {SLOT}", 0))
    X.append(Op(f"s_add_u32 {s(sKOFF)}, {s(sKOFF)}, {s(sDK)}", 1, name="ring"))
    for i in range(12): V.append(Op(f"v_add_u32 {v(vKA+i)}, {s(sDK)}, {v(vKA+i)}", deps=[("ring", 0)], name=("addr", i)))
    soft(gen[12:])
    def bar0(A):
        if nq == 3:
            emit_list(A, dq_landed())
            A.e("s_cbranch_scc0 L_dqwait_m"); A.label("L_dqok_m")
        A.e("s_barrier")
        if nq == 3:
            A.e(f"s_add_u32 {s(sNEED)}, {s(sNEED)}, {SLOT}"); A.e(f"s_add_u32 {s(sLIM)}, {s(sLIM)}, {CFG['lim1'] if CFG['lim1n'] else min(CFG['limr'], SLOT)}")
    X.append(Op(bar0, 1, deps=[(("qk", 0, nq - 1, 1), 0), (("addr", 3), 0)]))
    rd = [x for sl in slots[P:2 * P] for x in sl.mem]
    for k, x in enumerate(rd): X.append(Op(x, deps=[(("qk", 1, nq - 1, 1), 0), (("addr", 11), 0)] if k >= 8 else []))
    X.append(Op(lambda A: A.wait_lds(("K", 7)), 0, deps=[(("e", vS + 33), 0)]))
    if nq == 3:
        n = CFG["midpoll"]
        for k in range(n): V.insert((n - k) * len(V) // (n + 1), Op(lambda A, k=k: emit_list(A, dq_pieces(f"m{k}")), 2))
    if nq == 4 and CFG["wotouch"] == "mid":
        pre = [f"s_mul_i32 {s(sT0)}, {s(sHG)}, {1024*1152}", f"s_mul_i32 {s(sT1)}, {s(sIDX)}, 36864", f"s_add_u32 {s(sT0)}, {s(sT0)}, {s(sT1)}",
               f"s_mul_i32 {s(sT1)}, {s(sW)}, 12288", f"s_add_u32 {s(sT0)}, {s(sT0)}, {s(sT1)}", f"s_add_u32 {s(sT0)}, {s(sT0)}, 4096",
               f"v_add_u32 v32, {s(sT0)}, {v(vOO)}", "v_add_u32 v33, 6144, v32"]
        for x in pre: A.e(x)
        n0 = len(V)
        for k in range(12):
            V.insert((12 - k) * n0 // 13, Op(lambda A, k=k: A.vmem(f"global_load_dwordx4 v[36:39], v{32 + k // 6}, s[88:89] offset:{1024*(k%6) - 4096}", "wot")))
    REGION[0] = "m"
    merge(A, M, V, X)

def qconvert(A, nq):
    A.e("s_nop 7")
    for qt in range(nq):
        for u in range(4):
            src = vACC + 32 * qt + 8 * u; dst = vQ + 16 * qt + 4 * u
            for j in range(4): A.e(f"v_pk_mul_f32 {v(src+2*j,2)}, {v(src+2*j,2)}, {s(sSC,2)}")
            for j in range(4): A.e(f"v_cvt_pk_bf16_f32 {v(dst+j)}, {v(src+2*j)}, {v(src+2*j+1)}")
        for sw in ("v_permlane32_swap_b32", "v_permlane16_swap_b32"):
            for u in range(4):
                dst = vQ + 16 * qt + 4 * u
                A.e(f"{sw} {v(dst)}, {v(dst+2)}")
                A.e(f"{sw} {v(dst+1)}, {v(dst+3)}")

def k_read(T, f):
    kt, s_ = f // 4, f % 4
    off = 8192 * (T % 2) + 4096 * kt
    return lambda A: A.ds(f"ds_read_b128 {a(aK+4*f,4)}, {v(vKA+s_)} offset:{off}", ("K", f))
def v_read(T, i):
    t, j = i // 2, i % 2
    off = 8192 * (T % 2) + 4096 * j
    return lambda A: A.ds(f"ds_read_b64_tr_b16 {a(aV+4*t+2*j,2)}, {v(vVA+t)} offset:{off}", ("V", i))
def qk_list(T, nq, czero=False):
    if CFG["qkorder"] == "A": order = [(kt, s_, qt) for kt in range(2) for s_ in range(4) for qt in range(nq)]
    else: order = [(kt, s_, qt) for qt in range(nq) for kt in range(2) for s_ in range(4)]
    out = []
    for kt, s_, qt in order:
        d = v(vS + 32 * (T % 2) + 8 * qt + 4 * kt, 4)
        c = d if s_ else ("0" if czero else v(vC + 4 * qt, 4))
        out.append(mfma(d, a(aK + 4 * (4 * kt + s_), 4), v(vQ + 16 * qt + 4 * s_, 4), c))
    return out
def crosslane_max(A, regs, tmp):
    for sw in ("v_permlane32_swap_b32", "v_permlane16_swap_b32"):
        for i, r in enumerate(regs): A.e(f"v_mov_b32 {v(tmp+i)}, {v(r)}")
        A.e("s_nop 1")
        for i, r in enumerate(regs): A.e(f"{sw} {v(tmp+i)}, {v(r)}")
        A.e("s_nop 1")
        for i, r in enumerate(regs): A.e(f"v_max_f32 {v(r)}, {v(r)}, {v(tmp+i)}")
def first_tile(A, nq):
    A.e("s_waitcnt lgkmcnt(0)")
    A.e("s_nop 0")
    for m in qk_list(0, nq, czero=True): A.e(m)
    A.e("s_nop 7")
    for qt in range(nq):
        b = vS + 8 * qt; c = vC + 4 * qt
        A.e(f"v_max3_f32 {v(c)}, {v(b)}, {v(b+1)}, {v(b+2)}")
        A.e(f"v_max3_f32 {v(c+1)}, {v(b+3)}, {v(b+4)}, {v(b+5)}")
        A.e(f"v_max3_f32 {v(c)}, {v(c)}, {v(b+6)}, {v(b+7)}")
        A.e(f"v_max_f32 {v(c)}, {v(c)}, {v(c+1)}")
    crosslane_max(A, [vC + 4 * qt for qt in range(nq)], vT)
    for qt in range(nq):
        b = vS + 8 * qt; c = vC + 4 * qt
        for e in range(8): A.e(f"v_sub_f32 {v(b+e)}, {v(b+e)}, {v(c)}")
        for e in (3, 2, 1, 0): A.e(f"v_sub_f32 {v(c+e)}, 0, {v(c)}")

WO3 = []
NLOOP = {4: 15, 3: 13}
def attn_slots(nq):
    P = 17 * nq; NT = 34
    slots = [Slot() for _ in range(NT * P)]
    E = [2 * e - 4 for e in range(8 * nq)]
    Em = set(x % P for x in E)
    others = [j for j in range(P) if j not in Em]
    BARP = 8 * nq - 2
    aft = [j for j in others if j > BARP]
    kpos = aft[:8]
    seq = aft[12 if nq == 4 else 8:] + [j + P for j in others if j < BARP]
    vpos = [x for x in seq if x % 2 == 1][:16] if nq == 4 else seq[:16]
    assert vpos[-1] + 6 <= P + BARP, vpos
    peel = 2 * (NLOOP[nq] + 1) * P
    unit = 0
    for T in range(NT):
        g = T * P
        if T < 32:
            for i, m in enumerate(qk_list(T, nq)): slots[g + i].m = m
        if 0 < T <= 32: slots[g - 1].sal.append(lambda A: A.wait_lds(("K", 7)))
        Tp = T - 2
        if 0 <= Tp < 32:
            pb = vP + 16 * (Tp % 2); k = 8 * nq
            for t in range(8):
                for qt in range(nq):
                    d = a(aO + 32 * qt + 4 * t, 4)
                    slots[g + k].m = mfma(d, a(aV + 4 * t, 4), v(pb + 4 * qt, 4), d); k += 1
            for qt in range(nq):
                d = a(aL + 4 * qt, 4)
                slots[g + k].m = mfma(d, v(vONE, 4), v(pb + 4 * qt, 4), d); k += 1
            for i in range(16): slots[g - P + vpos[i]].mem.append(v_read(Tp, i))
            slots[g + BARP].sal.append(lambda A: A.wait_lds(("V", 15)))
        Ts = T - 1
        if 0 <= Ts < 32:
            sb = vS + 32 * (Ts % 2); pb = vP + 16 * (Ts % 2)
            for e in range(8 * nq):
                slots[g + E[e]].valu.append(f"v_exp_f32 {v(sb+e)}, {v(sb+e)}")
                if e % 2: slots[g + E[e] + 1].valu.append(f"v_cvt_pk_bf16_f32 {v(pb+e//2)}, {v(sb+e-1)}, {v(sb+e)}")
        if T < 32:
            for f in range(8): slots[g + kpos[f]].mem.append(k_read(T + 1, f))
        if T < 32 and T % 2 == 1:
            n = T // 2
            if nq == 3:
                if g < peel:
                    for k, grp in enumerate(dq_landed()): slots[g + BARP - 7 + k].sal += grp
                    def chk(A):
                        A.e(f"s_cbranch_scc0 L_dqwait_{REGION[0]}")
                        A.label(f"L_dqok_{REGION[0]}")
                    slots[g + BARP].sal.append(chk)
                    slots[g + BARP + 1].sal += [f"s_cmp_lt_u32 {s(sNEED)}, {(CFG['lim1n'] + 1) * SLOT}", f"s_cselect_b32 {s(sVM)}, {(CFG['limr'] - CFG['lim1']) // 512}, 0"]
                    slots[g + BARP + 2].sal += [f"s_lshl_b32 {s(sVM)}, {s(sVM)}, 9", f"s_sub_u32 {s(sLIM)}, {s(sLIM)}, {s(sVM)}"]
                    slots[g + BARP + 3].sal += [f"s_add_u32 {s(sLIM)}, {s(sLIM)}, {CFG['limr']}", f"s_add_u32 {s(sVM)}, {s(sNEED)}, {4*SLOT}"]
                    slots[g + BARP + 4].sal += [f"s_min_u32 {s(sLIM)}, {s(sLIM)}, {s(sVM)}", f"s_min_u32 {s(sLIM)}, {s(sLIM)}, {16*SLOT}",
                                                f"s_add_u32 {s(sNEED)}, {s(sNEED)}, {SLOT}"]
                else: slots[g + BARP].sal.append(lambda A, n=n: A.wait_vm(("u", 8 * (n - 3) - 1)))
            slots[g + BARP].sal.append("s_barrier")
            slots[g].sal += [f"s_cmp_eq_u32 {s(sKOFF)}, {4*SLOT}", f"s_cselect_b32 {s(sDK)}, {s(sM4)}, {SLOT}"]
            slots[g + 1].sal.append(f"s_add_u32 {s(sKOFF)}, {s(sKOFF)}, {s(sDK)}")
            cv = set((x + 1) % P for k, x in enumerate(E) if k % 2)
            free = [j for j in others if j not in cv]
            kfree = [j for j in free if 2 < j < kpos[0]][:4]
            for i in range(4): slots[g + kfree[i]].valu.append(f"v_add_u32 {v(vKA+i)}, {s(sDK)}, {v(vKA+i)}")
            vfree = [j for j in free if vpos[-1] - P < j < vpos[0] and j not in kfree]
            while len(vfree) < 8: vfree = sorted(vfree + vfree[:8 - len(vfree)])
            for i in range(8): slots[g + vfree[i]].valu.append(f"v_add_u32 {v(vVA+i)}, {s(sDK)}, {v(vVA+i)}")
            if nq == 3:
                PP = {2: [78, 132], 3: [78, 110, 140], 4: [78, 106, 132, 156], 5: [78, 105, 122, 139, 156]}[CFG["npoll"]]
                for u, pp in enumerate(PP):
                    p = g - P + pp
                    if p + 11 > peel + CFG["restp"] and p >= peel: break
                    pc = dq_pieces(f"{u}")
                    pc = [pc[0] + pc[1], pc[2] + pc[3], pc[4] + pc[5]] + pc[6:]
                    assert not any((p + k) % (2 * P) in (0, 1, 2, P, P + 1, 2 * P - 3, 2 * P - 2, 2 * P - 1) for k in range(len(pc)))
                    assert p + len(pc) <= g + 2 * P + BARP - 7 and not any(isinstance(x, str) for k in range(len(pc)) for x in slots[p + k].sal), (u, p - g)
                    for k, grp in enumerate(pc): slots[p + k].sal += grp
    if nq == 3:
        freeat = {0: 12, 1: 13, 2: 14, 3: 15, 4: 11, 5: 12, 6: 13, 7: 14, 8: 15}
        byb = {13: [], 14: [], 15: []}
        for gidx in range(48):
            w, gi = gidx // 12, gidx % 12
            fr = max(13, freeat[gidx * 3072 // SLOT], freeat[(gidx * 3072 + 3071) // SLOT])
            byb[fr] += wo_group(f"s_mov_b32 m0, {gidx*3072}", f"s_mov_b32 {s(sT3)}, {(256*w + 16*gi)*1152}", "wo1")
        b14 = 29 * P + BARP; b15 = 31 * P + BARP
        if CFG["wotouch"] == "sl":
            wops = []
            for k in range(36):
                wops.append(("mem", lambda A, k=k: A.vmem(f"global_load_dwordx4 v[240:243], v{254 - 2*0 if False else 244 + k // 6}, s[88:89] offset:{1024*(k%6) - 4096}", "wot")))
            w0, w1 = CFG.get("wl0", 2), CFG.get("wl1", 50)
            place_ops(slots, [peel + w0 + k * (w1 - w0) // 36 for k in range(36)], wops)
        cand = [p for p in range(peel + CFG["wostart"], b15 - 1)]
        n13 = nmem(byb[13]); n1 = min(CFG["won1"], n13 + nmem(byb[14])); n2 = 144 - n1
        o1, o2, o3 = split_ops(byb[13] + byb[14] + byb[15], [n1, n2])
        pos = [cand[k * len(cand) // n1] for k in range(n1)]
        assert n1 <= n13 or pos[n13] > b14 + 2
        if not CFG.get("x_nowo1"): place_ops(slots, pos, o1)
        room = 32 * P - 1 - (b15 + 2)
        place_ops(slots, [b15 + 2 + k * room // n2 for k in range(n2)], o2)
        WO3[:] = o3
    return slots, P

def fix_nomfma(slots):
    for sl in slots:
        if sl.m is None and (sl.valu or sl.mem): sl.sal.insert(0, "s_nop 0")

def attention(A, nq):
    R = f"q{nq}"
    slots, P = attn_slots(nq)
    prologue(A, nq, slots, P)
    F = Asm()
    F.label(f"L_attn_{R}")
    for i in range(8 * nq): slots[i].m = None
    pro = slots[8 * nq:2 * P]; fix_nomfma(pro)
    for sl in slots[:8 * nq]:
        for f in sl.mem: f(F)
    REGION[0] = "p"
    emit_slots(F, pro)
    F.e(f"s_branch L_steady_{R}")
    assert F.lds[-15:] == A.lds[-15:]
    A.e(f"s_waitcnt vmcnt({0 if nq == 4 else 32})")
    prewarm_flags(A)
    A.e(CMP_NON); A.e("s_nop 4"); A.e(f"s_cbranch_vccnz L_non{nq}_spin"); A.label(f"L_non{nq}_ok")
    spin(F, f"non{nq}", LD_NON, CMP_NON)
    for _ in range(CFG.get("x_sleep", 0)): A.e("s_sleep 18")
    A.label(f"L_steady_{R}")
    if nq == 3: census(A)
    REGION[0] = "l"
    NL = NLOOP[nq]
    A.e(f"s_mov_b32 {s(sCNT)}, {NL}")
    stamp(A, "loop")
    B = Asm(); B.lds = list(A.lds); B.vm = list(A.vm); texts = []
    for n in range(1, NL + 1):
        B.lines = []; emit_slots(B, slots[2 * n * P:2 * (n + 1) * P]); texts.append(B.text())
    assert all(t == texts[0] for t in texts), "steady state mismatch"
    A.raw(".p2align 6")
    A.label(f"L_loop_{R}")
    body = slots[2 * P:4 * P]
    body[-3].sal.append(f"s_sub_u32 {s(sCNT)}, {s(sCNT)}, 1")
    body[-2].sal.append(f"s_cmp_lg_u32 {s(sCNT)}, 0")
    if nq == 3 and CFG["wotouch"] == "loop":
        def tb(A):
            A.e(f"s_cmp_eq_u32 {s(sCNT)}, {CFG.get('wtit', 2)}")
            A.e("s_cbranch_scc0 L_nowt")
            wotouch(A)
            A.label("L_nowt")
        body[2].sal.append(tb)
    if nq == 3 and CFG["wotouch"] == "spread":
        lo = CFG.get("wtit", 5)
        def tb(A):
            A.e(f"s_sub_u32 {s(sT0)}, {s(sCNT)}, {lo}")
            A.e(f"s_cmp_lt_u32 {s(sT0)}, 5")
            A.e("s_cbranch_scc0 L_nowt")
            A.vmem(f"global_load_dword v255, v254, s[88:89]{CFG['nt_wt']}", "wot")
            A.e(f"v_add_u32 v254, 7168, v254")
            A.label("L_nowt")
        body[2].sal.append(tb)
    if nq == 3 and CFG["wotouch"] == "dyn":
        def br(A):
            A.e("s_cbranch_scc0 L_nowt")
            for h in range(3):
                for j in range(6): A.vmem(f"global_load_dwordx4 v[240:243], v254, s[88:89] offset:{1024*j - 4096}{CFG['nt_wt']}", "wot")
                A.e("v_add_u32 v254, 6144, v254")
            A.e(f"s_add_u32 {s(sT2)}, {s(sT2)}, 1")
            A.label("L_nowt")
        body[1].sal += [f"s_cmp_lt_u32 {s(sT2)}, {s(sQ)}"]
        body[2].sal += [br]
    if nq == 3 and CFG["wotouch"] == "it":
        for k, p in enumerate((19, 47, 95)):
            while len(body[p].mem) + len(body[p].valu) >= 2 or any(isinstance(x, str) and x.startswith("v_exp") for x in body[p].valu): p -= 1
            body[p].mem.append(f"global_load_dwordx4 v[240:243], v254, s[88:89] offset:{1024*k - 4096}")
            if k == 2:
                body[p + 2].valu.append("v_add_u32 v254, 3072, v254")
                body[p + 4].valu.append("v_min_u32 v254, v253, v254")
    if nq == 3 and CFG["wotouch"] == "ad":
        NW = CFG.get("adn", 4)
        def br(A):
            A.e("s_cbranch_scc0 L_nowt")
            for j in range(NW): A.e(f"global_load_dwordx4 v[240:243], v254, s[88:89] offset:{1024*j - 4096}")
            A.e(f"v_add_u32 v254, {1024*NW}, v254")
            A.e(f"s_sub_u32 {s(sT2)}, {s(sT2)}, 1")
            A.label("L_nowt")
        p = P + 8 * nq - 2
        chain = [f"s_add_u32 {s(sT0)}, {s(sVM)}, {CFG.get('adlead', 4096)}", f"s_cmp_le_u32 {s(sT0)}, {s(sQ)}",
                 f"s_cselect_b32 {s(sT0)}, {s(sT2)}, 0", f"s_cmp_lt_u32 {s(sQ)}, {s(sLIM)}", f"s_cselect_b32 {s(sT0)}, 0, {s(sT0)}"]
        body[p].sal += chain
        body[92].sal += [f"s_cmp_lg_u32 {s(sT0)}, 0"]
        body[93].sal += [br]
    if CFG["itst"] and nq == 3:
        B7 = P + 8 * nq - 2 - 1
        body[B7].sal = [f"s_add_u32 s64, {s(sQ)}, {s(sNEED)}", f"s_sub_u32 s64, s64, {s(sVM)}", f"v_cmp_eq_u32 vcc, {s(sCNT)}, {v(vLANE)}",
                        "v_mov_b32 v61, s64", "s_nop 0", "v_cndmask_b32 v62, v62, v61, vcc"] + body[B7].sal
    if CFG["itst"] and nq == 4:
        body[P + 8*nq].sal += ["s_memrealtime s[64:65]"]
        body[P + 8*nq + 24].sal += ["s_waitcnt lgkmcnt(0)", f"v_cmp_eq_u32 vcc, {s(sCNT)}, {v(vLANE)}", "v_mov_b32 v61, s64", "s_nop 0", "v_cndmask_b32 v62, v62, v61, vcc"]
    emit_slots(A, body)
    A.e(f"s_cbranch_scc1 L_loop_{R}")
    A.lds = B.lds; A.vm = B.vm
    RP = CFG["restp"] if nq == 3 else 0
    REGION[0] = "e"
    emit_slots(A, slots[2 * (NL + 1) * P:2 * (NL + 1) * P + RP])
    if nq == 3:
        assert RP <= CFG["wostart"] - 2 and RP < P + 8 * nq - 2 and RP % P not in (0, 1) or RP == 0
        A.label("L_dqrest")
        emit_list(A, dq_prep())
        A.e(f"s_cmp_lt_u32 {s(sQ)}, {16*SLOT}")
        A.e("s_cbranch_scc0 L_dqdone")
        dq_block(A)
        A.e(f"s_cmp_eq_u32 {s(sP)}, {5*SLOT}")
        A.e(f"s_cselect_b32 {s(sP)}, 0, {s(sP)}")
        A.e("s_branch L_dqrest")
        A.label("L_dqdone")
        A.vm = [("u", 87)] + [("u", 95)] * 32
    if nq == 3 and CFG["wotouch"] == "ad":
        NW = CFG.get("adn", 4)
        A.label("L_wtrest")
        A.e(f"s_cmp_lg_u32 {s(sT2)}, 0")
        A.e("s_cbranch_scc0 L_wtdone")
        for j in range(NW): A.e(f"global_load_dwordx4 v[240:243], v254, s[88:89] offset:{1024*j - 4096}")
        A.e(f"v_add_u32 v254, {1024*NW}, v254")
        A.e(f"s_sub_u32 {s(sT2)}, {s(sT2)}, 1")
        A.e("s_branch L_wtrest")
        A.label("L_wtdone")
    if nq == 3 and CFG["wotouch"] == "t28": wotouch(A)
    if nq == 3 and CFG["wotouch"] in ("dyn", "end"):
        A.label("L_wtrest")
        A.e(f"s_cmp_lt_u32 {s(sT2)}, {s(sQ)}")
        A.e("s_cbranch_scc0 L_wtdone")
        for h in range(3):
            for j in range(6): A.e(f"global_load_dwordx4 v[240:243], v254, s[88:89] offset:{1024*j - 4096}{CFG['nt_wt']}")
            A.e("v_add_u32 v254, 6144, v254")
        A.e(f"s_add_u32 {s(sT2)}, {s(sT2)}, 1")
        A.e("s_branch L_wtrest")
        A.label("L_wtdone")
        A.vm += ["wot"] * 36
    emit_slots(A, slots[2 * (NL + 1) * P + RP:32 * P])
    stamp(A, "loopend")
    tail(A, nq, slots, P)
    return F.text()

def tail(A, nq, slots, P):
    M = []; V = []; X = []
    X.append(Op(f"s_mov_b64 {s(sOV,2)}, 0", 0))
    for sl in slots[32 * P:32 * P + 8 * nq - 2]:
        for x in sl.mem: X.append(Op(x))
    def v31(i):
        t, j = i // 2, i % 2
        return lambda A: A.ds(f"ds_read_b64_tr_b16 {a(aK+4*t+2*j,2)}, {v(vVA+t)} offset:{8192+4096*j}", ("V31", i))
    NV = 4 if CFG["tord"] == 0 else 8
    if CFG["tord"]:
        for o in X: o.units = 0
    for i in range(NV): X.append(Op(v31(i), 0 if CFG["tord"] else 1))
    X.append(Op(lambda A: A.wait_lds(("V", 15)), 0, deps=[(("e", 0, 5), 0)] if CFG["tord"] else [], name="v30"))
    for i in range(NV, 16): X.append(Op(v31(i)))
    if nq == 3:
        grp = split_ops(WO3, [2] * (nmem(WO3) // 2))
        for k, g in enumerate(grp):
            if g: V.append(Op(lambda A, g=g: emit_ops(A, g), 2))
        WV = list(V); V.clear()
    X.append(Op(lambda A: A.wait_lds(("V31", 15)), 0, deps=[(("pv", 0, 1 if CFG["tord"] == 0 else 0), 0)], name="v31"))
    X.append(Op(f"s_mov_b32 {s(sT0)}, {f32hex(2.0**40)}", 0, name="thr"))
    def pv(T, qt):
        pb = vP + 16 * T + 4 * qt
        deps = [("v30", 0)] if T == 0 else [("v31", 0), (("p", qt), 2)]
        d = a(aL + 4 * qt, 4)
        M.append(Op(mfma(d, v(vONE, 4), v(pb, 4), d), deps=deps, name=("sum", T, qt)))
        for t in range(8):
            d = a(aO + 32 * qt + 4 * t, 4)
            M.append(Op(mfma(d, a((aK if T else aV) + 4 * t, 4), v(pb, 4), d), name=("pv", T, qt) if t == 7 else ("pvt", T, qt, t)))
    def soft(qt):
        sb = vS + 32 + 8 * qt; pb = vP + 16 + 4 * qt
        for e in range(2 if qt == 0 else 0, 8): V.append(Op(f"v_exp_f32 {v(sb+e)}, {v(sb+e)}", 2, name=("e", qt, e)))
        for j in range(1 if qt == 0 else 0, 4):
            V.append(Op(f"v_cvt_pk_bf16_f32 {v(pb+j)}, {v(sb+2*j)}, {v(sb+2*j+1)}", deps=[(("e", qt, 2*j+1), 1)], name=("p", qt) if j == 3 else None))
    def pub_a(A):
        A.e(f"s_cmp_lg_u32 {s(sSECOND)}, 0")
        A.e(f"s_cselect_b64 {s(sOV,2)}, 0, {s(sOV,2)}")
        A.e(f"s_cmp_eq_u64 {s(sOV,2)}, 0")
        A.e(f"s_cselect_b32 {s(sT1)}, {s(sFL)}, {WS_SIZE}")
        A.wait_vm(("st", 0))
        A.vmem(f"buffer_store_dwordx2 {v(vNON,2)}, {v(vFW)}, {s(sWS,4)}, {s(sT1)} offen sc1", "pubA")
        for r in (sFL, sOS, sOS + 1): A.e(f"s_cselect_b32 {s(r)}, {WS_SIZE}, {s(r)}")
    cnt = [0]
    def norm(qt):
        r = vT + 2 * (qt % 2)
        V.append(Op(f"v_accvgpr_read_b32 {v(r)}, {a(aL+4*qt)}", deps=[(("sum", 1, qt), 8), ("thr", 0)]))
        V.append(Op(f"v_cmp_ngt_f32 vcc, {s(sT0)}, {v(r)}", name=("cmp", qt)))
        V.append(Op(f"v_rcp_f32 {v(r)}, {v(r)}", 2))
        for u in range(4):
            k = cnt[0]; cnt[0] += 1
            tb = vS + 8 * (k % 4); pb = vC + 4 * (k % 8)
            for j in range(8):
                t = 2 * u + j // 4
                V.append(Op(f"v_accvgpr_read_b32 {v(tb+j)}, {a(aO + 32*qt + 8*u + j)}", deps=[(("pv", 1, qt) if t == 7 else ("pvt", 1, qt, t), 8)]))
            if u == 0:
                if qt < 2: V.append(Op(f"s_or_b64 {s(sOV,2)}, {s(sOV,2)}, vcc", deps=[(("cmp", qt), 4)]))
                V.append(Op(f"v_addc_co_u32 {v(vT+4)}, vcc, 0, {v(vT+4)}, vcc", deps=[(("cmp", qt), 2)]))
            if k >= ((5 if nq == 4 else 3) if CFG["tord"] == 0 else (6 if nq == 4 else 5)):
                for j in range(4): V.append(Op(f"v_pk_mul_f32 {v(tb+2*j,2)}, {v(tb+2*j,2)}, {v(r,2)} op_sel_hi:[1,0]"))
            else:
                for j in range(8): V.append(Op(f"v_mul_f32 {v(tb+j)}, {v(tb+j)}, {v(r)}"))
            for j in range(4):
                V.append(Op(f"v_cvt_pk_bf16_f32 {v(pb+j)}, {v(tb+2*j)}, {v(tb+2*j+1)}", deps=[(("st", k - 8), 2)] if k >= 8 else [], name=("o", k) if j == 3 else None))
            X.append(Op(lambda A, pb=pb, u=u, qt=qt: A.vmem(f"buffer_store_dwordx4 {v(pb,4)}, {v(vOO)}, {s(sWS,4)}, {s(sOS+qt)} offen offset:{1024*u} sc1", ("st", qt // 2)),
                        2, deps=[(("o", k), 0)], name=("st", k)))
            if k == min(CFG["pubA"], 4 * nq - 1): X.append(Op(pub_a))
    V.append(Op(f"v_mov_b32 {v(vT+4)}, 0"))
    if CFG["tord"] == 0:
        for qt in range(nq): soft(qt)
        if nq == 3:
            n0 = len(V)
            for k, o in enumerate(reversed(WV)): V.insert((len(WV) - 1 - k) * n0 // max(len(WV), 1), o)
        pv(0, 0); pv(0, 1); pv(1, 0); pv(1, 1)
        for qt in range(2, nq): pv(0, qt); pv(1, qt)
        for qt in range(nq): norm(qt)
    else:
        assert nq == 4 or not WV
        soft(0); soft(1); norm(0)
        for qt in range(2, nq): soft(qt)
        for qt in range(1, nq): norm(qt)
        pv(0, 0); pv(1, 0); pv(0, 1); pv(1, 1)
        for qt in range(2, nq): pv(0, qt)
        for qt in range(2, nq): pv(1, qt)
    merge(A, M, V, X)
    stamp(A, "pvdone")

def wo_read(ksl, n, jj):
    off = 6144 * (ksl % 6) + 3072 * jj + 64 * (n // 2)
    return lambda A: A.ds(f"ds_read_b64_tr_b16 {a((ksl*6+n)*4 + 2*jj, 2)}, {v(vWT + n % 2)} offset:{off}", ("W", ksl))

def wo2(A):
    A.e(f"s_mul_i32 {s(sT2)}, {s(sW)}, {8*36864}")
    for gi in range(12, 16):
        emit_ops(A, wo_group(f"s_add_u32 m0, {s(sWOW)}, {3072*(gi-12)}", f"s_add_u32 {s(sT3)}, {s(sT2)}, {gi*16*1152}", "wo2"))
def epilogue(A, nq):
    R = f"q{nq}"
    if nq == 3: A.wait_vm("wo1")
    A.e("s_barrier")
    stamp(A, "barX")
    A.e(f"v_lshlrev_b32 {v(vT+5)}, 2, v0")
    A.e(f"v_add_u32 {v(vT+5)}, {OVF}, {v(vT+5)}")
    A.ds(f"ds_write_b32 {v(vT+5)}, {v(vT+4)}", "flag")
    for ksl in range(6):
        for n in range(6):
            for jj in range(2): wo_read(ksl, n, jj)(A)
        if ksl == 3 and CFG["wo2early"]:
            A.wait_lds(("W", 1))
            wo2(A)
    A.e(f"v_add_u32 {v(vT+5)}, {OVF}, {v(vOO)}")
    A.e("s_waitcnt lgkmcnt(0)")
    A.e("s_barrier")
    stamp(A, "barY")
    A.e(f"ds_read_b128 {v(vT,4)}, {v(vT+5)}")
    A.e("s_waitcnt lgkmcnt(0)")
    A.e(f"v_or_b32 {v(vT)}, {v(vT)}, {v(vT+1)}")
    A.e(f"v_or3_b32 {v(vT)}, {v(vT)}, {v(vT+2)}, {v(vT+3)}")
    A.e(f"v_cmp_ne_u32 vcc, 0, {v(vT)}")
    A.e(f"s_cmp_lg_u32 {s(sSECOND)}, 0")
    A.e("s_cbranch_scc1 L_phase2")
    A.e("s_nop 2")
    A.e(f"s_cbranch_vccnz L_fallback_{R}")
    if nq == 4: A.e("s_branch L_phase2")
    return ""

def fallback(A, nq):
    R = f"q{nq}"
    A.label(f"L_fallback_{R}")
    A.e(f"s_mov_b32 {s(sSECOND)}, 1")
    attn_init(A)
    for qt in range(nq): A.e(f"v_mov_b32 {v(vC+4*qt)}, 0xff800000")
    A.e(f"s_mov_b32 {s(sT2)}, {s(sW4K)}")
    A.e(f"s_mov_b32 {s(sCNT)}, 16")
    A.e("s_waitcnt vmcnt(0)")
    A.label(f"L_fb_loop_{R}")
    A.e("s_barrier")
    emit_ops(A, kv_quarter("K", f"s_add_u32 m0, {s(sW4K)}, {KPOS(0)}", f"s_mov_b32 {s(sT3)}, {s(sT2)}", "fb"))
    A.e("s_waitcnt vmcnt(0)")
    A.e("s_barrier")
    for T in range(2):
        for f in range(8): k_read(T, f)(A)
        A.e("s_waitcnt lgkmcnt(0)")
        for m in qk_list(T, nq, czero=True): A.e(m)
        A.e("s_nop 7")
        for qt in range(nq):
            b = vS + 32 * T + 8 * qt; c = vC + 4 * qt
            for e in range(0, 8, 2): A.e(f"v_max3_f32 {v(c)}, {v(c)}, {v(b+e)}, {v(b+e+1)}")
    A.e(f"s_add_u32 {s(sT2)}, {s(sT2)}, {SLOT}")
    A.e(f"s_sub_u32 {s(sCNT)}, {s(sCNT)}, 1")
    A.e(f"s_cmp_lg_u32 {s(sCNT)}, 0")
    A.e(f"s_cbranch_scc1 L_fb_loop_{R}")
    crosslane_max(A, [vC + 4 * qt for qt in range(nq)], vT)
    for qt in range(nq):
        c = vC + 4 * qt
        for e in (3, 2, 1, 0): A.e(f"v_sub_f32 {v(c+e)}, 0, {v(c)}")
    A.e("s_barrier")
    for kind, n in (("K", 0), ("K", 1), ("V", 0), ("K", 2), ("V", 1), ("K", 3), ("V", 2), ("K", 4), ("V", 3)):
        emit_ops(A, kv_own(kind, n))
    zero_acc(A, nq); zero_l(A, nq)
    A.e(f"s_mov_b32 {s(sP)}, {KPOS(5)}")
    A.e(f"s_mov_b32 {s(sQ)}, {4*SLOT}")
    A.e(f"s_mov_b32 {s(sLIM)}, {4*SLOT}")
    A.e(f"s_mov_b32 {s(sNEED)}, {SLOT}")
    A.e("s_waitcnt vmcnt(0)")
    A.e("s_barrier")
    for f in range(8): k_read(0, f)(A)
    A.e("s_waitcnt lgkmcnt(0)")
    for m in qk_list(0, nq): A.e(m)
    A.e("s_nop 7")
    A.e(f"s_branch L_attn_{R}")

def spin(A, name, load, cmp_):
    A.label(f"L_{name}_spin")
    A.e(f"s_mov_b32 {s(sCNT)}, {CFG['spin']}")
    A.label(f"L_{name}_again")
    A.e(load)
    A.e("s_waitcnt vmcnt(0)")
    A.e(cmp_)
    A.e(f"s_sub_u32 {s(sCNT)}, {s(sCNT)}, 1")
    A.e("s_nop 2")
    A.e(f"s_cbranch_vccz L_{name}_ok")
    A.e(f"s_sleep {CFG.get('slp', 1)}")
    A.e(f"s_cmp_lg_u32 {s(sCNT)}, 0")
    A.e(f"s_cbranch_scc1 L_{name}_again")
    A.e(f"s_branch L_{name}_ok")

def phase2(A):
    vF = vT
    vAC = 64
    vTR = 112
    vPA = 192
    vRR2 = 32
    vOH = 37
    PB = CFG["pb"]
    vO4 = 38
    sPS2 = sCH; sPF2 = sCH + 2
    aOF = 192
    ld_non = f"buffer_load_dwordx2 {v(vNON,2)}, off, {s(sDBG,4)}, 0 offset:128 sc1"
    cmp_non = f"v_cmp_eq_u64 vcc, 0, {v(vNON,2)}"
    ld_fo = f"buffer_load_dwordx2 {v(vF,2)}, {v(vFO)}, {s(sWS,4)}, 0 offen sc1"
    ld_fa = f"buffer_load_dwordx2 {v(vF,2)}, {v(vFA)}, {s(sWS,4)}, 0 offen sc1"
    ld_fb = f"buffer_load_dwordx2 {v(vF,2)}, {v(vFA+1)}, {s(sWS,4)}, 0 offen sc1"
    cmp_f = f"v_cmp_ne_u64 vcc, {v(vF,2)}, {v(vNON,2)}"
    def check(A, name, cmp_):
        A.e(cmp_); A.e("s_nop 4"); A.e(f"s_cbranch_vccnz L_{name}_spin"); A.label(f"L_{name}_ok")
    A.label("L_phase2")
    pub_b = f"buffer_store_dwordx2 {v(vNON,2)}, {v(vFW)}, {s(sWS,4)}, {s(sFL+1)} offen sc1"
    ld_fo2 = ld_fo.replace(" offen", f" offen offset:{1 << (FSH - 1)}")
    A.e(f"s_cmp_lt_u32 {s(sIDX)}, 30")
    A.e("s_cbranch_scc1 L_tile")
    A.e("s_waitcnt vmcnt(0)")
    A.e(pub_b)
    A.e("s_branch L_fin")
    A.label("L_tile")
    A.vmem(ld_fo, "fo")
    A.e(f"v_and_b32 {v(vFA+1)}, 0xffffff7f, {v(vFA)}")
    A.e(f"v_add_u32 {v(vFA+1)}, 256, {v(vFA+1)}")
    for r in range(5): A.e(f"v_add_u32 {v(vRR2+r)}, {2*WOW}, {v(vRR+r)}")
    A.e(f"v_add_u32 {v(vO4)}, 4096, {v(vOO)}")
    A.e(f"v_lshrrev_b32 {v(vOH)}, 5, {v(vLANE)}")
    A.e(f"v_lshlrev_b32 {v(vOH)}, 30, {v(vOH)}")
    A.e(f"v_lshl_add_u32 {v(vOH)}, {v(vLANE)}, {3 if PB else 4}, {v(vOH)}")
    if not PB: A.e(f"v_add_u32 {v(vOH)}, 4096, {v(vOH)}")
    A.e("s_waitcnt vmcnt(1)")
    A.vmem(pub_b, "pubB")
    if not CFG["wo2early"]: wo2(A)
    A.wait_vm("fo")
    check(A, "fo", cmp_f)
    stamp(A, "oready")
    D = CFG["D"]; NB = 16
    NST = 96
    slots = [Slot() for _ in range(NST * 6)]
    def load(st):
        q, i, ksl = st // 24, (st // 8) % 3, st % 8
        ops = []
        if ksl % 4 == 0: ops.append(("sal", f"s_add_u32 {s(sT1)}, {s(sPO+q)}, {OM*i + 1024*ksl}"))
        ops.append(("mem", lambda A: A.vmem(
            f"buffer_load_dwordx4 {a(aOF + 4*(st%NB), 4)}, {v(vOO)}, {s(sWS,4)}, {s(sT1)} offen offset:{1024*(ksl%4)}{CFG['nt_ol']}", ("o", st))))
        return ops
    for st in range(D): emit_ops(A, load(st))
    if not CFG["wo2early"]: A.wait_vm("wo2")
    for ksl in (6, 7):
        for n in range(6):
            for jj in range(2): wo_read(ksl, n, jj)(A)
    A.wait_vm(("o", 0))
    def acc(blk, n): return vAC + 24 * (blk % 2) + 4 * n
    CH = CFG["gchain"]
    for st in range(NST):
        blk, ksl = st // 8, st % 8
        g0 = st - st % CH
        for n in range(6):
            d = v(acc(blk, n), 4)
            slots[6 * g0 + CH * n + st % CH].m = mfma(d, a((ksl * 6 + n) * 4, 4), a(aOF + 4 * (st % NB), 4), d if ksl else "0")
        if st: slots[6 * g0 + st % CH - 1].sal.append(lambda A, st=st: A.wait_vm(("o", st)))
    pB = 6 * (40 - D)
    slots[pB - 50].mem.append(lambda A: A.vmem(ld_fo2, "fo2"))
    slots[pB - 2].valu += [lambda A: A.wait_vm("fo2"), lambda A: check(A, "fo2", cmp_f)]
    assert D + CH <= NB
    LE = CFG.get("le", 16 - CH)
    nxt = D
    for st in range(NST):
        want = min(NST, st + 1 + (D if st < 62 else min(LE, D + (st - 62) // 2)))
        k = 0
        while nxt < want:
            place_ops(slots, [6 * st + 1 + 3 * k], load(nxt)); nxt += 1; k += 1
    slots[22].sal.append("s_waitcnt lgkmcnt(0)")
    def red_write(blk, n):
        return lambda A: A.ds(f"ds_write_b128 {v(vRW - n % 2)}, {v(acc(blk, n), 4)} offset:{RHALF*((blk//3)%2) + 16*(blk%3)*RSTR + 128*(n//2)}", ("rw", blk))
    def treg(r, src): return vTR + 16 * r + 4 * src
    def red_read(q, r, src):
        return lambda A: A.ds(f"ds_read_b128 {v(treg(r, src), 4)}, {v((vRR if src < 2 else vRR2)+r)} offset:{WOW*(src%2) + RHALF*(q%2)}", ("rr", q, r))
    def red_adds(r):
        t = [treg(r, k) for k in range(4)]
        return [f"v_add_f32 {v(t[0]+e)}, {v(t[0]+e)}, {v(t[1]+e)}" for e in range(4)] + \
               [f"v_add_f32 {v(t[2]+e)}, {v(t[2]+e)}, {v(t[3]+e)}" for e in range(4)] + \
               [f"v_add_f32 {v(t[0]+e)}, {v(t[0]+e)}, {v(t[2]+e)}" for e in range(4)]
    WSP = CFG.get("wsp", 4); WSF = CFG.get("wsf", 3); SPLIT = CFG["split"]
    NS2 = len(slots); spill = []
    def wfirst(blk): return 48 * (blk + 1) + ((-1 if CH > 1 else 3) if (blk % 3 or blk == 0 or (SPLIT and blk == 9)) else 14)
    def wsp(blk): return WSF if (SPLIT and blk in (8, 10)) else WSP
    for blk in range(11):
        for n in range(6): slots[wfirst(blk) + wsp(blk) * n].mem.append(red_write(blk, n))
        slots[48 * (blk + 2) - 2].sal.append(lambda A, blk=blk: A.wait_lds(("rw", blk)))
    def put_valu(p, ls):
        for l in ls:
            while p < NS2 and len(slots[p].valu) + len(slots[p].mem) >= 2: p += 1
            if p < NS2: slots[p].valu.append(l)
            else: spill.append(l)
        return p + 1
    def reduce(q, rounds, blk):
        R1 = wfirst(blk) + 5 * wsp(blk) + 6
        slots[R1].sal += ["s_waitcnt lgkmcnt(0)", "s_barrier"]
        for k, (r, src) in enumerate((r, src) for r in rounds for src in range(4)): slots[R1 + 1 + k].mem.append(red_read(q, r, src))
        p = R1 + 10
        for r in rounds:
            w = lambda A, q=q, r=r: A.wait_lds(("rr", q, r))
            if p < NS2: slots[p].sal.append(w)
            else: spill.append(w)
            t = treg(r, 0); pk = treg(r & ~1, 1) + 2 * (r & 1)
            ls = red_adds(r)
            if q == 3:
                p = put_valu(p, ls + ([f"v_add_f32 {v(t+e)}, {v(t+e)}, {v(vSUM+4*r+e)}" for e in range(4)] if not CFG["latesum"] else [])); continue
            p = put_valu(p, ls + [f"v_cvt_pk_bf16_f32 {v(pk)}, {v(t)}, {v(t+1)}", f"v_cvt_pk_bf16_f32 {v(pk+1)}, {v(t+2)}, {v(t+3)}"])
            so = s(sPS2 + q % 2)
            if r in (1, 3): txt = f"buffer_store_dwordx4 {v(treg(r-1, 1), 4)}, {v(vOO)}, {s(sWS,4)}, {so} offen offset:{1024*(r//2)} sc1"
            elif r == 4: txt = f"buffer_store_dwordx2 {v(pk, 2)}, {v(vOH)}, {s(sWS,4)}, {so} offen offset:2048 sc1"
            else: continue
            slots[p].mem.append(lambda A, q=q, txt=txt: A.vmem(txt, ("ps", q)))
        return p
    vSUM = vPA + 32
    for q in range(3):
        base = 144 * (q + 1)
        if CFG["stamps"]: slots[base].sal.append(lambda A, q=q: stamp(A, f"p{q+1}"))
        sal = [f"s_add_u32 {s(sT0)}, {s(sHG)}, {q+1}", f"s_and_b32 {s(sT0)}, {s(sT0)}, 3", f"s_sub_u32 {s(sT0)}, {s(sT0)}, {s(sHG)}",
               f"s_mul_i32 {s(sPS)}, {s(sT0)}, {2*12*5120}", f"s_add_u32 {s(sPS)}, {s(sPS)}, {s(sPL)}", f"s_add_u32 {s(sPS2 + q % 2)}, {s(sPS)}, {q*4*5120}",
               f"s_lshl_b32 {s(sT0)}, {s(sT0)}, 1", f"s_add_u32 {s(sT0)}, {s(sT0)}, s2", f"s_lshl_b32 {s(sT0)}, {s(sT0)}, 11",
               f"s_add_u32 {s(sT0)}, {s(sT0)}, {WS_PFLAG + 128*q}", f"s_lshl_b32 {s(sT2)}, {s(sW)}, 9",
               f"s_add_u32 {s(sPF2 + q % 2)}, {s(sT0)}, {s(sT2)}"]
        for k, x in enumerate(sal): slots[base - 58 + 2 * k].sal.append(x)
        if SPLIT and q == 2:
            pe = reduce(2, [0, 1, 2], 7)
            assert pe <= wfirst(8) + 5 * wsp(8) + 16, pe
            p = reduce(2, [3, 4], 8)
        else: p = reduce(q, range(5), 3 * q + 2)
        pf = p + CFG.get("ackd" if q < 2 else "ack2", 50 if q < 2 else 42)
        slots[pf].sal += [lambda A, q=q: A.wait_vm(("ps", q))]
        slots[pf].mem.append(lambda A, q=q: A.vmem(f"buffer_store_dwordx2 {v(vNON,2)}, {v(vFW)}, {s(sWS,4)}, {s(sPF2 + q % 2)} offen sc1", "pub"))
    def ploads(slot):
        ops = [("sal", f"s_add_u32 {s(sT3)}, {s(sPL)}, {4 * 5120 * slot}")]
        b = vPA + 10 * slot
        L = [f"buffer_load_dwordx4 {v(b+4*k, 4)}, {v(vOO)}, {s(sWS,4)}, {s(sT3)} offen offset:{1024*k} sc1" for k in range(2)]
        L.append(f"buffer_load_dwordx2 {v(b+8, 2)}, {v(vOH)}, {s(sWS,4)}, {s(sT3)} offen offset:2048 sc1")
        return ops + [("mem", lambda A, x=x: A.vmem(x, ("pl", slot))) for x in L]
    def padd(slot, r, dst, first=False):
        b = vPA + 10 * slot; L = []
        for e in range(4):
            src = b + 2 * r + e // 2; tmp = dst + e if first else vT + 2 + e
            L.append(f"v_and_b32 {v(tmp)}, 0xffff0000, {v(src)}" if e % 2 else f"v_lshlrev_b32 {v(tmp)}, 16, {v(src)}")
        if not first: L += [f"v_add_f32 {v(dst+e)}, {v(dst+e)}, {v(vT+2+e)}" for e in range(4)]
        return L
    base = 432
    FA = CFG.get("fa", 62); FC = CFG.get("fc", 98); FS = CFG.get("fs", 92)
    slots[base + FA].mem.append(lambda A: A.vmem(ld_fa, "fa"))
    slots[base + FC].valu += [lambda A: A.wait_vm("fa"), lambda A: check(A, "fa", cmp_f)]
    pl = ploads(0) + ploads(1)
    place_ops(slots, [base + FC + 2 + k for k in range(nmem(pl))], pl)
    presum = sum((padd(0, r, vSUM + 4 * r, True) + padd(1, r, vSUM + 4 * r) for r in range(5)), [])
    late = range(5)
    if CFG["latesum"]:
        reduce(3, [0, 1, 2], 10); late = [3, 4]
        spill += sum((padd(0, r, treg(r, 0)) + padd(1, r, treg(r, 0)) for r in range(3)), []) + presum[36:]
    else:
        slots[base + FS].sal.append(lambda A: A.wait_vm(("pl", 1)))
        ps = put_valu(base + FS, presum)
        if SPLIT:
            assert ps <= wfirst(10) + 5 * wsp(10) + 6 + 18, ps
            reduce(3, [0, 1, 2], 10); late = [3, 4]
    slots[base + CFG.get("fbp", 118)].mem.append(lambda A: A.vmem(ld_fb, "fb"))
    nw = 2 if CH > 1 else 0
    for n in range(nw): slots[NS2 - 2 + n].mem.append(red_write(11, n)) if n == 0 else None
    nw = min(nw, 1)
    emit_slots(A, slots)
    stamp(A, "mmdone")
    def own(A):
        for n in range(nw, 6): red_write(11, n)(A)
        sp = [x for x in spill if isinstance(x, str)]
        k = min(len(sp), 24)
        emit_list(A, [sp[:k]])
        A.e("s_waitcnt lgkmcnt(0)")
        A.e("s_barrier")
        for r in late:
            for src in range(4): red_read(3, r, src)(A)
        emit_list(A, [sp[k:]])
    if SPLIT: A.wait_lds(("rr", 3, 2))
    A.e("s_waitcnt vmcnt(0)")
    A.e(cmp_f); A.e("s_nop 4"); A.e("s_cbranch_vccnz L_fb_late")
    emit_ops(A, ploads(2))
    own(A)
    LATE = Asm()
    LATE.label("L_fb_late")
    LATE.e(ld_fb)
    own(LATE)
    LATE.e("s_waitcnt vmcnt(0)")
    check(LATE, "fb", cmp_f)
    emit_ops(LATE, ploads(2))
    LATE.e("s_branch L_fb_join")
    A.label("L_fb_join")
    stamp(A, "pready")
    for r in late:
        A.wait_lds(("rr", 3, r))
        for l in red_adds(r): A.e(l)
        t = treg(r, 0)
        for e in range(4): A.e(f"v_add_f32 {v(t+e)}, {v(t+e)}, {v(vSUM+4*r+e)}")
    for r in range(5):
        t = treg(r, 0)
        if r % 2 == 0: A.e(f"s_waitcnt vmcnt({2 - r // 2 + r})")
        for l in padd(2, r, t): A.e(l)
        A.e(f"v_cvt_pk_bf16_f32 {v(t)}, {v(t)}, {v(t+1)}")
        A.e(f"v_cvt_pk_bf16_f32 {v(t+1)}, {v(t+2)}, {v(t+3)}")
        A.e(f"buffer_store_dwordx2 {v(t,2)}, {v(vOUT+r)}, {s(sOUT,4)}, 0 offen{CFG.get('nt_out', '')}")
    A.label("L_fin")
    if CFG["stamps"]:
        A.e("s_waitcnt vmcnt(0)")
        stamp(A, "end")
        A.e(f"s_lshl_b32 {s(sT0)}, s2, 2")
        A.e(f"s_add_u32 {s(sT0)}, {s(sT0)}, {s(sW)}")
        A.e(f"s_lshl_b32 {s(sT0)}, {s(sT0)}, 8")
        A.e(f"s_cmp_eq_u32 {s(sT0)}, 0")
        A.e(f"s_cselect_b32 {s(sT1)}, 0, 256")
        A.e(f"s_add_u32 {s(sT0)}, {s(sT0)}, {WS_STAMP}")
        A.e(f"v_lshlrev_b32 v2, 2, {v(vLANE)}")
        A.e(f"buffer_store_dword v63, v2, {s(sWS,4)}, {s(sT0)} offen")
        A.e(f"s_add_u32 {s(sT0)}, {s(sT0)}, 0x40000")
        A.e(f"buffer_store_dword v62, v2, {s(sWS,4)}, {s(sT0)} offen")
        A.e("v_readlane_b32 s64, v63, 0")
        A.e(f"s_mov_b32 {s(sDBG+2)}, 64")
        A.e("s_nop 0")
        A.e("v_subrev_u32 v61, s64, v63")
        A.e(f"buffer_store_dword v61, v2, {s(sDBG,4)}, {s(sT1)} offen")
    if CFG.get("probe"):
        A.e(f"v_readlane_b32 s66, v63, {STAMPS.index(CFG['probe'])}")
        A.e(f"v_readlane_b32 s67, v63, {STAMPS.index(CFG.get('probe0', 'start'))}")
        A.e("v_readlane_b32 s68, v63, 0")
        A.e("s_nop 3")
        A.e("s_sub_u32 s66, s66, s67")
        A.e("s_min_u32 s66, s66, 6000")
        A.e("s_cmp_ge_u32 s2, 240")
        A.e("s_cselect_b32 s66, 0, s66")
        A.e("s_add_u32 s66, s66, 7000")
        A.label("L_pad")
        A.e("s_memrealtime s[64:65]")
        A.e("s_waitcnt lgkmcnt(0)")
        A.e("s_sub_u32 s64, s64, s68")
        A.e("s_cmp_lt_u32 s64, s66")
        A.e("s_cbranch_scc1 L_pad")
    A.label("L_end")
    A.e("s_endpgm")
    spin(A, "fo", ld_fo, cmp_f)
    spin(A, "fo2", ld_fo2, cmp_f)
    spin(A, "fa", ld_fa, cmp_f)
    spin(A, "fb", ld_fb, cmp_f)
    A.lines += LATE.lines

def kernel():
    A = Asm()
    A.raw(f".globl {KNAME}\n.p2align 8\n.type {KNAME},@function\n{KNAME}:")
    setup(A)
    out = A.text(); fb = ""
    for nq in (4, 3):
        A = Asm()
        A.label(f"L_role_q{nq}")
        qproj(A, nq)
        stamp(A, "qdone")
        fb += attention(A, nq)
        fb += epilogue(A, nq)
        out += A.text()
        F = Asm(); fallback(F, nq)
        if nq == 3: dq_slow(F, "p"); dq_slow(F, "l"); dq_slow(F, "m")
        fb += F.text()
    A = Asm(); phase2(A)
    return out + A.text() + "L_code_end:\n" + fb + f".fill {CFG.get('pad', 64)}, 4, 0xbf800000\nL_text_end:\n"

hdr = open("standalone__mha_block_cached__near_ridge.s.ref").read().split("; Override launch")[0]
txt = hdr + "; @launch grid=(256,1,1) block=(256,1,1) lds=163840\n" \
          + '.amdgcn_target "amdgcn-amd-amdhsa--gfx950"\n.text\n' + kernel() \
          + '.section .rodata,"a"\n' + descriptor(KNAME)
open(sys.argv[1], "w").write(txt)
```

```python
import sys, struct, math
from asmlib import *

CFG = dict(nt_kv=" nt", nt_x="", stamps=False, qkorder="C", qchain=False, dither=True, qpi=True, common=True, split=True, smf=True, n7=24, half=False, defb=False, bst=0, bsp=6, pubb=110, D0=14, latesum=True, hold=2, holdpos=1, npre=4, nmid=0, pad=900, bgpre=True, clus=34, gchain=2, itst=False, rot="rot8l", touch="", mulh=4, mulb=2, rmask=7,
           kvq="0,0,0,0,8,8,12,12", kv7=8, pre=2, wo2early=True, woq="0,0,6,6,6,6,6,6", npoll=4, bl=8, pb=True, tag=False, prio=True, fline=True, tord=1, fwarm=2, pubA=15, early=True, lim0=45056, limr=14848, lim1=16384, lim1n=0, vth=18, midpoll=4, kvpos="end", vmw=36, spin=400000, fast=False, warm="v", D=11, wotouch="sl", restp=0, wl0=8, wl1=54, wostart=64, won1=144, won2=32, nt_wt="", nt_ol=" sc1", selft=False, x_nops=False, x_nored=False, x_nold=False, nt_st=" sc1")
for arg in sys.argv[2:]:
    k, val = arg.split("=")
    CFG[k] = {"True": True, "False": False}.get(val, int(val) if val.lstrip("-").isdigit() else val)
    if k.startswith("nt_"): CFG[k] = (" " + val.replace("+", " ")) if val not in ("", "none") else ""
KNAME = "standalone__mha_block_cached__near_ridge_kernel"

def f32hex(x): return "0x%08x" % struct.unpack("<I", struct.pack("<f", x))[0]
SCALE = math.log2(math.e) / math.sqrt(128.0)

SLOT = 16384
VRING = 5 * SLOT
def KPOS(n): return SLOT * ((n + 3) % 5)
def VPOS(n): return VRING + SLOT * ((n + 4) % 5)
WS0 = 0
XS0 = VRING
def XS(kc): return XS0 + 32768 * ((kc + 1) % 2)
def WS(kc): return WS0 + SLOT * (kc % 3)
WOW = 36864
OVF = 9 * SLOT
RSTR = 384; RHALF = 48 * RSTR
WS_O = 0
OM = 32768
FSH = CFG.get("fsh", 8)
WS_FLAG = 16 << 20
WS_PFLAG = WS_FLAG + (512 << 10)
WS_CENS = WS_FLAG + (1 << 20)
WS_PART = 20 << 20
WS_STAMP = 40 << 20
WS_SIZE = 48 << 20
sX, sWQ, sK, sV, sK1, sWS, sWO, sOUT, sDBG = 4, 8, 12, 16, 20, 24, 28, 32, 36
sW, sB, sH = 40, 41, 42
sT0, sT1, sT2, sT3 = 43, 44, 45, 46
sWQO = 47
sKOFF, sDK, sM4, sP, sQ = 48, 49, 50, 51, 52
sCNT, sW4K, sSECOND = 53, 54, 55
sSC = 56
sXB, sXE, sWB = 58, 59, 60
sOST = 61
sOLD = 62
sHG, sIDX = 63, 68
sCH = 70
sPO = 96
sPS = 3
sWOW = 69
sXE2 = 100
sLIM, sINC, sNEED, sVM = 58, 59, 60, 47
sOS = 80
sFL = 84
sOV = 86
sPL = 79
vLANE = 1
vKA = 2; vVA = 6; vVD = 14; vOO = 16; vONE = 20
vT = 24
vWA = 32; vXA = 208
vWD2 = 41
vWT = 44
vFW = 17
vRW = 19
vRR = 46
vOUT = 51
vNON = 56
vFO = 58
vFP = 59
vFA = 60
vGRP = 30
vXD = 192; vWD = 202
vS = 64; vP = 128; vC = 160; vQ = 192; vACC = 64
aO = 0; aK = 128; aV = 160; aL = 192
aQA = 128; aQB = 192

vIDX = 59
def sum_pairs(nq): return [0, 2] if nq == 4 else [0, 1]
def sum_op(pb, k, nq):
    return f"v_smfmac_f32_16x16x64_bf16 {a(aL + 4*k, 4)}, {v(vONE, 4)}, {v(pb + 4*sum_pairs(nq)[k], 8)}, {v(vIDX)}"
def sum_reg(qt, nq):
    k = min(qt // 2, 1)
    return k, aL + 4 * k + 2 * (qt - sum_pairs(nq)[k])

class Slot:
    def __init__(self, m=None):
        self.m = m; self.sal = []; self.mem = []; self.valu = []
def emit_slots(A, slots):
    for sl in slots:
        if sl.m: A.e(sl.m)
        for f in sl.sal + sl.mem + sl.valu:
            if isinstance(f, str): A.e(f)
            else: f(A)

class Op:
    def __init__(self, x, units=1, deps=(), name=None):
        self.x = x; self.units = units; self.deps = list(deps); self.name = name
def merge(A, M, V, X):
    pos = {}; cur = [0]
    def ready(o): return all(n in pos and cur[0] - pos[n] - 1 >= d for n, d in o.deps)
    def put(o):
        n0 = len(A.lines)
        if isinstance(o.x, str): A.e(o.x)
        else: o.x(A)
        cur[0] += 1 if len(A.lines) > n0 else 0
        if o.name: pos[o.name] = cur[0] - 1
    M, V, X = list(M), list(V), list(X)
    while M or V or X:
        did = False; budget = 2
        if M and ready(M[0]): put(M.pop(0)); did = True
        while X and ready(X[0]) and budget > 0:
            o = X.pop(0); put(o); budget -= o.units; did = True
            if o.units: break
        while V and ready(V[0]) and budget > 0:
            o = V.pop(0); put(o); budget -= o.units; did = True
        if not did:
            heads = [q[0] for q in (M, V, X) if q]
            assert any(all(n in pos for n, _ in o.deps) for o in heads), [(o.x, o.deps) for o in heads]
            A.e("s_nop 0"); cur[0] += 1

STAMPS = CFG["stlist"].split(",") if CFG.get("stlist") else ["start", "bm1", "b3", "qdone", "loop", "loopend", "pvdone", "barX", "barY", "oready", "p1", "p2", "p3", "mmdone", "pready", "end"]
def stamp(A, name):
    if not CFG["stamps"] or name not in STAMPS: return
    i = STAMPS.index(name)
    A.e("s_memrealtime s[64:65]")
    A.e("s_memtime s[66:67]")
    A.e("s_waitcnt lgkmcnt(0)")
    A.e(f"v_writelane_b32 v63, s64, {i}")
    A.e(f"v_writelane_b32 v63, s66, {32+i}")

def dma(A, voff, srd, soff, imm, tag, flag):
    A.vmem(f"buffer_load_dwordx4 {v(voff)}, {s(srd,4)}, {soff} offen offset:{imm}{flag} lds", tag)
def lines(fn):
    B = Asm(); fn(B); return [l.strip() for l in B.lines]

def emit_ops(A, ops):
    prev = None
    for kind, o in ops:
        if kind == "mem" and prev == "m0": A.e("s_nop 0")
        if isinstance(o, str): A.e(o)
        else: o(A)
        prev = "m0" if isinstance(o, str) and " m0," in o else kind
def place_ops(slots, positions, ops):
    pend = []; k = 0
    for kind, o in ops:
        if kind == "sal": pend.append(o)
        else:
            p = positions[k]; k += 1
            if pend:
                if k > 1 and positions[k-2] == p: slots[p].mem += pend + ["s_nop 0"]
                elif k > 1 and positions[k-2] == p - 1: slots[p-1].valu += pend
                elif len(pend) == 2 and not (k > 1 and positions[k-2] == p - 2): slots[p-2].sal.append(pend[0]); slots[p-1].sal.append(pend[1])
                else: slots[p-1].sal += pend
                pend = []
            slots[p].mem.append(o)
def nmem(ops): return sum(1 for k, _ in ops if k == "mem")
def split_ops(ops, counts):
    out = []; cur = []; k = 0; n = 0
    for o in ops:
        while k < len(counts) and n == counts[k]:
            out.append(cur); cur = []; n = 0; k += 1
        cur.append(o)
        if o[0] == "mem": n += 1
    out.append(cur)
    while len(out) < len(counts) + 1: out.append([])
    return out
def weave(A, fn, ops):
    B = Asm(); B.lds = A.lds; B.vm = A.vm
    fn(B)
    groups = []; cur = []
    for o in ops:
        cur.append(o)
        if o[0] == "mem": groups.append(cur); cur = []
    pos = [(k + 1) * len(B.lines) // (len(groups) + 1) for k in range(len(groups))]
    k = 0
    for i, l in enumerate(B.lines):
        while k < len(groups) and pos[k] == i:
            emit_ops(A, groups[k]); k += 1
        A.lines.append(l)

def kv_quarter(kind, m0, soffset, tag):
    srd = sK if kind == "K" else sV
    return [("sal", soffset), ("sal", m0)] + \
           [("mem", lambda A, i=i: dma(A, vVD + (i & 1), srd, s(sT3), 1024 * i, tag, CFG["nt_kv"])) for i in range(4)]
def kv_full(kind, n):
    ops = []
    for w in range(4):
        base = (KPOS(n) if kind == "K" else VPOS(n)) + 4096 * w
        ops += kv_quarter(kind, f"s_mov_b32 m0, {base}", f"s_mov_b32 {s(sT3)}, {n*SLOT + 4096*w}", (kind, n))
    return ops
def kv_own(kind, n):
    base = KPOS(n) if kind == "K" else VPOS(n)
    return kv_quarter(kind, f"s_add_u32 m0, {s(sW4K)}, {base}", f"s_add_u32 {s(sT3)}, {s(sW4K)}, {n*SLOT}", (kind, n))
REGION = ["p"]
def enc(n): return (n & 15) | ((n >> 4) << 22)
sSS = sX; sSO = sINC
def dq_prep():
    inc = CFG["bl"] * 512
    return [[f"s_bitcmp1_b32 {s(sQ)}, {inc.bit_length() - 1}"], [f"s_cselect_b64 {s(sSS,2)}, {s(sV,2)}, {s(sK1,2)}"],
            [f"s_cselect_b32 {s(sSS+2)}, {s(sV+2)}, {s(sK1+2)}"], [f"s_cselect_b32 {s(sSO)}, {VRING - inc}, 0"],
            [f"s_add_u32 m0, {s(sP)}, {s(sSO)}"], [f"s_andn2_b32 {s(sSO)}, {s(sQ)}, {inc}"]]
def dq_block(A):
    inc = CFG["bl"] * 512
    for g in range(CFG["bl"] // 4):
        if g:
            A.e("s_add_u32 m0, m0, 4096")
            A.e(f"s_add_u32 {s(sSO)}, {s(sSO)}, 4096")
        for i in range(4): dma(A, vVD + (i & 1), sSS, s(sSO), 1024 * i, "dq", CFG["nt_kv"])
    A.e(f"s_add_u32 {s(sQ)}, {s(sQ)}, {inc}")
    A.e(f"s_add_u32 {s(sP)}, {s(sP)}, {inc}")
def dq_pieces(name):
    def br(A):
        lab = f"L_dq_{REGION[0]}_{name}"
        A.e(f"s_cbranch_scc0 {lab}")
        dq_block(A)
        A.label(lab)
    return dq_prep() + [[f"s_getreg_b32 {s(sVM)}, hwreg(HW_REG_IB_STS, 0, 24)"], [f"s_and_b32 {s(sVM)}, {s(sVM)}, 0xc0000f"],
            [f"s_cmp_le_u32 {s(sVM)}, {enc(CFG.get('vthm', CFG['vth']) if name[0] == 'm' else 37 if name == 'slow' else CFG['vth'])}"], [f"s_cselect_b32 {s(sVM)}, {s(sLIM)}, 0"],
            [f"s_cmp_lt_u32 {s(sQ)}, {s(sVM)}"], [br],
            [f"s_cmp_eq_u32 {s(sP)}, {5*SLOT}"], [f"s_cselect_b32 {s(sP)}, 0, {s(sP)}"]]
def dq_landed():
    return [[f"s_getreg_b32 {s(sVM)}, hwreg(HW_REG_IB_STS, 0, 24)"], [f"s_lshr_b32 {s(sINC)}, {s(sVM)}, 22"],
            [f"s_and_b32 {s(sVM)}, {s(sVM)}, 15"], [f"s_lshl4_add_u32 {s(sVM)}, {s(sINC)}, {s(sVM)}"],
            [f"s_lshl_b32 {s(sVM)}, {s(sVM)}, 9"], [f"s_add_u32 {s(sVM)}, {s(sVM)}, {s(sNEED)}"],
            [f"s_cmp_le_u32 {s(sVM)}, {s(sQ)}"]]
def emit_list(A, L):
    for grp in L:
        for x in grp:
            if isinstance(x, str): A.e(x)
            else: x(A)
def dq_slow(A, reg):
    REGION[0] = reg
    A.label(f"L_dqwait_{reg}")
    emit_list(A, dq_pieces("slow"))
    emit_list(A, dq_landed())
    A.e(f"s_cbranch_scc0 L_dqwait_{reg}")
    A.e(f"s_branch L_dqok_{reg}")

def x_own(kc):
    ops = []
    for j in range(8):
        if j % 4 == 0: ops.append(("sal", f"s_add_u32 m0, {s(sXB)}, {XS(kc) + 1024*j}"))
        ops.append(("mem", lambda A, j=j: dma(A, vXD + j, sX, s(sCH + kc), 1024 * (j % 4), ("x", kc), CFG["nt_x"])))
    return ops
def x_extra(kc):
    ops = [("sal", f"s_add_u32 m0, {s(sXE)}, {XS(kc)}")]
    for j in range(2):
        ops.append(("mem", lambda A, j=j: dma(A, vXD + 8 + j, sX, s(sCH + kc), 1024 * j, ("xe", kc), CFG["nt_x"])))
    return ops
def wq_ops(kc):
    ops = [("sal", f"s_lshl_b32 {s(sWQO)}, {s(sCH + kc)}, 12")]
    for j in range(6):
        if j % 3 == 0: ops.append(("sal", f"s_add_u32 m0, {s(sWB)}, {WS(kc) + 1024*j}"))
        ops.append(("mem", lambda A, j=j: dma(A, vWD + j, sWQ, s(sWQO), 1024 * (j % 3), ("wq", kc), CFG["nt_x"])))
    return ops
def wo_group(m0, soffset, tag):
    return [("sal", soffset), ("sal", m0)] + \
           [("mem", lambda A, i=i: dma(A, vWD2 + i, sWO, s(sT3), 1024 * i, tag, CFG.get("nt_wo", ""))) for i in range(3)]

def srd(A, r, lo, hi, off, size):
    if off is None:
        A.e(f"s_mov_b32 {s(r)}, {lo}"); A.e(f"s_mov_b32 {s(r+1)}, {hi}")
    else:
        A.e(f"s_add_u32 {s(r)}, {lo}, {off}"); A.e(f"s_addc_u32 {s(r+1)}, {hi}, 0")
    A.e(size if " " in str(size) else f"s_mov_b32 {s(r+2)}, {size}")
    A.e(f"s_mov_b32 {s(r+3)}, 0x20000")

VM0 = []
def setup(A):
    A.e("s_cmp_ge_u32 s2, 256")
    A.e("s_cbranch_scc1 L_end")
    stamp(A, "start")
    for _ in range(CFG.get("x_sleep0", 0)): A.e("s_sleep 18")
    A.e("s_load_dwordx8 s[80:87], s[0:1], 0")
    A.e("s_load_dwordx8 s[88:95], s[0:1], 32")
    if CFG["warm"] == "s":
        A.e("s_getpc_b64 s[98:99]")
        A.label("L_pc")
        for k in range(1, CFG.get("wn", 8) + 1): A.e(f"s_load_dword s97, s[98:99], {128*k}")
    A.e(f"s_lshr_b32 {s(sIDX)}, s2, 3")
    if CFG["warm"] == "v":
        A.e("s_getpc_b64 s[98:99]")
        A.e(f"s_lshl_b32 s96, {s(sIDX)}, 11")
        A.e("v_lshl_add_u32 v62, v0, 3, s96")
        A.e("global_load_dword v61, v62, s[98:99]")
    A.e(f"v_and_b32 {v(vLANE)}, 63, v0")
    A.e(f"v_lshrrev_b32 {v(vT+6)}, 6, v0")
    A.e("s_nop 0")
    A.e(f"v_readfirstlane_b32 {s(sW)}, {v(vT+6)}")
    if CFG["warm"] == "s":
        A.e(f"s_lshl2_add_u32 s96, {s(sIDX)}, {s(sW)}")
        A.e("s_lshl_b32 s96, s96, 7")
        A.e("s_add_u32 s98, s98, s96")
        A.e("s_addc_u32 s99, s99, 0")
        for k in range(4): A.e(f"s_load_dword s97, s[98:99], {16384*k}")
    A.e(f"s_and_b32 {s(sB)}, s2, 1")
    A.e(f"s_and_b32 {s(sT2)}, {s(sIDX)}, 3")
    A.e(f"s_lshl2_add_u32 {s(sB)}, {s(sB)}, {s(sT2)}")
    A.e(f"s_bfe_u32 {s(sHG)}, s2, 0x20001")
    A.e(f"s_lshr_b32 {s(sT2)}, {s(sIDX)}, 2")
    A.e(f"s_lshl3_add_u32 {s(sH)}, {s(sHG)}, {s(sT2)}")
    A.e(f"v_lshrrev_b32 {v(vT)}, 4, {v(vLANE)}")
    A.e(f"v_and_b32 {v(vT+1)}, 15, {v(vLANE)}")
    if CFG["common"]:
        assert CFG["bgpre"]
        setup_wq_dma(A)
        setup_x_dma(A)
        chunk_order(A, [0])
        setup_srd_q(A)
        A.e(f"s_cmp_eq_u32 {s(sW)}, 3")
        A.e("s_cbranch_scc1 L_noload")
        first, held = split_ops(wq_ops(0) + x_own(0) + x_extra(0), [16 - CFG["hold"]])
        emit_ops(A, first)
        if CFG.get("tlbq"):
            A.e("s_branch L_noload1")
            A.label("L_noload")
            A.e(f"v_mul_u32_u24 v254, {9*8192}, {v(vLANE)}")
            A.e(f"buffer_load_dword v255, v254, {s(sWQ,4)}, 0 offen")
            A.label("L_noload1")
        else: A.label("L_noload")
        stamp(A, "iss0")
        chunk_order(A, range(1, 9))
        setup_kv(A)
        A.e("s_cmp_lg_u32 s2, 0")
        A.e("s_cbranch_scc1 L_notag")
        A.e(f"s_cmp_lg_u32 {s(sW)}, 3")
        A.e("s_cbranch_scc1 L_notag")
        n0 = len(A.vm); write_nonce(A); del A.vm[n0:]
        A.label("L_notag")
        if CFG.get("tlbq") == 2:
            A.e(f"s_cmp_lg_u32 {s(sW)}, 3")
            A.e("s_cbranch_scc1 L_notlb")
            A.e(f"v_lshlrev_b32 v254, 15, {v(vLANE)}")
            A.e(f"buffer_load_dword v255, v254, {s(sK,4)}, 0 offen nt")
            A.e(f"buffer_load_dword v255, v254, {s(sV,4)}, 0 offen nt")
            A.label("L_notlb")
        parts = [setup_q, setup_p2, attn_init, lambda A: zero_acc(A, 4)][:CFG["npre"]]
        for k, f in enumerate(parts):
            if k == CFG["holdpos"] and held:
                A.e(f"s_cmp_eq_u32 {s(sW)}, 3")
                A.e("s_cbranch_scc1 L_noload2")
                emit_ops(A, held)
                A.label("L_noload2")
            f(A)
        VM0[:] = A.vm
    A.e(f"s_cmp_eq_u32 {s(sW)}, 3")
    A.e("s_cbranch_scc1 L_role_q3")

def chunk_order(A, steps):
    if CFG["rot"] == "lock":
        for t in steps: A.e(f"s_movk_i32 {s(sCH+t)}, {128*t}")
        return
    pos = {"rot8": 0, "rot8l": 8}[CFG["rot"]]
    if any(t != pos for t in steps):
        A.e(f"s_mul_i32 {s(sT0)}, {s(sH)}, {CFG['mulh']}")
        A.e(f"s_mul_i32 {s(sT1)}, {s(sB)}, {CFG['mulb']}")
        A.e(f"s_add_u32 {s(sT0)}, {s(sT0)}, {s(sT1)}")
        A.e(f"s_and_b32 {s(sT0)}, {s(sT0)}, {CFG['rmask']}")
        A.e(f"s_lshl_b32 {s(sT0)}, {s(sT0)}, 7")
    for t in steps:
        if t == pos: A.e(f"s_movk_i32 {s(sCH+t)}, {0 if CFG.get('common0') else 1024}"); continue
        A.e(f"s_add_u32 {s(sCH+t)}, {s(sT0)}, {128*(t - (1 if t > pos else 0))}")
        A.e(f"s_and_b32 {s(sCH+t)}, {s(sCH+t)}, 1023")
        if CFG.get("common0"): A.e(f"s_add_u32 {s(sCH+t)}, {s(sCH+t)}, 128")

def setup_wq_dma(A):
    t0, t1, t2, t3, t4, t5, tw = [v(vT + i) for i in range(7)]
    A.e(f"v_mad_u32_u24 {t2}, {tw}, 20, {t0}")
    A.e(f"v_lshlrev_b32 {t3}, {2 if CFG['qpi'] else 1}, {t0}")
    A.e(f"v_xor_b32 {t3}, {t3}, {t1}")
    if CFG["qpi"]:
        A.e(f"v_lshlrev_b32 {t5}, 13, {t2}")
        A.e(f"v_lshl_add_u32 {v(vWD)}, {t3}, 4, {t5}")
        for j in range(1, 6): A.e(f"v_add_u32 {v(vWD+j)}, {32768*j - 1024*(j%3)}, {v(vWD)}")
    else:
      for j in range(6):
        if j: A.e(f"v_add_u32 {t2}, 4, {t2}")
        A.e(f"v_and_b32 {t4}, 8, {t2}")
        A.e(f"v_xor_b32 {t4}, {t4}, {t3}")
        A.e(f"v_lshlrev_b32 {t5}, 13, {t2}")
        A.e(f"v_lshl_add_u32 {v(vWD+j)}, {t4}, 4, {t5}")
        if j % 3: A.e(f"v_subrev_u32 {v(vWD+j)}, {1024*(j%3)}, {v(vWD+j)}")
    A.e(f"s_mul_i32 {s(sWB)}, {s(sW)}, {5*1024}")
def setup_x_dma(A):
    L = v(vLANE); t0, t1, t2, t3, t4, t5, tw = [v(vT + i) for i in range(7)]
    A.e(f"v_lshrrev_b32 {t2}, 3, {L}")
    A.e(f"v_mul_u32_u24 {t2}, 1152, {t2}")
    A.e(f"v_and_b32 {t3}, 7, {L}")
    A.e(f"v_xor_b32 {t3}, {t3}, {t0}")
    A.e(f"v_lshl_add_u32 {t3}, {t3}, 4, {t2}")
    A.e(f"s_mul_i32 {s(sT0)}, {s(sW)}, {8*9216}")
    A.e(f"s_mul_i32 {s(sT1)}, {s(sW)}, {2*9216}")
    A.e(f"v_add_u32 {t2}, {s(sT1)}, {t3}")
    A.e(f"v_add_u32 {t3}, {s(sT0)}, {t3}")
    A.e(f"v_xor_b32 {t4}, 64, {t3}")
    A.e(f"v_xor_b32 {t5}, 64, {t2}")
    for j in range(8): A.e(f"v_add_u32 {v(vXD+j)}, {j*9216 - 1024*(j%4)}, {t3 if j%2==0 else t4}")
    for j in range(2): A.e(f"v_add_u32 {v(vXD+8+j)}, {(24+j)*9216 - 1024*j}, {t2 if j%2==0 else t5}")
    A.e(f"s_lshl_b32 {s(sXE)}, {s(sW)}, 11")
    A.e(f"s_add_u32 {s(sXE)}, {s(sXE)}, {24*1024}")
def setup_srd_q(A):
    A.e(f"s_lshl_b32 {s(sXB)}, {s(sW)}, 13")
    A.e(f"s_lshl_b32 {s(sT0)}, {s(sH)}, 8")
    A.e(f"s_mul_i32 {s(sT1)}, {s(sB)}, 276480")
    A.e("s_waitcnt lgkmcnt(0)")
    stamp(A, "karg")
    srd(A, sWQ, "s86", "s87", s(sT0), f"s_sub_u32 {s(sWQ+2)}, {576*8192}, {s(sT0)}")
    srd(A, sX, "s80", "s81", s(sT1), 276480)

def setup_kv(A):
    t0, t1, t2, t3 = [v(vT + i) for i in range(4)]
    A.e(f"v_lshlrev_b32 {t2}, 1, {t0}")
    A.e(f"v_xor_b32 {t2}, {t2}, {t1}")
    A.e(f"v_lshlrev_b32 {t2}, 4, {t2}")
    A.e(f"v_lshl_add_u32 {v(vVD)}, {t0}, 8, {t2}")
    A.e(f"v_xor_b32 {v(vVD+1)}, 128, {v(vVD)}")
    A.e(f"s_lshl_b32 {s(sW4K)}, {s(sW)}, 12")
    A.e(f"s_lshl_b32 {s(sT0)}, {s(sB)}, 5")
    A.e(f"s_add_u32 {s(sT0)}, {s(sT0)}, {s(sH)}")
    A.e(f"s_lshl_b32 {s(sT0)}, {s(sT0)}, 18")
    srd(A, sK, "s82", "s83", s(sT0), 262144)
    srd(A, sV, "s84", "s85", s(sT0), 262144)
    srd(A, sK1, s(sK), s(sK+1), SLOT, 262144 - SLOT)
    srd(A, sDBG, "s92", "s93", None, 256)

def setup_q(A):
    L = v(vLANE); t0, t1, t2, t3, t4, tw, tv = [v(vT + i) for i in range(7)]
    A.e(f"v_lshrrev_b32 {t0}, 4, {L}")
    A.e(f"v_and_b32 {t1}, 15, {L}")
    A.e(f"v_lshrrev_b32 {t2}, 1, {t1}")
    A.e(f"v_xor_b32 {t2}, {t2}, {t0}")
    A.e(f"v_lshlrev_b32 {t3}, 4, {t2}")
    A.e(f"v_lshl_add_u32 {t3}, {t1}, 7, {t3}")
    A.e(f"s_sub_u32 {s(sT0)}, {s(sB)}, {s(sHG)}")
    A.e(f"s_sub_u32 {s(sT0)}, {s(sT0)}, 1")
    A.e(f"s_and_b32 {s(sT0)}, {s(sT0)}, 3")
    A.e(f"s_sub_u32 {s(sT0)}, 3, {s(sT0)}")
    A.e(f"s_lshl_b32 {s(sT0)}, {s(sT0)}, 2")
    A.e(f"s_lshr_b32 {s(sT0)}, {0x32140321 if CFG['prio'] else 0x43210000}, {s(sT0) if CFG['prio'] else 12}")
    for sl in range(4):
        r = s(sOS + sl)
        A.e(f"s_add_u32 {r}, {s(sW)}, {4*sl}")
        A.e(f"s_min_u32 {r}, {r}, 14")
        A.e(f"s_mul_i32 {s(sT1)}, {r}, 11")
        A.e(f"s_lshr_b32 {s(sT1)}, {s(sT1)}, 5")
        A.e(f"s_lshl_b32 {s(sT2)}, {s(sT1)}, 2")
        A.e(f"s_lshr_b32 {s(sT2)}, {s(sT0)}, {s(sT2)}")
        A.e(f"s_and_b32 {s(sT2)}, {s(sT2)}, 15")
        A.e(f"s_sub_u32 {s(sT2)}, {s(sT2)}, {s(sT1)}")
        A.e(f"s_mul_i32 {s(sT2)}, {s(sT2)}, 3")
        A.e(f"s_add_u32 {r}, {r}, {s(sT2)}")
        A.e(f"s_lshl_b32 {s(sT1)}, {r}, 11")
        A.e(f"s_add_u32 {s(sT1)}, {s(sT1)}, {XS0}")
        A.e(f"v_add_u32 {v(vXA+2*sl)}, {s(sT1)}, {t3}")
        A.e(f"v_xor_b32 {v(vXA+2*sl+1)}, 64, {v(vXA+2*sl)}")
    A.e(f"v_lshrrev_b32 {t2}, 2, {t1}")
    A.e(f"v_and_b32 {t3}, 1, {t0}")
    A.e(f"v_lshl_add_u32 {t3}, {t3}, 2, {t2}")
    A.e(f"v_and_b32 {t4}, 3, {L}")
    A.e(f"v_lshlrev_b32 {t4}, {4 if CFG['qpi'] else 3}, {t4}")
    A.e(f"v_lshl_add_u32 {tw}, {t0}, 3, {t2}")
    A.e(f"v_lshl_add_u32 {tw}, {tw}, 8, {t4}")
    if WS0: A.e(f"v_add_u32 {tw}, {WS0}, {tw}")
    if CFG["qpi"]:
        for u in range(4):
            A.e(f"v_xor_b32 {tv}, {u}, {t2}")
            A.e(f"v_lshl_add_u32 {v(vWA+2*u)}, {tv}, 6, {tw}")
            A.e(f"v_add_u32 {v(vWA+2*u+1)}, 8, {v(vWA+2*u)}")
    else:
        for t in range(8):
            A.e(f"v_xor_b32 {tv}, {t}, {t3}")
            A.e(f"v_lshl_add_u32 {v(vWA+t)}, {tv}, 5, {tw}")

def attn_init(A):
    L = v(vLANE); t0, t1, t2, t3, t4, tw, tv = [v(vT + i) for i in range(7)]
    A.e(f"v_lshrrev_b32 {t0}, 4, {L}")
    A.e(f"v_and_b32 {t1}, 15, {L}")
    A.e(f"v_and_b32 {t2}, 7, {t1}")
    A.e(f"v_lshlrev_b32 {t2}, 1, {t2}")
    A.e(f"v_xor_b32 {t2}, {t0}, {t2}")
    A.e(f"v_lshlrev_b32 {t4}, 8, {t1}")
    A.e(f"v_add_u32 {t4}, {KPOS(0)}, {t4}")
    for s_ in range(4):
        A.e(f"v_xor_b32 {t3}, {4*s_}, {t2}")
        A.e(f"v_lshl_add_u32 {v(vKA+s_)}, {t3}, 4, {t4}")
    A.e(f"v_lshrrev_b32 {t2}, 2, {t1}")
    A.e(f"v_and_b32 {t3}, 1, {t0}")
    A.e(f"v_lshl_add_u32 {t3}, {t3}, 2, {t2}")
    A.e(f"v_and_b32 {t4}, 3, {L}")
    A.e(f"v_cmp_eq_u32 vcc, 0, {t4}")
    A.e(f"v_lshlrev_b32 {t4}, 3, {t4}")
    A.e(f"v_lshl_add_u32 {tw}, {t0}, 2, {t2}")
    A.e(f"v_lshl_add_u32 {tw}, {tw}, 8, {t4}")
    A.e(f"v_add_u32 {tw}, {VPOS(-1)}, {tw}")
    for t in range(8):
        A.e(f"v_xor_b32 {tv}, {t}, {t3}")
        A.e(f"v_lshl_add_u32 {v(vVA+t)}, {tv}, 5, {tw}")
    A.e(f"v_mov_b32 {t3}, 0x3f803f80")
    if CFG["smf"]:
        A.e(f"v_xor_b32 {t2}, {t0}, {t1}")
        A.e(f"v_and_b32 {t2}, 2, {t2}")
        A.e(f"v_cmp_eq_u32 vcc, 0, {t2}")
        A.e(f"v_and_b32 {t2}, 1, {L}")
        A.e(f"v_mul_u32_u24 {t2}, 0xaaaa, {t2}")
        A.e(f"v_add_u32 {v(vIDX)}, 0x4444, {t2}")
    for i in range(4): A.e(f"v_cndmask_b32 {v(vONE+i)}, 0, {t3}, vcc")
    A.e(f"s_mov_b32 {s(sKOFF)}, {KPOS(0)}")
    A.e(f"s_mov_b32 {s(sM4)}, {-4*SLOT}")
    A.e(f"s_mov_b32 {s(sP)}, {KPOS(CFG['pre'] + 1)}")
    A.e(f"s_mov_b32 {s(sQ)}, {CFG['pre']*SLOT}")

def zero_acc(A, nq):
    for r in range(32 * nq): A.e(f"v_accvgpr_write_b32 {a(aO+r)}, 0")
def zero_l(A, nq):
    for r in range(8 if CFG["smf"] else 4 * nq): A.e(f"v_accvgpr_write_b32 {a(aL+r)}, 0")

def setup_p2(A):
    L = v(vLANE); t0, t1, t2, t3, t4, t5, t6 = [v(vT + i) for i in range(7)]
    T0, T1, T2 = s(sT0), s(sT1), s(sT2)
    srd(A, sWS, "s94", "s95", (CFG["wsoff"] << 20) if CFG.get("wsoff") else None, WS_SIZE)
    srd(A, sOUT, "s90", "s91", None, 1920 * 1152)
    A.e(f"s_mov_b32 {s(sSC)}, {f32hex(SCALE)}")
    A.e(f"s_mov_b32 {s(sSC+1)}, {f32hex(SCALE)}")
    A.e(f"s_mov_b32 {s(sSECOND)}, 0")
    A.e(f"v_lshlrev_b32 {v(vOO)}, 4, {L}")
    A.e(f"s_and_b32 {T2}, s2, 7")
    A.e(f"s_mul_i32 {s(sOLD)}, {T2}, {60*OM}")
    A.e(f"s_and_b32 {T0}, {s(sB)}, 3")
    A.e(f"s_mul_i32 {T0}, {T0}, 15")
    A.e(f"s_lshl_b32 {T0}, {T0}, 15")
    A.e(f"s_and_b32 {T1}, {s(sH)}, 7")
    A.e(f"s_lshl_b32 {T1}, {T1}, 12")
    A.e(f"s_add_u32 {T0}, {T0}, {T1}")
    A.e(f"s_add_u32 {T0}, {T0}, {s(sOLD)}")
    for sl in range(4):
        A.e(f"s_lshl_b32 {s(sOS+sl)}, {s(sOS+sl)}, 15")
        A.e(f"s_add_u32 {s(sOS+sl)}, {s(sOS+sl)}, {T0}")
    A.e(f"s_cmp_eq_u32 {s(sW)}, 3")
    A.e(f"s_cselect_b32 {s(sOS+3)}, {WS_SIZE}, {s(sOS+3)}")
    A.e(f"s_lshl_b32 {T0}, {s(sB)}, 5")
    A.e(f"s_add_u32 {T0}, {T0}, {s(sH)}")
    A.e(f"s_lshl2_add_u32 {T0}, {T0}, {s(sW)}")
    A.e(f"s_lshl_b32 {T0}, {T0}, {FSH}")
    A.e(f"s_add_u32 {s(sFL)}, {T0}, {WS_FLAG}")
    A.e(f"s_add_u32 {s(sFL+1)}, {T0}, {WS_FLAG + (1 << (FSH - 1))}")
    A.e(f"s_min_u32 {T0}, {s(sIDX)}, 29")
    A.e(f"s_mul_i32 {T1}, {T0}, 43")
    A.e(f"s_lshr_b32 {T1}, {T1}, 8")
    A.e(f"s_mul_i32 {T2}, {T1}, 6")
    A.e(f"s_sub_u32 {T0}, {T0}, {T2}")
    A.e(f"s_mul_i32 {T0}, {T0}, 192")
    A.e(f"s_mul_i32 {T1}, {T1}, 12")
    A.e(f"s_lshl_b32 {T2}, {T1}, 15")
    A.e(f"s_add_u32 {s(sOLD)}, {s(sOLD)}, {T2}")
    A.e(f"s_and_b32 {T2}, s2, 1")
    A.e(f"s_mul_i32 {T2}, {T2}, 60")
    A.e(f"s_add_u32 {T1}, {T1}, {T2}")
    A.e(f"s_mul_i32 {T2}, {s(sHG)}, {1024*1152}")
    A.e(f"s_add_u32 {T2}, {T2}, {T0}")
    srd(A, sWO, "s88", "s89", T2, f"s_sub_u32 {s(sWO+2)}, {4096*1152}, {T2}")
    A.e(f"s_lshl_b32 {T2}, {s(sW)}, 13")
    A.e(f"s_add_u32 {s(sOLD)}, {s(sOLD)}, {T2}")
    for q in range(4):
        A.e(f"s_add_u32 {T2}, {s(sHG)}, {q+1}")
        A.e(f"s_and_b32 {T2}, {T2}, 3")
        A.e(f"s_mul_i32 {T2}, {T2}, {3*OM}")
        A.e(f"s_add_u32 {s(sPO+q)}, {T2}, {s(sOLD)}")
    A.e(f"v_and_b32 {t0}, 2, {L}")
    A.e(f"v_mul_u32_u24 {t0}, 5, {t0}")
    A.e(f"v_add_u32 {t0}, {T1}, {t0}")
    A.e(f"v_mul_u32_u24 {t0}, 137, {t0}")
    A.e(f"v_lshrrev_b32 {t0}, 11, {t0}")
    A.e(f"v_and_b32 {t1}, 1, {L}")
    A.e(f"v_lshl_add_u32 {t0}, {t0}, 5, {t1}")
    A.e(f"s_lshl_b32 {T2}, {s(sHG)}, 3")
    A.e(f"s_lshl_b32 {s(sPS)}, {s(sW)}, 1")
    A.e(f"s_add_u32 {T2}, {T2}, {s(sPS)}")
    A.e(f"v_add_u32 {t0}, {T2}, {t0}")
    A.e(f"v_lshlrev_b32 {t0}, {FSH + 2}, {t0}")
    A.e(f"v_and_b32 {t1}, 12, {L}")
    A.e(f"v_lshl_add_u32 {t0}, {t1}, {FSH - 2}, {t0}")
    A.e(f"v_add_u32 {v(vFO)}, {WS_FLAG}, {t0}")
    A.e(f"s_mul_i32 {T2}, {s(sHG)}, 3")
    A.e(f"s_add_u32 {T1}, {T1}, {T2}")
    A.e(f"s_mul_i32 {T1}, {T1}, {16*1152}")
    A.e(f"s_add_u32 {T1}, {T1}, {T0}")
    A.e(f"s_lshl_b32 {s(sPS)}, {s(sW)}, 2")
    for r in range(5):
        A.e(f"v_add_u32 {t0}, {64*r}, {L}")
        if r == 4: A.e(f"v_min_u32 {t0}, 287, {t0}")
        A.e(f"v_mul_u32_u24 {t1}, 171, {t0}")
        A.e(f"v_lshrrev_b32 {t1}, 12, {t1}")
        A.e(f"v_mul_u32_u24 {t2}, 24, {t1}")
        A.e(f"v_sub_u32 {t2}, {t0}, {t2}")
        A.e(f"v_and_b32 {t4}, 12, {t1}")
        A.e(f"v_mad_u32_u24 {t1}, {t4}, 3, {t1}")
        A.e(f"v_add_u32 {t1}, {s(sPS)}, {t1}")
        A.e(f"v_and_b32 {t4}, 7, {t1}")
        A.e(f"v_xor_b32 {t4}, {t4}, {t2}")
        A.e(f"v_mul_u32_u24 {t3}, {RSTR}, {t1}")
        A.e(f"v_lshl_add_u32 {v(vRR+r)}, {t4}, 4, {t3}")
        A.e(f"v_mul_u32_u24 {t3}, 1152, {t1}")
        A.e(f"v_lshl_add_u32 {t3}, {t2}, 3, {t3}")
        A.e(f"v_add_u32 {v(vOUT+r)}, {T1}, {t3}")
    A.e(f"v_cmp_gt_u32 vcc, 32, {L}")
    A.e(f"v_mov_b32 {t0}, 0x7ffffff0")
    A.e(f"v_lshrrev_b32 {t1}, 4, {L}")
    A.e(f"v_cndmask_b32 {v(vOUT+4)}, {t0}, {v(vOUT+4)}, vcc")
    A.e(f"v_and_b32 {t2}, 15, {L}")
    A.e(f"s_mul_i32 {T2}, {s(sW)}, {WOW}")
    A.e(f"v_mul_u32_u24 {t3}, {RSTR}, {t2}")
    A.e(f"v_and_b32 {t4}, 7, {t2}")
    A.e(f"v_xor_b32 {t4}, {t4}, {t1}")
    A.e(f"v_lshl_add_u32 {t3}, {t4}, 4, {t3}")
    A.e(f"v_add_u32 {v(vRW)}, {T2}, {t3}")
    A.e(f"v_xor_b32 {v(vRW-1)}, 64, {v(vRW)}")
    if CFG["fline"]:
        A.e(f"v_lshlrev_b32 {v(vFW)}, 26, {t1}")
        A.e(f"v_lshl_add_u32 {v(vFW)}, {t2}, 3, {v(vFW)}")
    else: A.e(f"v_lshlrev_b32 {v(vFW)}, 26, {L}")
    A.e(f"s_mul_i32 {s(sWOW)}, {s(sW)}, {WOW}")
    A.e(f"v_lshrrev_b32 {t3}, 2, {L}")
    A.e(f"v_and_b32 {t4}, 3, {L}")
    A.e(f"v_mul_u32_u24 {t5}, 192, {t3}")
    A.e(f"v_lshl_add_u32 {t5}, {t4}, 3, {t5}")
    A.e(f"v_and_b32 {t6}, 1, {t1}")
    A.e(f"v_lshl_add_u32 {t5}, {t6}, 5, {t5}")
    A.e(f"v_add_u32 {v(vWT)}, {s(sWOW)}, {t5}")
    A.e(f"v_xor_b32 {v(vWT+1)}, 32, {v(vWT)}")
    for i in range(3):
        A.e(f"v_add_u32 {t3}, {64*i}, {L}")
        A.e(f"v_mul_u32_u24 {t4}, 171, {t3}")
        A.e(f"v_lshrrev_b32 {t4}, 11, {t4}")
        A.e(f"v_mul_u32_u24 {t5}, 12, {t4}")
        A.e(f"v_sub_u32 {t3}, {t3}, {t5}")
        A.e(f"v_lshrrev_b32 {t5}, 1, {t4}")
        A.e(f"v_and_b32 {t5}, 2, {t5}")
        A.e(f"v_xor_b32 {t3}, {t3}, {t5}")
        A.e(f"v_mul_u32_u24 {t4}, 1152, {t4}")
        A.e(f"v_lshl_add_u32 {v(vWD2+i)}, {t3}, 4, {t4}")
        if i: A.e(f"v_subrev_u32 {v(vWD2+i)}, {1024*i}, {v(vWD2+i)}")
    A.e(f"s_lshl_b32 {T2}, s2, 11")
    A.e(f"s_add_u32 {T2}, {T2}, {WS_PFLAG}")
    A.e(f"s_lshl_b32 {s(sPL)}, {s(sW)}, 9")
    A.e(f"s_add_u32 {T2}, {T2}, {s(sPL)}")
    A.e(f"v_and_b32 {t0}, 1, {L}")
    A.e(f"v_lshlrev_b32 {t0}, 7, {t0}")
    A.e(f"v_add_u32 {v(vFA)}, {T2}, {t0}")
    A.e(f"s_mul_i32 {T2}, s2, {12*5120}")
    A.e(f"s_mul_i32 {s(sPL)}, {s(sW)}, 5120")
    A.e(f"s_add_u32 {s(sPL)}, {s(sPL)}, {T2}")
    A.e(f"s_add_u32 {s(sPL)}, {s(sPL)}, {WS_PART}")

def prewarm_flags(A):
    if not CFG["fwarm"]: return
    A.e(f"v_mov_b32 {v(vT)}, 0"); A.e(f"v_mov_b32 {v(vT+1)}, 0")
    for k in range(2): A.vmem(f"buffer_store_dwordx2 {v(vT,2)}, {v(vFW)}, {s(sWS,4)}, {s(sFL+k)} offen sc1", "fw")
    if CFG["fwarm"] == 2:
        for q in range(3):
            for x in [f"s_add_u32 {s(sT0)}, {s(sHG)}, {q+1}", f"s_and_b32 {s(sT0)}, {s(sT0)}, 3", f"s_sub_u32 {s(sT0)}, {s(sT0)}, {s(sHG)}",
                      f"s_lshl1_add_u32 {s(sT0)}, {s(sT0)}, s2", f"s_lshl2_add_u32 {s(sT0)}, {s(sT0)}, {s(sW)}", f"s_lshl_b32 {s(sT0)}, {s(sT0)}, 9",
                      f"s_add_u32 {s(sT0)}, {s(sT0)}, {WS_PFLAG + 128*q}"]: A.e(x)
            A.vmem(f"buffer_store_dwordx2 {v(vT,2)}, {v(vFW)}, {s(sWS,4)}, {s(sT0)} offen sc1", "fw")
LD_NON = f"buffer_load_dwordx2 {v(vNON,2)}, off, {s(sDBG,4)}, 0 offset:128 sc1"
CMP_NON = f"v_cmp_eq_u64 vcc, 0, {v(vNON,2)}"
def census(A):
    if CFG["fast"]:
        A.wait_vm("non0")
        A.e(f"v_xor_b32 {v(vNON+1)}, {s(sXE2)}, {v(vNON+1)}")
        A.e(f"s_lshl_b32 {s(sT0)}, {s(sIDX)}, 3")
        A.e(f"s_add_u32 {s(sT0)}, {s(sT0)}, {s(sXE2+1)}")
        A.e(f"v_lshlrev_b32 v254, 26, {v(vLANE)}")
        A.vmem(f"buffer_store_dwordx2 {v(vNON,2)}, v254, {s(sWS,4)}, {s(sT0)} offen sc1", "cens")
    if CFG["wotouch"] == "pro": wotouch(A)
    if CFG["wotouch"] == "spread": wotouch(A, 0)
    if CFG["wotouch"] == "sl":
        wo_slice(A)
        for k in range(6): A.e(f"v_add_u32 v{244+k}, {6144*k}, v254")
    if CFG["wotouch"] == "it":
        wo_slice(A)
        A.e(f"v_add_u32 v253, {36864 - 3072}, v254")
    if CFG["wotouch"] == "ad":
        wo_slice(A)
        A.e(f"s_mov_b32 {s(sT2)}, {36 // CFG.get('adn', 4)}")
    if CFG["wotouch"] in ("dyn", "end"):
        wo_slice(A)
        A.e(f"s_mov_b32 {s(sT2)}, {16*SLOT - 2}")
def wo_slice(A, flip=1):
    A.e(f"s_mul_i32 {s(sT0)}, {s(sHG)}, {1024*1152}")
    if CFG["half"]:
        A.e(f"s_and_b32 {s(sT1)}, s2, 1")
        if flip: A.e(f"s_xor_b32 {s(sT1)}, {s(sT1)}, 1")
        A.e(f"s_mul_i32 {s(sT1)}, {s(sT1)}, 18432")
        A.e(f"s_add_u32 {s(sT0)}, {s(sT0)}, {s(sT1)}")
    A.e(f"s_mul_i32 {s(sT1)}, {s(sIDX)}, 36864")
    A.e(f"s_add_u32 {s(sT0)}, {s(sT0)}, {s(sT1)}")
    A.e(f"s_add_u32 {s(sT0)}, {s(sT0)}, 4096")
    A.e(f"v_add_u32 v254, {s(sT0)}, {v(vOO)}")
def wotouch(A, n=5):
    A.e(f"s_mul_i32 {s(sT0)}, {s(sHG)}, {1024*1152}")
    A.e(f"s_mul_i32 {s(sT1)}, {s(sIDX)}, 36864")
    A.e(f"s_add_u32 {s(sT0)}, {s(sT0)}, {s(sT1)}")
    A.e(f"v_lshlrev_b32 v254, 7, {v(vLANE)}")
    A.e(f"v_add_u32 v254, {s(sT0)}, v254")
    for k in range(n):
        A.vmem(f"global_load_dword v255, v254, s[88:89]{CFG['nt_wt']}", "wot")
        if k < 4: A.e(f"v_add_u32 v254, {8192 if k < 3 else 4096}, v254")

def write_nonce(A):
    A.e("s_memrealtime s[64:65]")
    A.e("s_cmp_eq_u32 s2, 0")
    A.e(f"s_cselect_b32 {s(sT0)}, 0, 256")
    A.e(f"v_lshlrev_b32 {v(vT+2)}, 8, {v(vLANE)}")
    A.e("s_waitcnt lgkmcnt(0)")
    A.e(f"v_mov_b32 {v(vT)}, s64")
    A.e(f"v_mov_b32 {v(vT+1)}, s65")
    A.vmem(f"buffer_store_dwordx2 {v(vT,2)}, {v(vT+2)}, {s(sDBG,4)}, {s(sT0)} offen offset:128 sc1", "nonce")
    if CFG["warm"] is True:
        A.e("s_getpc_b64 s[64:65]")
        A.label("L_pc")
        A.e(f"s_sub_u32 s64, s64, L_pc-{KNAME}")
        A.e("s_subb_u32 s65, s65, 0")
        A.e(f"s_and_b32 {s(sT0)}, {s(sIDX)}, 7")
        A.e(f"s_lshl_b32 {s(sT0)}, {s(sT0)}, 13")
        A.e(f"v_lshlrev_b32 {v(vT+3)}, 7, {v(vLANE)}")
        A.e(f"v_add_u32 {v(vT+3)}, {s(sT0)}, {v(vT+3)}")
        A.e(f"v_min_u32 {v(vT+3)}, L_code_end-{KNAME}-4, {v(vT+3)}")
        A.vmem(f"global_load_dword v255, {v(vT+3)}, s[64:65]", "warm")

def touch_setup(A):
    L = v(vLANE)
    A.e(f"v_and_b32 v252, 31, {L}")
    A.e(f"v_lshrrev_b32 v253, 1, v252")
    A.e(f"v_min_u32 v252, 29, v252")
    A.e(f"s_and_b32 {s(sT0)}, {s(sH)}, 7")
    A.e(f"s_mul_i32 {s(sT0)}, {s(sT0)}, 30")
    A.e(f"v_add_u32 v252, {s(sT0)}, v252")
    A.e(f"v_mul_u32_u24 v252, 1152, v252")
    A.e(f"v_lshrrev_b32 v251, 5, {L}")
    A.e(f"v_lshl_add_u32 v252, v251, 7, v252")
    A.e(f"v_lshl_add_u32 v253, v251, 6, v253")
    A.e(f"s_and_b32 {s(sT0)}, {s(sB)}, 3")
    A.e(f"s_lshl_b32 {s(sT0)}, {s(sT0)}, 4")
    A.e(f"v_add_u32 v253, {s(sT0)}, v253")
    A.e(f"v_lshlrev_b32 v253, 13, v253")
    A.e(f"v_and_b32 v251, 1, {L}")
    A.e(f"v_lshl_add_u32 v253, v251, 7, v253")
def touch_ops(c):
    return [("mem", lambda A: A.vmem(f"buffer_load_dword v255, v252, {s(sX,4)}, 0 offen offset:{128*c}{CFG['nt_x']}", "touch")),
            ("sal", f"s_mov_b32 {s(sT3)}, {64*8192*c}"),
            ("mem", lambda A: A.vmem(f"buffer_load_dword v255, v253, {s(sWQ,4)}, {s(sT3)} offen{CFG['nt_x']}", "touch"))]

def qproj(A, nq):
    main = nq == 4
    tch = [[int(c) for c in x.split("+") if c] for x in str(CFG["touch"]).split(",")] + [[]] * 10
    if CFG["common"]:
        if main: A.vm += VM0
    else:
        if main:
            setup_wq_dma(A)
            chunk_order(A, [0])
            setup_srd_q(A)
            emit_ops(A, wq_ops(0))
            setup_x_dma(A)
            emit_ops(A, x_own(0) + x_extra(0))
            stamp(A, "iss0")
            chunk_order(A, range(1, 9))
        else:
            if any(tch): touch_setup(A)
            setup_srd_q(A)
            for c in tch[0]: emit_ops(A, touch_ops(c))
        setup_kv(A)
        if not main: write_nonce(A)
        setup_q(A)
        if not main or CFG["bgpre"]: setup_p2(A); attn_init(A); zero_acc(A, nq)
    stamp(A, "setq")
    if main: emit_ops(A, wq_ops(1) + x_own(1) + x_extra(1))
    stamp(A, "iss1")
    rest_bg = [setup_q, setup_p2, attn_init, lambda A: zero_acc(A, nq)][CFG["npre"]:] if CFG["common"] else []
    nb = len(rest_bg) if not main else min(CFG["nmid"], len(rest_bg))
    for f in rest_bg[:nb]: f(A)
    kvq = [int(x) for x in str(CFG["kvq"]).split(",")]
    assert len(kvq) == 8 and sum(kvq) <= 48
    kvp = split_ops(kv_full("K", 0) + kv_full("K", 1) + kv_full("V", 0), kvq)
    if not main: emit_ops(A, kvp[0])
    woq = [int(x) for x in str(CFG["woq"]).split(",")]
    wops = []
    for k in range(36):
        wops.append(("mem", lambda A, k=k: A.vmem(f"global_load_dwordx4 v[240:243], v254, s[88:89] offset:{1024*(k%6) - 4096}", "wot")))
        if k % 6 == 5: wops.append(("sal", "v_add_u32 v254, 6144, v254"))
    if CFG["half"]: wops = split_ops(wops, [18])[0]
    wop = split_ops(wops, woq[:-1]) if (CFG["wotouch"] == "q" or CFG["half"]) else [[]] * 8
    if not main and (CFG["wotouch"] == "q" or CFG["half"]): wo_slice(A, 0)
    NS = 16 * nq; BAR = 12 * nq; LEAD = NS - BAR
    slots = [Slot() for _ in range(LEAD + 9 * NS)]
    def G(kc, i): return LEAD + kc * NS + i
    for kc in range(9):
        bb = aQB + 32 * ((kc + 1) % 2)
        QC = CFG["qchain"]
        for i in range(NS):
            if QC: t, qt, s2 = i // (2 * nq), (i // 2) % nq, i % 2; f = 2 * t + s2
            else: f, qt = i // nq, i % nq; s2, t = f // 8, f % 8
            d = v(vACC + 32 * qt + 4 * t, 4)
            slots[G(kc, i)].m = mfma(d, a(aQA + 4 * f, 4), a(bb + 8 * qt + 4 * s2, 4), d if (kc or s2) else "0")
        def rdA(f, j, kc=kc):
            s2, t = (f % 2, f // 2) if QC else (f // 8, f % 8)
            off = WS(kc) - WS0 + (32 * s2 + 4 * j) * 256
            return lambda A: A.ds(f"ds_read_b64_tr_b16 {a(aQA + 4*f + 2*j, 2)}, {v(vWA+t)} offset:{off}", ("A", kc, f, j))
        def rdB(qt, s2, kc=kc, bb=bb):
            off = XS(kc) - XS0
            return lambda A: A.ds(f"ds_read_b128 {a(bb + 8*qt + 4*s2, 4)}, {v(vXA+2*qt+s2)} offset:{off}", ("B", kc, qt, s2))
        head = [rdB(0, 0), rdA(0, 0), rdA(0, 1)] + [rdB(q, 0) for q in range(1, nq)] + [rdA(1, 0), rdA(1, 1), rdA(2, 0), rdA(2, 1)] \
             + [rdB(q, 1) for q in range(nq)] + [rdA(3, 0), rdA(3, 1)]
        if QC: head = [rdB(0, 0), rdA(0, 0), rdA(0, 1), rdB(0, 1), rdA(1, 0), rdA(1, 1)] + [rdB(q, z) for q in range(1, nq) for z in range(2)] \
                    + [rdA(2, 0), rdA(2, 1), rdA(3, 0), rdA(3, 1)]
        p0 = G(kc, -LEAD)
        for k, r in enumerate(head): slots[p0 + k * LEAD // len(head)].mem.append(r)
        tail = [rdA(f, j) for f in range(4, 16) for j in range(2)]
        span = BAR - 2 * nq if kc < 8 else 6 * nq
        for k, r in enumerate(tail): slots[G(kc, k * span // len(tail))].mem.append(r)
        if QC:
            slots[G(kc, -1)].valu.append(lambda A, kc=kc: A.wait_lds(("B", kc, 1, 1)))
            slots[G(kc, 3)].sal.append(lambda A, kc=kc: A.wait_lds(("B", kc, nq - 1, 1)))
            for t in range(1, 7):
                slots[G(kc, 2 * t * nq - 1)].sal.append(lambda A, tag=("A", kc, 2 * t + 1, 1): A.wait_lds(tag))
        else:
            slots[G(kc, -1)].valu.append(lambda A, kc=kc: A.wait_lds(("B", kc, nq - 1, 0)))
            for f in range(1, 13):
                slots[G(kc, f * nq - 1)].sal.append(lambda A, tag=("A", kc, f, 1): A.wait_lds(tag))
        def bar(A, kc=kc):
            if main and kc == 1 and not CFG["bgpre"]:
                def bgw(A): attn_init(A); zero_acc(A, nq)
                setup_p2(A)
                if CFG.get("bgweave", False): weave(A, bgw, wq_ops(2) + x_own(2) + x_extra(2))
                else: bgw(A); emit_ops(A, wq_ops(2) + x_own(2) + x_extra(2))
            if kc == 1:
                for f in rest_bg[nb:]: f(A)
            if main: A.wait_vm(("xe", kc))
            A.e("s_waitcnt lgkmcnt(0)")
            A.e("s_barrier")
            stamp(A, "bm1" if kc == 0 else f"b{kc-1}")
        slots[p0].sal.insert(0, bar)
        if kc <= 7: slots[G(kc, 3 * nq - 1)].sal.append("s_barrier")
        if main:
            early = []; late = []
            k0 = 0 if CFG["bgpre"] else 1
            if k0 <= kc <= 6: early += wq_ops(kc + 2)
            if k0 <= kc <= 6: late += x_own(kc + 2) + x_extra(kc + 2)
            pe = [p0 + 2 + 4 * k for k in range(nmem(early))]
            pl = [G(kc, 3 * nq + 1 + 3 * k) for k in range(nmem(late))]
            if CFG["clus"]:
                c0, c1 = CFG.get("cl0", 4), CFG["clus"]
                pe = [G(kc, c0 + k * (13 - c0) // 6) for k in range(nmem(early))]
                pl = [G(kc, 14 + k * (c1 - 14) // 10) for k in range(nmem(late))]
            place_ops(slots, pe, early); place_ops(slots, pl, late)
        else:
            if kc <= 6:
                ops = sum((touch_ops(c) for c in tch[kc + 1]), []) + kvp[kc + 1] + wop[kc + 1]
                ne = nmem(ops)
                if CFG["kvpos"] == "end": pe = [G(kc, BAR - 2 - ne + k) for k in range(ne)]
                elif CFG["kvpos"] == "mid": pe = [G(kc, 3 * nq + 2 + k) for k in range(ne)]
                elif CFG["kvpos"] == "even": pe = [p0 + 2 + k * (NS - 4) // ne for k in range(ne)]
                else: pe = [p0 + 2 + k for k in range(ne)]
                place_ops(slots, pe, ops)
            elif kc == 7 and nmem(kvp[8]):
                allr = kvp[8] + (kv_full("K", 2) + kv_full("V", 1) if CFG["pre"] == 2 else [])
                n7 = min(CFG["n7"], nmem(allr)); assert n7 <= nmem(kvp[8]) + 16 and nmem(allr) >= 32
                late78 = split_ops(allr, [n7])
                place_ops(slots, [p0 + 2 + k * (NS - 4) // n7 for k in range(n7)], late78[0])
            elif kc == 7:
                place_ops(slots, [p0 + 2 + k for k in range(16)], kv_full("K", 2))
                n7 = CFG["kv7"]
                late78 = split_ops(kv_full("V", 1) + (kv_full("V", 2) + kv_full("K", 3) if CFG["pre"] == 3 else []), [n7])
                if n7: place_ops(slots, [G(7, 3 * nq + 2) + k * (BAR - 3 * nq - 4) // n7 for k in range(n7)], late78[0])
            else:
                ne = nmem(late78[1])
                if ne: place_ops(slots, [p0 + 2 + k * (12 * nq - 4) // ne for k in range(ne)], late78[1])
    def bar8(A):
        if not main: A.wait_vm(("K", 0))
        A.e("s_waitcnt lgkmcnt(0)")
        A.e("s_barrier")
    p8 = G(8, 8 * nq - 1)
    slots[p8].sal = [bar8]
    slots[G(7, -LEAD + 1)].mem.append(lambda A: A.vmem(LD_NON, "nonce"))
    for k, l in enumerate(lines(lambda B: zero_l(B, nq))): slots[G(8, 2 + k)].valu.append(l)
    emit_slots(A, slots[:p8 + 1])
    lim = CFG["lim0"]
    assert lim <= 4 * SLOT and CFG["lim1"] <= SLOT
    for n in range(14):
        assert lim >= (n + 1) * SLOT, n
        lim = min(lim + (CFG["lim1"] if n < CFG["lim1n"] else CFG["limr"]), (n + 5) * SLOT)
    if not main:
        if CFG["dither"]:
            A.e(f"s_and_b32 {s(sLIM)}, {s(sIDX)}, 7")
            A.e(f"s_lshl_b32 {s(sLIM)}, {s(sLIM)}, 9")
            A.e(f"s_add_u32 {s(sLIM)}, {s(sLIM)}, {CFG['lim0']}")
            assert CFG["lim0"] + 4096 <= 4 * SLOT
        else: A.e(f"s_mov_b32 {s(sLIM)}, {CFG['lim0']}")
        A.e(f"s_mov_b32 {s(sNEED)}, {SLOT}")

def prologue(A, nq, slots, P):
    M = []; V = []; X = []
    bb = aQB + 32
    QC = CFG["qchain"]
    for qt in range(nq):
        for k in range(8):
            t, s2 = (4 + k // 2, k % 2) if QC else (k, 1)
            d = v(vACC + 32 * qt + 4 * t, 4)
            M.append(Op(mfma(d, a(aQA + 32 + 4 * k, 4), a(bb + 8 * qt + 4 * s2, 4), d), name=("qp", qt, t) if s2 else None))
    for f in range(8): X.append(Op(k_read(0, f)))
    X.append(Op(lambda A: A.wait_lds(("K", 7)), 0, deps=[(("pk", 1), 0)], name="k0"))
    for f in range(8):
        kt, s_ = f // 4, f % 4
        X.append(Op(lambda A, f=f, kt=kt, s_=s_: A.ds(f"ds_read_b128 {a(aV+4*f,4)}, {v(vKA+s_)} offset:{8192+4096*kt}", ("K1", f)),
                    deps=[(("qp", nq - 1, 7), 0)]))
    def conv(qt):
        if qt:
            for j in range(16):
                r = v(vACC + 32 * qt + 2 * j, 2)
                V.append(Op(f"v_pk_mul_f32 {r}, {r}, {s(sSC,2)}", deps=[(("qp", nq - 1, 7), 8)], name=("pk", qt) if j == 15 else None))
        for u in range(4):
            src = vACC + 32 * qt + 8 * u; dst = vQ + 16 * qt + 4 * u
            if qt == 0:
                for j in range(8): V.append(Op(f"v_mul_f32 {v(src+j)}, {s(sSC)}, {v(src+j)}", deps=[(("qp", qt, 2*u + j//4), 8)] if (u >= 2 or not QC) else []))
            for j in range(4): V.append(Op(f"v_cvt_pk_bf16_f32 {v(dst+j)}, {v(src+2*j)}, {v(src+2*j+1)}", name=("cv", qt) if (CFG["qpi"] and (u, j) == (3, 3)) else ("c", qt, u, j)))
        for k, sw in enumerate(("v_permlane32_swap_b32", "v_permlane16_swap_b32") if not CFG["qpi"] else ()):
            for u in range(4):
                dst = vQ + 16 * qt + 4 * u
                for j in range(2):
                    V.append(Op(f"{sw} {v(dst+j)}, {v(dst+j+2)}", 2, deps=[(("c", qt, u, 3), 2)], name=("cv", qt) if (k, u, j) == (1, 3, 1) else None))
    def qk(T, qt, kreg, c0, deps):
        for kt in range(2):
            for s_ in range(4):
                d = v(vS + 32 * T + 8 * qt + 4 * kt, 4)
                M.append(Op(mfma(d, a(kreg + 4 * (4 * kt + s_), 4), v(vQ + 16 * qt + 4 * s_, 4), d if s_ else c0), deps=deps, name=("qk", T, qt, kt) if s_ == 3 else None))
    def rowmax(qt):
        b = vS + 8 * qt; m = vT + qt; t = vT + 4
        V.append(Op(f"v_max3_f32 {v(m)}, {v(b)}, {v(b+1)}, {v(b+2)}", deps=[(("qk", 0, qt, 1), 8)]))
        V.append(Op(f"v_max3_f32 {v(t)}, {v(b+3)}, {v(b+4)}, {v(b+5)}"))
        V.append(Op(f"v_max3_f32 {v(m)}, {v(m)}, {v(b+6)}, {v(b+7)}"))
        V.append(Op(f"v_max_f32 {v(m)}, {v(m)}, {v(t)}"))
        for k, sw in enumerate(("v_permlane32_swap_b32", "v_permlane16_swap_b32")):
            V.append(Op(f"v_mov_b32 {v(t)}, {v(m)}", name=("mv", qt, k)))
            V.append(Op(f"{sw} {v(t)}, {v(m)}", 2, deps=[(("mv", qt, k), 2)]))
            V.append(Op(f"v_max_f32 {v(m)}, {v(m)}, {v(t)}"))
        for e in range(8): V.append(Op(f"v_sub_f32 {v(b+e)}, {v(b+e)}, {v(m)}"))
    def setc(qt):
        for e in range(4): V.append(Op(f"v_sub_f32 {v(vC+4*qt+e)}, 0, {v(vT+qt)}", name=("C", qt) if e == 3 else None))
    for qt in range(nq):
        conv(qt)
        qk(0, qt, aK, "0", [(("cv", qt), 2), ("k0", 0)] + ([(("pk", qt + 1), 0)] if qt + 1 < nq else []))
        if qt: rowmax(qt - 1)
    for qt in range(nq - 1): setc(qt)
    X.append(Op(lambda A: A.wait_lds(("K1", 7)), 0, deps=[(("cv", nq - 1), 0)], name="k1"))
    gen = [x for sl in slots[:2 * P] for x in sl.valu if isinstance(x, str) and x.startswith(("v_exp", "v_cvt"))]
    for k in range(len(gen) - 1):
        if gen[k].startswith("v_cvt") and k % 3 == 2: gen[k], gen[k + 1] = gen[k + 1], gen[k]
    def soft(lst):
        for x in lst:
            if x.startswith("v_exp"):
                r = int(x.split()[1][1:-1])
                V.append(Op(x, 2, deps=[(("qk", 1, 0, 0), 8)] if r >= vS + 32 else [], name=("e", r)))
            else: V.append(Op(x, deps=[(("e", int(x.split()[3][1:])), 1)]))
    soft(gen[:12])
    rowmax(nq - 1); setc(nq - 1)
    for qt in range(nq): qk(1, qt, aV, v(vC + 4 * qt, 4), [(("C", qt), 2), ("k1", 0)])
    X.append(Op(f"s_cmp_eq_u32 {s(sKOFF)}, {4*SLOT}", 0)); X.append(Op(f"s_cselect_b32 {s(sDK)}, {s(sM4)}, {SLOT}", 0))
    X.append(Op(f"s_add_u32 {s(sKOFF)}, {s(sKOFF)}, {s(sDK)}", 1, name="ring"))
    for i in range(12): V.append(Op(f"v_add_u32 {v(vKA+i)}, {s(sDK)}, {v(vKA+i)}", deps=[("ring", 0)], name=("addr", i)))
    soft(gen[12:])
    def bar0(A):
        if nq == 3:
            emit_list(A, dq_landed())
            A.e("s_cbranch_scc0 L_dqwait_m"); A.label("L_dqok_m")
        A.e("s_barrier")
        if nq == 3:
            A.e(f"s_add_u32 {s(sNEED)}, {s(sNEED)}, {SLOT}"); A.e(f"s_add_u32 {s(sLIM)}, {s(sLIM)}, {CFG['lim1'] if CFG['lim1n'] else min(CFG['limr'], SLOT)}")
    X.append(Op(bar0, 1, deps=[(("qk", 0, nq - 1, 1), 0), (("addr", 3), 0)]))
    rd = [x for sl in slots[P:2 * P] for x in sl.mem]
    for k, x in enumerate(rd): X.append(Op(x, deps=[(("qk", 1, nq - 1, 1), 0), (("addr", 11), 0)] if k >= 8 else []))
    X.append(Op(lambda A: A.wait_lds(("K", 7)), 0, deps=[(("e", vS + 33), 0)]))
    if nq == 3:
        n = CFG["midpoll"]
        for k in range(n): V.insert((n - k) * len(V) // (n + 1), Op(lambda A, k=k: emit_list(A, dq_pieces(f"m{k}")), 2))
    if nq == 4 and CFG["wotouch"] == "mid":
        pre = [f"s_mul_i32 {s(sT0)}, {s(sHG)}, {1024*1152}", f"s_mul_i32 {s(sT1)}, {s(sIDX)}, 36864", f"s_add_u32 {s(sT0)}, {s(sT0)}, {s(sT1)}",
               f"s_mul_i32 {s(sT1)}, {s(sW)}, 12288", f"s_add_u32 {s(sT0)}, {s(sT0)}, {s(sT1)}", f"s_add_u32 {s(sT0)}, {s(sT0)}, 4096",
               f"v_add_u32 v32, {s(sT0)}, {v(vOO)}", "v_add_u32 v33, 6144, v32"]
        for x in pre: A.e(x)
        n0 = len(V)
        for k in range(12):
            V.insert((12 - k) * n0 // 13, Op(lambda A, k=k: A.vmem(f"global_load_dwordx4 v[36:39], v{32 + k // 6}, s[88:89] offset:{1024*(k%6) - 4096}", "wot")))
    REGION[0] = "m"
    merge(A, M, V, X)

def qconvert(A, nq):
    A.e("s_nop 7")
    for qt in range(nq):
        for u in range(4):
            src = vACC + 32 * qt + 8 * u; dst = vQ + 16 * qt + 4 * u
            for j in range(4): A.e(f"v_pk_mul_f32 {v(src+2*j,2)}, {v(src+2*j,2)}, {s(sSC,2)}")
            for j in range(4): A.e(f"v_cvt_pk_bf16_f32 {v(dst+j)}, {v(src+2*j)}, {v(src+2*j+1)}")
        for sw in ("v_permlane32_swap_b32", "v_permlane16_swap_b32"):
            for u in range(4):
                dst = vQ + 16 * qt + 4 * u
                A.e(f"{sw} {v(dst)}, {v(dst+2)}")
                A.e(f"{sw} {v(dst+1)}, {v(dst+3)}")

def k_read(T, f):
    kt, s_ = f // 4, f % 4
    off = 8192 * (T % 2) + 4096 * kt
    return lambda A: A.ds(f"ds_read_b128 {a(aK+4*f,4)}, {v(vKA+s_)} offset:{off}", ("K", f))
def v_read(T, i):
    t, j = i // 2, i % 2
    off = 8192 * (T % 2) + 4096 * j
    return lambda A: A.ds(f"ds_read_b64_tr_b16 {a(aV+4*t+2*j,2)}, {v(vVA+t)} offset:{off}", ("V", i))
def qk_list(T, nq, czero=False):
    if CFG["qkorder"] == "A": order = [(kt, s_, qt) for kt in range(2) for s_ in range(4) for qt in range(nq)]
    else: order = [(kt, s_, qt) for qt in range(nq) for kt in range(2) for s_ in range(4)]
    out = []
    for kt, s_, qt in order:
        d = v(vS + 32 * (T % 2) + 8 * qt + 4 * kt, 4)
        c = d if s_ else ("0" if czero else v(vC + 4 * qt, 4))
        out.append(mfma(d, a(aK + 4 * (4 * kt + s_), 4), v(vQ + 16 * qt + 4 * s_, 4), c))
    return out
def crosslane_max(A, regs, tmp):
    for sw in ("v_permlane32_swap_b32", "v_permlane16_swap_b32"):
        for i, r in enumerate(regs): A.e(f"v_mov_b32 {v(tmp+i)}, {v(r)}")
        A.e("s_nop 1")
        for i, r in enumerate(regs): A.e(f"{sw} {v(tmp+i)}, {v(r)}")
        A.e("s_nop 1")
        for i, r in enumerate(regs): A.e(f"v_max_f32 {v(r)}, {v(r)}, {v(tmp+i)}")
def first_tile(A, nq):
    A.e("s_waitcnt lgkmcnt(0)")
    A.e("s_nop 0")
    for m in qk_list(0, nq, czero=True): A.e(m)
    A.e("s_nop 7")
    for qt in range(nq):
        b = vS + 8 * qt; c = vC + 4 * qt
        A.e(f"v_max3_f32 {v(c)}, {v(b)}, {v(b+1)}, {v(b+2)}")
        A.e(f"v_max3_f32 {v(c+1)}, {v(b+3)}, {v(b+4)}, {v(b+5)}")
        A.e(f"v_max3_f32 {v(c)}, {v(c)}, {v(b+6)}, {v(b+7)}")
        A.e(f"v_max_f32 {v(c)}, {v(c)}, {v(c+1)}")
    crosslane_max(A, [vC + 4 * qt for qt in range(nq)], vT)
    for qt in range(nq):
        b = vS + 8 * qt; c = vC + 4 * qt
        for e in range(8): A.e(f"v_sub_f32 {v(b+e)}, {v(b+e)}, {v(c)}")
        for e in (3, 2, 1, 0): A.e(f"v_sub_f32 {v(c+e)}, 0, {v(c)}")

WO3 = []
NLOOP = {4: 15, 3: 13}
def attn_slots(nq):
    SMF = CFG["smf"]
    P = 16 * nq + 2 if SMF else 17 * nq; NT = 34
    slots = [Slot() for _ in range(NT * P)]
    E = [2 * e - 4 for e in range(8 * nq)]
    Em = set(x % P for x in E)
    others = [j for j in range(P) if j not in Em]
    BARP = 8 * nq - 2
    aft = [j for j in others if j > BARP]
    kpos = aft[:8]
    seq = aft[12 if nq == 4 else 8:] + [j + P for j in others if j < BARP]
    vpos = [x for x in seq if x % 2 == 1][:16] if nq == 4 else seq[:16]
    assert vpos[-1] + 5 <= P + BARP, vpos
    peel = 2 * (NLOOP[nq] + 1) * P
    unit = 0
    for T in range(NT):
        g = T * P
        if T < 32:
            for i, m in enumerate(qk_list(T, nq)): slots[g + i].m = m
        if 0 < T <= 32: slots[g - 1].sal.append(lambda A: A.wait_lds(("K", 7)))
        Tp = T - 2
        if 0 <= Tp < 32:
            pb = vP + 16 * (Tp % 2); k = 8 * nq
            ms = []
            for t in range(8):
                for qt in range(nq):
                    d = a(aO + 32 * qt + 4 * t, 4)
                    ms.append(mfma(d, a(aV + 4 * t, 4), v(pb + 4 * qt, 4), d))
            if SMF: ms.insert(1, sum_op(pb, 0, nq)); ms.insert(3, sum_op(pb, 1, nq))
            else: ms += [mfma(a(aL + 4 * qt, 4), v(vONE, 4), v(pb + 4 * qt, 4), a(aL + 4 * qt, 4)) for qt in range(nq)]
            for m in ms: slots[g + k].m = m; k += 1
            assert all(vpos[2 * t] > 8 * nq + 2 + nq * (t + 1) - 1 for t in range(8))
            for i in range(16): slots[g - P + vpos[i]].mem.append(v_read(Tp, i))
            slots[g + BARP].sal.append(lambda A: A.wait_lds(("V", 15)))
        Ts = T - 1
        if 0 <= Ts < 32:
            sb = vS + 32 * (Ts % 2); pb = vP + 16 * (Ts % 2)
            for e in range(8 * nq):
                slots[g + E[e]].valu.append(f"v_exp_f32 {v(sb+e)}, {v(sb+e)}")
                if e % 2: slots[g + E[e] + 1].valu.append(f"v_cvt_pk_bf16_f32 {v(pb+e//2)}, {v(sb+e-1)}, {v(sb+e)}")
        if T < 32:
            for f in range(8): slots[g + kpos[f]].mem.append(k_read(T + 1, f))
        if T < 32 and T % 2 == 1:
            n = T // 2
            if nq == 3:
                if g < peel:
                    for k, grp in enumerate(dq_landed()): slots[g + BARP - 7 + k].sal += grp
                    def chk(A):
                        A.e(f"s_cbranch_scc0 L_dqwait_{REGION[0]}")
                        A.label(f"L_dqok_{REGION[0]}")
                    slots[g + BARP].sal.append(chk)
                    slots[g + BARP + 1].sal += [f"s_cmp_lt_u32 {s(sNEED)}, {(CFG['lim1n'] + 1) * SLOT}", f"s_cselect_b32 {s(sVM)}, {(CFG['limr'] - CFG['lim1']) // 512}, 0"]
                    slots[g + BARP + 2].sal += [f"s_lshl_b32 {s(sVM)}, {s(sVM)}, 9", f"s_sub_u32 {s(sLIM)}, {s(sLIM)}, {s(sVM)}"]
                    slots[g + BARP + 3].sal += [f"s_add_u32 {s(sLIM)}, {s(sLIM)}, {CFG['limr']}", f"s_add_u32 {s(sVM)}, {s(sNEED)}, {4*SLOT}"]
                    slots[g + BARP + 4].sal += [f"s_min_u32 {s(sLIM)}, {s(sLIM)}, {s(sVM)}", f"s_min_u32 {s(sLIM)}, {s(sLIM)}, {16*SLOT}",
                                                f"s_add_u32 {s(sNEED)}, {s(sNEED)}, {SLOT}"]
                else: slots[g + BARP].sal.append(lambda A, n=n: A.wait_vm(("u", 8 * (n - 3) - 1)))
            slots[g + BARP].sal.append("s_barrier")
            slots[g].sal += [f"s_cmp_eq_u32 {s(sKOFF)}, {4*SLOT}", f"s_cselect_b32 {s(sDK)}, {s(sM4)}, {SLOT}"]
            slots[g + 1].sal.append(f"s_add_u32 {s(sKOFF)}, {s(sKOFF)}, {s(sDK)}")
            cv = set((x + 1) % P for k, x in enumerate(E) if k % 2)
            free = [j for j in others if j not in cv]
            kfree = [j for j in free if 2 < j < kpos[0]][:4]
            for i in range(4): slots[g + kfree[i]].valu.append(f"v_add_u32 {v(vKA+i)}, {s(sDK)}, {v(vKA+i)}")
            vfree = [j for j in free if vpos[-1] - P < j < vpos[0] and j not in kfree]
            while len(vfree) < 8: vfree = sorted(vfree + vfree[:8 - len(vfree)])
            for i in range(8): slots[g + vfree[i]].valu.append(f"v_add_u32 {v(vVA+i)}, {s(sDK)}, {v(vVA+i)}")
            if nq == 3:
                PP = {2: [78, 132], 3: [78, 110, 140], 4: [78, 106, 132, 156], 5: [78, 105, 122, 139, 156]}[CFG["npoll"]]
                if SMF: PP = {4: [77, 104, 129, 153]}[CFG["npoll"]]
                for u, pp in enumerate(PP):
                    p = g - P + pp
                    if p + 11 > peel + CFG["restp"] and p >= peel: break
                    pc = dq_pieces(f"{u}")
                    pc = [pc[0] + pc[1], pc[2] + pc[3], pc[4] + pc[5]] + pc[6:]
                    assert not any((p + k) % (2 * P) in (0, 1, 2, P, P + 1, 2 * P - 3, 2 * P - 2, 2 * P - 1) for k in range(len(pc)))
                    assert p + len(pc) <= g + 2 * P + BARP - 7 and not any(isinstance(x, str) for k in range(len(pc)) for x in slots[p + k].sal), (u, p - g)
                    for k, grp in enumerate(pc): slots[p + k].sal += grp
    if nq == 3:
        freeat = {0: 12, 1: 13, 2: 14, 3: 15, 4: 11, 5: 12, 6: 13, 7: 14, 8: 15}
        byb = {13: [], 14: [], 15: []}
        for gidx in range(48):
            w, gi = gidx // 12, gidx % 12
            fr = max(13, freeat[gidx * 3072 // SLOT], freeat[(gidx * 3072 + 3071) // SLOT])
            byb[fr] += wo_group(f"s_mov_b32 m0, {gidx*3072}", f"s_mov_b32 {s(sT3)}, {(256*w + 16*gi)*1152}", "wo1")
        b14 = 29 * P + BARP; b15 = 31 * P + BARP
        if CFG["wotouch"] == "sl":
            wops = []
            NWL = 18 if CFG["half"] else 36
            for k in range(NWL):
                wops.append(("mem", lambda A, k=k: A.vmem(f"global_load_dwordx4 v[240:243], v{244 + k // 6}, s[88:89] offset:{1024*(k%6) - 4096}", "wot")))
            w0, w1 = CFG.get("wl0", 2), CFG.get("wl1", 50)
            place_ops(slots, [peel + w0 + k * (w1 - w0) // NWL for k in range(NWL)], wops)
        cand = [p for p in range(peel + CFG["wostart"], b15 - 1)]
        n13 = nmem(byb[13]); n1 = min(CFG["won1"], n13 + nmem(byb[14])); n2 = 144 - n1
        o1, o2, o3 = split_ops(byb[13] + byb[14] + byb[15], [n1, n2])
        pos = [cand[k * len(cand) // n1] for k in range(n1)]
        assert n1 <= n13 or pos[n13] > b14 + 2
        if not CFG.get("x_nowo1"): place_ops(slots, pos, o1)
        room = 32 * P - 1 - (b15 + 2)
        place_ops(slots, [b15 + 2 + k * room // n2 for k in range(n2)], o2)
        WO3[:] = o3
    return slots, P

def fix_nomfma(slots):
    for sl in slots:
        if sl.m is None and (sl.valu or sl.mem): sl.sal.insert(0, "s_nop 0")

def attention(A, nq):
    R = f"q{nq}"
    slots, P = attn_slots(nq)
    prologue(A, nq, slots, P)
    F = Asm()
    F.label(f"L_attn_{R}")
    for i in range(8 * nq): slots[i].m = None
    pro = slots[8 * nq:2 * P]; fix_nomfma(pro)
    for sl in slots[:8 * nq]:
        for f in sl.mem: f(F)
    REGION[0] = "p"
    emit_slots(F, pro)
    F.e(f"s_branch L_steady_{R}")
    assert F.lds[-14:] == A.lds[-14:]
    A.e(f"s_waitcnt vmcnt({0 if nq == 4 else 32})")
    prewarm_flags(A)
    A.e(CMP_NON); A.e("s_nop 4"); A.e(f"s_cbranch_vccnz L_non{nq}_spin"); A.label(f"L_non{nq}_ok")
    spin(F, f"non{nq}", LD_NON, CMP_NON)
    for _ in range(CFG.get("x_sleep", 0)): A.e("s_sleep 18")
    A.label(f"L_steady_{R}")
    if nq == 3: census(A)
    REGION[0] = "l"
    NL = NLOOP[nq]
    A.e(f"s_mov_b32 {s(sCNT)}, {NL}")
    stamp(A, "loop")
    B = Asm(); B.lds = list(A.lds); B.vm = list(A.vm); texts = []
    for n in range(1, NL + 1):
        B.lines = []; emit_slots(B, slots[2 * n * P:2 * (n + 1) * P]); texts.append(B.text())
    assert all(t == texts[0] for t in texts), "steady state mismatch"
    A.raw(".p2align 6")
    A.label(f"L_loop_{R}")
    body = slots[2 * P:4 * P]
    body[-3].sal.append(f"s_sub_u32 {s(sCNT)}, {s(sCNT)}, 1")
    body[-2].sal.append(f"s_cmp_lg_u32 {s(sCNT)}, 0")
    if nq == 3 and CFG["wotouch"] == "loop":
        def tb(A):
            A.e(f"s_cmp_eq_u32 {s(sCNT)}, {CFG.get('wtit', 2)}")
            A.e("s_cbranch_scc0 L_nowt")
            wotouch(A)
            A.label("L_nowt")
        body[2].sal.append(tb)
    if nq == 3 and CFG["wotouch"] == "spread":
        lo = CFG.get("wtit", 5)
        def tb(A):
            A.e(f"s_sub_u32 {s(sT0)}, {s(sCNT)}, {lo}")
            A.e(f"s_cmp_lt_u32 {s(sT0)}, 5")
            A.e("s_cbranch_scc0 L_nowt")
            A.vmem(f"global_load_dword v255, v254, s[88:89]{CFG['nt_wt']}", "wot")
            A.e(f"v_add_u32 v254, 7168, v254")
            A.label("L_nowt")
        body[2].sal.append(tb)
    if nq == 3 and CFG["wotouch"] == "dyn":
        def br(A):
            A.e("s_cbranch_scc0 L_nowt")
            for h in range(3):
                for j in range(6): A.vmem(f"global_load_dwordx4 v[240:243], v254, s[88:89] offset:{1024*j - 4096}{CFG['nt_wt']}", "wot")
                A.e("v_add_u32 v254, 6144, v254")
            A.e(f"s_add_u32 {s(sT2)}, {s(sT2)}, 1")
            A.label("L_nowt")
        body[1].sal += [f"s_cmp_lt_u32 {s(sT2)}, {s(sQ)}"]
        body[2].sal += [br]
    if nq == 3 and CFG["wotouch"] == "it":
        for k, p in enumerate((19, 47, 95)):
            while len(body[p].mem) + len(body[p].valu) >= 2 or any(isinstance(x, str) and x.startswith("v_exp") for x in body[p].valu): p -= 1
            body[p].mem.append(f"global_load_dwordx4 v[240:243], v254, s[88:89] offset:{1024*k - 4096}")
            if k == 2:
                body[p + 2].valu.append("v_add_u32 v254, 3072, v254")
                body[p + 4].valu.append("v_min_u32 v254, v253, v254")
    if nq == 3 and CFG["wotouch"] == "ad":
        NW = CFG.get("adn", 4)
        def br(A):
            A.e("s_cbranch_scc0 L_nowt")
            for j in range(NW): A.e(f"global_load_dwordx4 v[240:243], v254, s[88:89] offset:{1024*j - 4096}")
            A.e(f"v_add_u32 v254, {1024*NW}, v254")
            A.e(f"s_sub_u32 {s(sT2)}, {s(sT2)}, 1")
            A.label("L_nowt")
        p = P + 8 * nq - 2
        chain = [f"s_add_u32 {s(sT0)}, {s(sVM)}, {CFG.get('adlead', 4096)}", f"s_cmp_le_u32 {s(sT0)}, {s(sQ)}",
                 f"s_cselect_b32 {s(sT0)}, {s(sT2)}, 0", f"s_cmp_lt_u32 {s(sQ)}, {s(sLIM)}", f"s_cselect_b32 {s(sT0)}, 0, {s(sT0)}"]
        body[p].sal += chain
        body[92].sal += [f"s_cmp_lg_u32 {s(sT0)}, 0"]
        body[93].sal += [br]
    if CFG["itst"] and nq == 3:
        B7 = P + 8 * nq - 2 - 1
        body[B7].sal = [f"s_add_u32 s64, {s(sQ)}, {s(sNEED)}", f"s_sub_u32 s64, s64, {s(sVM)}", f"v_cmp_eq_u32 vcc, {s(sCNT)}, {v(vLANE)}",
                        "v_mov_b32 v61, s64", "s_nop 0", "v_cndmask_b32 v62, v62, v61, vcc"] + body[B7].sal
    if CFG["itst"] and nq == 4:
        body[P + 8*nq].sal += ["s_memrealtime s[64:65]"]
        body[P + 8*nq + 24].sal += ["s_waitcnt lgkmcnt(0)", f"v_cmp_eq_u32 vcc, {s(sCNT)}, {v(vLANE)}", "v_mov_b32 v61, s64", "s_nop 0", "v_cndmask_b32 v62, v62, v61, vcc"]
    emit_slots(A, body)
    A.e(f"s_cbranch_scc1 L_loop_{R}")
    A.lds = B.lds; A.vm = B.vm
    RP = CFG["restp"] if nq == 3 else 0
    REGION[0] = "e"
    emit_slots(A, slots[2 * (NL + 1) * P:2 * (NL + 1) * P + RP])
    if nq == 3:
        assert RP <= CFG["wostart"] - 2 and RP < P + 8 * nq - 2 and RP % P not in (0, 1) or RP == 0
        A.label("L_dqrest")
        emit_list(A, dq_prep())
        A.e(f"s_cmp_lt_u32 {s(sQ)}, {16*SLOT}")
        A.e("s_cbranch_scc0 L_dqdone")
        dq_block(A)
        A.e(f"s_cmp_eq_u32 {s(sP)}, {5*SLOT}")
        A.e(f"s_cselect_b32 {s(sP)}, 0, {s(sP)}")
        A.e("s_branch L_dqrest")
        A.label("L_dqdone")
        A.vm = [("u", 87)] + [("u", 95)] * 32
    if nq == 3 and CFG["wotouch"] == "ad":
        NW = CFG.get("adn", 4)
        A.label("L_wtrest")
        A.e(f"s_cmp_lg_u32 {s(sT2)}, 0")
        A.e("s_cbranch_scc0 L_wtdone")
        for j in range(NW): A.e(f"global_load_dwordx4 v[240:243], v254, s[88:89] offset:{1024*j - 4096}")
        A.e(f"v_add_u32 v254, {1024*NW}, v254")
        A.e(f"s_sub_u32 {s(sT2)}, {s(sT2)}, 1")
        A.e("s_branch L_wtrest")
        A.label("L_wtdone")
    if nq == 3 and CFG["wotouch"] == "t28": wotouch(A)
    if nq == 3 and CFG["wotouch"] in ("dyn", "end"):
        A.label("L_wtrest")
        A.e(f"s_cmp_lt_u32 {s(sT2)}, {s(sQ)}")
        A.e("s_cbranch_scc0 L_wtdone")
        for h in range(3):
            for j in range(6): A.e(f"global_load_dwordx4 v[240:243], v254, s[88:89] offset:{1024*j - 4096}{CFG['nt_wt']}")
            A.e("v_add_u32 v254, 6144, v254")
        A.e(f"s_add_u32 {s(sT2)}, {s(sT2)}, 1")
        A.e("s_branch L_wtrest")
        A.label("L_wtdone")
        A.vm += ["wot"] * 36
    emit_slots(A, slots[2 * (NL + 1) * P + RP:32 * P])
    stamp(A, "loopend")
    tail(A, nq, slots, P)
    return F.text()

PUBA = []
def tail(A, nq, slots, P):
    M = []; V = []; X = []
    X.append(Op(f"s_mov_b64 {s(sOV,2)}, 0", 0))
    for sl in slots[32 * P:32 * P + 8 * nq - 2]:
        for x in sl.mem: X.append(Op(x))
    def v31(i):
        t, j = i // 2, i % 2
        return lambda A: A.ds(f"ds_read_b64_tr_b16 {a(aK+4*t+2*j,2)}, {v(vVA+t)} offset:{8192+4096*j}", ("V31", i))
    NV = 4 if CFG["tord"] == 0 else 8
    if CFG["tord"]:
        for o in X: o.units = 0
    for i in range(NV): X.append(Op(v31(i), 0 if CFG["tord"] else 1))
    X.append(Op(lambda A: A.wait_lds(("V", 15)), 0, deps=[(("e", 0, 5), 0)] if CFG["tord"] else [], name="v30"))
    for i in range(NV, 16): X.append(Op(v31(i)))
    if nq == 3:
        grp = split_ops(WO3, [2] * (nmem(WO3) // 2))
        for k, g in enumerate(grp):
            if g: V.append(Op(lambda A, g=g: emit_ops(A, g), 2))
        WV = list(V); V.clear()
    X.append(Op(lambda A: A.wait_lds(("V31", 15)), 0, deps=[(("pv", 0, 1 if CFG["tord"] == 0 else 0), 0)], name="v31"))
    X.append(Op(f"s_mov_b32 {s(sT0)}, {f32hex(2.0**24)}", 0, name="thr"))
    def pv(T, qt):
        pb = vP + 16 * T + 4 * qt
        deps = [("v30", 0)] if T == 0 else [("v31", 0), (("p", qt), 2)]
        d = a(aL + 4 * qt, 4)
        if not CFG["smf"]: M.append(Op(mfma(d, v(vONE, 4), v(pb, 4), d), deps=deps, name=("sum", T, qt)))
        for t in range(8):
            d = a(aO + 32 * qt + 4 * t, 4)
            M.append(Op(mfma(d, a((aK if T else aV) + 4 * t, 4), v(pb, 4), d), deps=deps if t == 0 else [], name=("pv", T, qt) if t == 7 else ("pvt", T, qt, t)))
            if CFG["smf"] and qt in (0, 2) and t == (3 if T else 0):
                k = qt // 2
                M.append(Op(sum_op(vP + 16 * T, k, nq), deps=[(("p", sum_pairs(nq)[k] + 1), 2)] if T else [], name=("sum", T, k)))
    def soft(qt):
        sb = vS + 32 + 8 * qt; pb = vP + 16 + 4 * qt
        for e in range(2 if qt == 0 else 0, 8): V.append(Op(f"v_exp_f32 {v(sb+e)}, {v(sb+e)}", 2, name=("e", qt, e)))
        for j in range(1 if qt == 0 else 0, 4):
            V.append(Op(f"v_cvt_pk_bf16_f32 {v(pb+j)}, {v(sb+2*j)}, {v(sb+2*j+1)}", deps=[(("e", qt, 2*j+1), 1)], name=("p", qt) if j == 3 else None))
    def pub_a(A):
        A.e(f"s_cmp_lg_u32 {s(sSECOND)}, 0")
        A.e(f"s_cselect_b64 {s(sOV,2)}, 0, {s(sOV,2)}")
        A.e(f"s_cmp_eq_u64 {s(sOV,2)}, 0")
        A.e(f"s_cselect_b32 {s(sT1)}, {s(sFL)}, {WS_SIZE}")
        A.wait_vm(("st", 0))
        A.vmem(f"buffer_store_dwordx2 {v(vNON,2)}, {v(vFW)}, {s(sWS,4)}, {s(sT1)} offen sc1", "pubA")
        for r in (sFL, sOS, sOS + 1): A.e(f"s_cselect_b32 {s(r)}, {WS_SIZE}, {s(r)}")
    cnt = [0]
    def norm(qt):
        r = vT + 2 * (qt % 2)
        if CFG["smf"]:
            k, lr = sum_reg(qt, nq)
            V.append(Op(f"v_accvgpr_read_b32 {v(r)}, {a(lr)}", deps=[(("sum", 1, k), 8), ("thr", 0)]))
            V.append(Op(f"v_accvgpr_read_b32 {v(r+1)}, {a(lr+1)}"))
            V.append(Op(f"v_add_f32 {v(r)}, {v(r)}, {v(r+1)}"))
        else: V.append(Op(f"v_accvgpr_read_b32 {v(r)}, {a(aL+4*qt)}", deps=[(("sum", 1, qt), 8), ("thr", 0)]))
        V.append(Op(f"v_cmp_ngt_f32 vcc, {s(sT0)}, {v(r)}", name=("cmp", qt)))
        V.append(Op(f"v_rcp_f32 {v(r)}, {v(r)}", 2))
        for u in range(4):
            k = cnt[0]; cnt[0] += 1
            tb = vS + 8 * (k % 4); pb = vC + 4 * (k % 8)
            for j in range(8):
                t = 2 * u + j // 4
                V.append(Op(f"v_accvgpr_read_b32 {v(tb+j)}, {a(aO + 32*qt + 8*u + j)}", deps=[(("pv", 1, qt) if t == 7 else ("pvt", 1, qt, t), 8)]))
            if u == 0:
                if qt < 2: V.append(Op(f"s_or_b64 {s(sOV,2)}, {s(sOV,2)}, vcc", deps=[(("cmp", qt), 4)]))
                V.append(Op(f"v_addc_co_u32 {v(vT+4)}, vcc, 0, {v(vT+4)}, vcc", deps=[(("cmp", qt), 2)]))
            if k >= ((5 if nq == 4 else 3) if CFG["tord"] == 0 else (6 if nq == 4 else 5)):
                for j in range(4): V.append(Op(f"v_pk_mul_f32 {v(tb+2*j,2)}, {v(tb+2*j,2)}, {v(r,2)} op_sel_hi:[1,0]"))
            else:
                for j in range(8): V.append(Op(f"v_mul_f32 {v(tb+j)}, {v(tb+j)}, {v(r)}"))
            for j in range(4):
                V.append(Op(f"v_cvt_pk_bf16_f32 {v(pb+j)}, {v(tb+2*j)}, {v(tb+2*j+1)}", deps=[(("st", k - 8), 2)] if k >= 8 else [], name=("o", k) if j == 3 else None))
            if CFG["defb"] and qt >= 2: continue
            X.append(Op(lambda A, pb=pb, u=u, qt=qt: A.vmem(f"buffer_store_dwordx4 {v(pb,4)}, {v(vOO)}, {s(sWS,4)}, {s(sOS+qt)} offen offset:{1024*u} sc1", ("st", qt // 2)),
                        2, deps=[(("o", k), 0)], name=("st", k)))
            if k == min(CFG["pubA"], 4 * nq - 1): X.append(Op(pub_a))
    PUBA[:] = [pub_a]
    V.append(Op(f"v_mov_b32 {v(vT+4)}, 0"))
    if CFG["tord"] == 0:
        for qt in range(nq): soft(qt)
        if nq == 3:
            n0 = len(V)
            for k, o in enumerate(reversed(WV)): V.insert((len(WV) - 1 - k) * n0 // max(len(WV), 1), o)
        pv(0, 0); pv(0, 1); pv(1, 0); pv(1, 1)
        for qt in range(2, nq): pv(0, qt); pv(1, qt)
        for qt in range(nq): norm(qt)
    else:
        assert nq == 4 or not WV
        soft(0); soft(1); norm(0)
        for qt in range(2, nq): soft(qt)
        for qt in range(1, nq): norm(qt)
        pv(0, 0); pv(1, 0); pv(0, 1); pv(1, 1)
        for qt in range(2, nq): pv(0, qt)
        for qt in range(2, nq): pv(1, qt)
    merge(A, M, V, X)
    stamp(A, "pvdone")

def wo_read(ksl, n, jj):
    off = 6144 * (ksl % 6) + 3072 * jj + 64 * (n // 2)
    return lambda A: A.ds(f"ds_read_b64_tr_b16 {a((ksl*6+n)*4 + 2*jj, 2)}, {v(vWT + n % 2)} offset:{off}", ("W", ksl))

def wo2(A):
    A.e(f"s_mul_i32 {s(sT2)}, {s(sW)}, {8*36864}")
    for gi in range(12, 16):
        emit_ops(A, wo_group(f"s_add_u32 m0, {s(sWOW)}, {3072*(gi-12)}", f"s_add_u32 {s(sT3)}, {s(sT2)}, {gi*16*1152}", "wo2"))
def epilogue(A, nq):
    R = f"q{nq}"
    if nq == 3: A.wait_vm("wo1")
    A.e("s_barrier")
    stamp(A, "barX")
    A.e(f"v_lshlrev_b32 {v(vT+5)}, 2, v0")
    A.e(f"v_add_u32 {v(vT+5)}, {OVF}, {v(vT+5)}")
    A.ds(f"ds_write_b32 {v(vT+5)}, {v(vT+4)}", "flag")
    for ksl in range(6):
        for n in range(6):
            for jj in range(2): wo_read(ksl, n, jj)(A)
        if ksl == 3 and CFG["wo2early"]:
            A.wait_lds(("W", 1))
            wo2(A)
    if CFG["defb"]: PUBA[0](A)
    A.e(f"v_add_u32 {v(vT+5)}, {OVF}, {v(vOO)}")
    A.e("s_waitcnt lgkmcnt(0)")
    A.e("s_barrier")
    stamp(A, "barY")
    A.e(f"ds_read_b128 {v(vT,4)}, {v(vT+5)}")
    A.e("s_waitcnt lgkmcnt(0)")
    A.e(f"v_or_b32 {v(vT)}, {v(vT)}, {v(vT+1)}")
    A.e(f"v_or3_b32 {v(vT)}, {v(vT)}, {v(vT+2)}, {v(vT+3)}")
    A.e(f"v_cmp_ne_u32 vcc, 0, {v(vT)}")
    A.e(f"s_cmp_lg_u32 {s(sSECOND)}, 0")
    A.e("s_cbranch_scc1 L_phase2")
    A.e("s_nop 2")
    A.e(f"s_cbranch_vccnz L_fallback_{R}")
    if nq == 4: A.e("s_branch L_phase2")
    return ""

def fallback(A, nq):
    R = f"q{nq}"
    A.label(f"L_fallback_{R}")
    A.e(f"s_mov_b32 {s(sSECOND)}, 1")
    attn_init(A)
    for qt in range(nq): A.e(f"v_mov_b32 {v(vC+4*qt)}, 0xff800000")
    A.e(f"s_mov_b32 {s(sT2)}, {s(sW4K)}")
    A.e(f"s_mov_b32 {s(sCNT)}, 16")
    A.e("s_waitcnt vmcnt(0)")
    A.label(f"L_fb_loop_{R}")
    A.e("s_barrier")
    emit_ops(A, kv_quarter("K", f"s_add_u32 m0, {s(sW4K)}, {KPOS(0)}", f"s_mov_b32 {s(sT3)}, {s(sT2)}", "fb"))
    A.e("s_waitcnt vmcnt(0)")
    A.e("s_barrier")
    for T in range(2):
        for f in range(8): k_read(T, f)(A)
        A.e("s_waitcnt lgkmcnt(0)")
        for m in qk_list(T, nq, czero=True): A.e(m)
        A.e("s_nop 7")
        for qt in range(nq):
            b = vS + 32 * T + 8 * qt; c = vC + 4 * qt
            for e in range(0, 8, 2): A.e(f"v_max3_f32 {v(c)}, {v(c)}, {v(b+e)}, {v(b+e+1)}")
    A.e(f"s_add_u32 {s(sT2)}, {s(sT2)}, {SLOT}")
    A.e(f"s_sub_u32 {s(sCNT)}, {s(sCNT)}, 1")
    A.e(f"s_cmp_lg_u32 {s(sCNT)}, 0")
    A.e(f"s_cbranch_scc1 L_fb_loop_{R}")
    crosslane_max(A, [vC + 4 * qt for qt in range(nq)], vT)
    for qt in range(nq):
        c = vC + 4 * qt
        for e in (3, 2, 1, 0): A.e(f"v_sub_f32 {v(c+e)}, 0, {v(c)}")
    A.e("s_barrier")
    for kind, n in (("K", 0), ("K", 1), ("V", 0), ("K", 2), ("V", 1), ("K", 3), ("V", 2), ("K", 4), ("V", 3)):
        emit_ops(A, kv_own(kind, n))
    zero_acc(A, nq); zero_l(A, nq)
    A.e(f"s_mov_b32 {s(sP)}, {KPOS(5)}")
    A.e(f"s_mov_b32 {s(sQ)}, {4*SLOT}")
    A.e(f"s_mov_b32 {s(sLIM)}, {4*SLOT}")
    A.e(f"s_mov_b32 {s(sNEED)}, {SLOT}")
    A.e("s_waitcnt vmcnt(0)")
    A.e("s_barrier")
    for f in range(8): k_read(0, f)(A)
    A.e("s_waitcnt lgkmcnt(0)")
    for m in qk_list(0, nq): A.e(m)
    A.e("s_nop 7")
    A.e(f"s_branch L_attn_{R}")

def spin(A, name, load, cmp_):
    A.label(f"L_{name}_spin")
    A.e(f"s_mov_b32 {s(sCNT)}, {CFG['spin']}")
    A.label(f"L_{name}_again")
    A.e(load)
    A.e("s_waitcnt vmcnt(0)")
    A.e(cmp_)
    A.e(f"s_sub_u32 {s(sCNT)}, {s(sCNT)}, 1")
    A.e("s_nop 2")
    A.e(f"s_cbranch_vccz L_{name}_ok")
    A.e(f"s_sleep {CFG.get('slp', 1)}")
    A.e(f"s_cmp_lg_u32 {s(sCNT)}, 0")
    A.e(f"s_cbranch_scc1 L_{name}_again")
    A.e(f"s_branch L_{name}_ok")

def phase2(A):
    vF = vT
    vAC = 64
    vTR = 112
    vPA = 192
    vRR2 = 32
    vOH = 37
    PB = CFG["pb"]
    vO4 = 38
    sPS2 = sCH; sPF2 = sCH + 2
    aOF = 192
    ld_non = f"buffer_load_dwordx2 {v(vNON,2)}, off, {s(sDBG,4)}, 0 offset:128 sc1"
    cmp_non = f"v_cmp_eq_u64 vcc, 0, {v(vNON,2)}"
    ld_fo = f"buffer_load_dwordx2 {v(vF,2)}, {v(vFO)}, {s(sWS,4)}, 0 offen sc1"
    ld_fa = f"buffer_load_dwordx2 {v(vF,2)}, {v(vFA)}, {s(sWS,4)}, 0 offen sc1"
    ld_fb = f"buffer_load_dwordx2 {v(vF,2)}, {v(vFA+1)}, {s(sWS,4)}, 0 offen sc1"
    cmp_f = f"v_cmp_ne_u64 vcc, {v(vF,2)}, {v(vNON,2)}"
    def check(A, name, cmp_):
        A.e(cmp_); A.e("s_nop 4"); A.e(f"s_cbranch_vccnz L_{name}_spin"); A.label(f"L_{name}_ok")
    A.label("L_phase2")
    pub_b = f"buffer_store_dwordx2 {v(vNON,2)}, {v(vFW)}, {s(sWS,4)}, {s(sFL+1)} offen sc1"
    ld_fo2 = ld_fo.replace(" offen", f" offen offset:{1 << (FSH - 1)}")
    A.e(f"s_cmp_lt_u32 {s(sIDX)}, 30")
    A.e("s_cbranch_scc1 L_tile")
    bstores = [f"buffer_store_dwordx4 {v(vC+4*k,4)}, {v(vOO)}, {s(sWS,4)}, {s(sOS+2+k//4)} offen offset:{1024*(k%4)} sc1" for k in range(8)] if CFG["defb"] else []
    for x in bstores: A.e(x)
    A.e("s_waitcnt vmcnt(0)")
    A.e(pub_b)
    A.e("s_branch L_fin")
    A.label("L_tile")
    A.vmem(ld_fo, "fo")
    A.e(f"v_and_b32 {v(vFA+1)}, 0xffffff7f, {v(vFA)}")
    A.e(f"v_add_u32 {v(vFA+1)}, 256, {v(vFA+1)}")
    for r in range(5): A.e(f"v_add_u32 {v(vRR2+r)}, {2*WOW}, {v(vRR+r)}")
    A.e(f"v_lshrrev_b32 {v(vOH)}, 5, {v(vLANE)}")
    A.e(f"v_lshlrev_b32 {v(vOH)}, 30, {v(vOH)}")
    A.e(f"v_lshl_add_u32 {v(vOH)}, {v(vLANE)}, {3 if PB else 4}, {v(vOH)}")
    if not PB: A.e(f"v_add_u32 {v(vOH)}, 4096, {v(vOH)}")
    if not CFG["defb"]:
        A.e("s_waitcnt vmcnt(1)")
        A.vmem(pub_b, "pubB")
    if not CFG["wo2early"]: wo2(A)
    A.wait_vm("fo")
    check(A, "fo", cmp_f)
    stamp(A, "oready")
    D = CFG["D"]; NB = 16
    NST = 96
    slots = [Slot() for _ in range(NST * 6)]
    def load(st):
        q, i, ksl = st // 24, (st // 8) % 3, st % 8
        ops = []
        if ksl % 4 == 0: ops.append(("sal", f"s_add_u32 {s(sT1)}, {s(sPO+q)}, {OM*i + 1024*ksl}"))
        ops.append(("mem", lambda A: A.vmem(
            f"buffer_load_dwordx4 {a(aOF + 4*(st%NB), 4)}, {v(vOO)}, {s(sWS,4)}, {s(sT1)} offen offset:{1024*(ksl%4)}{CFG['nt_ol']}", ("o", st))))
        return ops
    D0 = CFG["D0"] if CFG["defb"] else D
    for st in range(D0): emit_ops(A, load(st))
    if CFG["defb"]:
        for k, x in enumerate(bstores):
            p = CFG["bst"] + CFG["bsp"] * k
            if p < 0: A.vmem(x, "bs")
            else: slots[p].mem.append(lambda A, x=x: A.vmem(x, "bs"))
        slots[CFG["pubb"]].sal.append(lambda A: A.wait_vm("bs"))
        slots[CFG["pubb"]].mem.append(lambda A: A.vmem(pub_b, "pubB"))
    if not CFG["wo2early"]: A.wait_vm("wo2")
    for ksl in (6, 7):
        for n in range(6):
            for jj in range(2): wo_read(ksl, n, jj)(A)
    A.wait_vm(("o", 0))
    def acc(blk, n): return vAC + 24 * (blk % 2) + 4 * n
    CH = CFG["gchain"]
    for st in range(NST):
        blk, ksl = st // 8, st % 8
        g0 = st - st % CH
        for n in range(6):
            d = v(acc(blk, n), 4)
            slots[6 * g0 + CH * n + st % CH].m = mfma(d, a((ksl * 6 + n) * 4, 4), a(aOF + 4 * (st % NB), 4), d if ksl else "0")
        if st: slots[6 * g0 + st % CH - 1].sal.append(lambda A, st=st: A.wait_vm(("o", st)))
    pB = 6 * (40 - D)
    slots[pB - CFG.get("fo2d", 40)].mem.append(lambda A: A.vmem(ld_fo2, "fo2"))
    slots[pB - 2].valu += [lambda A: A.wait_vm("fo2"), lambda A: check(A, "fo2", cmp_f)]
    assert D + CH <= NB
    LE = CFG.get("le", 16 - CH)
    nxt = D0
    for st in range(NST):
        want = min(NST, st + 1 + (D if st < 62 else min(LE, D + (st - 62) // 2)))
        k = 0
        while nxt < want:
            place_ops(slots, [6 * st + 1 + 3 * k], load(nxt)); nxt += 1; k += 1
    slots[22].sal.append("s_waitcnt lgkmcnt(0)")
    def red_write(blk, n):
        return lambda A: A.ds(f"ds_write_b128 {v(vRW - n % 2)}, {v(acc(blk, n), 4)} offset:{RHALF*((blk//3)%2) + 16*(blk%3)*RSTR + 128*(n//2)}", ("rw", blk))
    def treg(r, src): return vTR + 16 * r + 4 * src
    def red_read(q, r, src):
        return lambda A: A.ds(f"ds_read_b128 {v(treg(r, src), 4)}, {v((vRR if src < 2 else vRR2)+r)} offset:{WOW*(src%2) + RHALF*(q%2)}", ("rr", q, r))
    def red_adds(r):
        t = [treg(r, k) for k in range(4)]
        return [f"v_add_f32 {v(t[0]+e)}, {v(t[0]+e)}, {v(t[1]+e)}" for e in range(4)] + \
               [f"v_add_f32 {v(t[2]+e)}, {v(t[2]+e)}, {v(t[3]+e)}" for e in range(4)] + \
               [f"v_add_f32 {v(t[0]+e)}, {v(t[0]+e)}, {v(t[2]+e)}" for e in range(4)]
    WSP = CFG.get("wsp", 4); WSF = CFG.get("wsf", 3); SPLIT = CFG["split"]
    NS2 = len(slots); spill = []
    def wfirst(blk): return 48 * (blk + 1) + ((-1 if CH > 1 else 3) if (blk % 3 or blk == 0 or (SPLIT and blk == 9)) else 14)
    def wsp(blk): return WSF if (SPLIT and blk in (8, 10)) else WSP
    for blk in range(11):
        for n in range(6): slots[wfirst(blk) + wsp(blk) * n].mem.append(red_write(blk, n))
        slots[48 * (blk + 2) - 2].sal.append(lambda A, blk=blk: A.wait_lds(("rw", blk)))
    def put_valu(p, ls):
        for l in ls:
            while p < NS2 and len(slots[p].valu) + len(slots[p].mem) >= 2: p += 1
            if p < NS2: slots[p].valu.append(l)
            else: spill.append(l)
        return p + 1
    def reduce(q, rounds, blk):
        R1 = wfirst(blk) + 5 * wsp(blk) + 6
        slots[R1].sal += ["s_waitcnt lgkmcnt(0)", "s_barrier"]
        for k, (r, src) in enumerate((r, src) for r in rounds for src in range(4)): slots[R1 + 1 + k].mem.append(red_read(q, r, src))
        p = R1 + 10
        for r in rounds:
            w = lambda A, q=q, r=r: A.wait_lds(("rr", q, r))
            if p < NS2: slots[p].sal.append(w)
            else: spill.append(w)
            t = treg(r, 0); pk = treg(r & ~1, 1) + 2 * (r & 1)
            ls = red_adds(r)
            if q == 3:
                p = put_valu(p, ls + ([f"v_add_f32 {v(t+e)}, {v(t+e)}, {v(vSUM+4*r+e)}" for e in range(4)] if not CFG["latesum"] else [])); continue
            p = put_valu(p, ls + [f"v_cvt_pk_bf16_f32 {v(pk)}, {v(t)}, {v(t+1)}", f"v_cvt_pk_bf16_f32 {v(pk+1)}, {v(t+2)}, {v(t+3)}"])
            so = s(sPS2 + q % 2)
            if r in (1, 3): txt = f"buffer_store_dwordx4 {v(treg(r-1, 1), 4)}, {v(vOO)}, {s(sWS,4)}, {so} offen offset:{1024*(r//2)} sc1"
            elif r == 4: txt = f"buffer_store_dwordx2 {v(pk, 2)}, {v(vOH)}, {s(sWS,4)}, {so} offen offset:2048 sc1"
            else: continue
            slots[p].mem.append(lambda A, q=q, txt=txt: A.vmem(txt, ("ps", q)))
        return p
    vSUM = vPA + 32
    for q in range(3):
        base = 144 * (q + 1)
        if CFG["stamps"]: slots[base].sal.append(lambda A, q=q: stamp(A, f"p{q+1}"))
        sal = [f"s_add_u32 {s(sT0)}, {s(sHG)}, {q+1}", f"s_and_b32 {s(sT0)}, {s(sT0)}, 3", f"s_sub_u32 {s(sT0)}, {s(sT0)}, {s(sHG)}",
               f"s_mul_i32 {s(sPS)}, {s(sT0)}, {2*12*5120}", f"s_add_u32 {s(sPS)}, {s(sPS)}, {s(sPL)}", f"s_add_u32 {s(sPS2 + q % 2)}, {s(sPS)}, {q*4*5120}",
               f"s_lshl_b32 {s(sT0)}, {s(sT0)}, 1", f"s_add_u32 {s(sT0)}, {s(sT0)}, s2", f"s_lshl_b32 {s(sT0)}, {s(sT0)}, 11",
               f"s_add_u32 {s(sT0)}, {s(sT0)}, {WS_PFLAG + 128*q}", f"s_lshl_b32 {s(sT2)}, {s(sW)}, 9",
               f"s_add_u32 {s(sPF2 + q % 2)}, {s(sT0)}, {s(sT2)}"]
        for k, x in enumerate(sal): slots[base - 58 + 2 * k].sal.append(x)
        if SPLIT and q == 2:
            pe = reduce(2, [0, 1, 2], 7)
            assert pe <= wfirst(8) + 5 * wsp(8) + 16, pe
            p = reduce(2, [3, 4], 8)
        else: p = reduce(q, range(5), 3 * q + 2)
        pf = p + CFG.get("ackd" if q < 2 else "ack2", 50 if q < 2 else 42)
        slots[pf].sal += [lambda A, q=q: A.wait_vm(("ps", q))]
        slots[pf].mem.append(lambda A, q=q: A.vmem(f"buffer_store_dwordx2 {v(vNON,2)}, {v(vFW)}, {s(sWS,4)}, {s(sPF2 + q % 2)} offen sc1", "pub"))
    def ploads(slot):
        ops = [("sal", f"s_add_u32 {s(sT3)}, {s(sPL)}, {4 * 5120 * slot}")]
        b = vPA + 10 * slot
        L = [f"buffer_load_dwordx4 {v(b+4*k, 4)}, {v(vOO)}, {s(sWS,4)}, {s(sT3)} offen offset:{1024*k} sc1" for k in range(2)]
        L.append(f"buffer_load_dwordx2 {v(b+8, 2)}, {v(vOH)}, {s(sWS,4)}, {s(sT3)} offen offset:2048 sc1")
        return ops + [("mem", lambda A, x=x: A.vmem(x, ("pl", slot))) for x in L]
    def padd(slot, r, dst, first=False):
        b = vPA + 10 * slot; L = []
        for e in range(4):
            src = b + 2 * r + e // 2; tmp = dst + e if first else vT + 2 + e
            L.append(f"v_and_b32 {v(tmp)}, 0xffff0000, {v(src)}" if e % 2 else f"v_lshlrev_b32 {v(tmp)}, 16, {v(src)}")
        if not first: L += [f"v_add_f32 {v(dst+e)}, {v(dst+e)}, {v(vT+2+e)}" for e in range(4)]
        return L
    base = 432
    FA = CFG.get("fa", 62); FC = CFG.get("fc", 98); FS = CFG.get("fs", 92)
    slots[base + FA].mem.append(lambda A: A.vmem(ld_fa, "fa"))
    slots[base + FC].valu += [lambda A: A.wait_vm("fa"), lambda A: check(A, "fa", cmp_f)]
    pl = ploads(0) + ploads(1)
    place_ops(slots, [base + FC + 2 + k for k in range(nmem(pl))], pl)
    presum = sum((padd(0, r, vSUM + 4 * r, True) + padd(1, r, vSUM + 4 * r) for r in range(5)), [])
    late = range(5)
    if CFG["latesum"]:
        reduce(3, [0, 1, 2], 10); late = [3, 4]
        spill += sum((padd(0, r, treg(r, 0)) + padd(1, r, treg(r, 0)) for r in range(3)), []) + presum[36:]
    else:
        slots[base + FS].sal.append(lambda A: A.wait_vm(("pl", 1)))
        ps = put_valu(base + FS, presum)
        if SPLIT:
            assert ps <= wfirst(10) + 5 * wsp(10) + 6 + 18, ps
            reduce(3, [0, 1, 2], 10); late = [3, 4]
    slots[base + CFG.get("fbp", 118)].mem.append(lambda A: A.vmem(ld_fb, "fb"))
    nw = 2 if CH > 1 else 0
    for n in range(nw): slots[NS2 - 2 + n].mem.append(red_write(11, n)) if n == 0 else None
    nw = min(nw, 1)
    emit_slots(A, slots)
    stamp(A, "mmdone")
    def own(A):
        for n in range(nw, 6): red_write(11, n)(A)
        sp = [x for x in spill if isinstance(x, str)]
        k = min(len(sp), 24)
        emit_list(A, [sp[:k]])
        A.e("s_waitcnt lgkmcnt(0)")
        A.e("s_barrier")
        for r in late:
            for src in range(4): red_read(3, r, src)(A)
        emit_list(A, [sp[k:]])
    if SPLIT: A.wait_lds(("rr", 3, 2))
    A.e("s_waitcnt vmcnt(0)")
    A.e(cmp_f); A.e("s_nop 4"); A.e("s_cbranch_vccnz L_fb_late")
    emit_ops(A, ploads(2))
    own(A)
    LATE = Asm()
    LATE.label("L_fb_late")
    LATE.e(ld_fb)
    own(LATE)
    LATE.e("s_waitcnt vmcnt(0)")
    check(LATE, "fb", cmp_f)
    emit_ops(LATE, ploads(2))
    LATE.e("s_branch L_fb_join")
    A.label("L_fb_join")
    stamp(A, "pready")
    for r in late:
        A.wait_lds(("rr", 3, r))
        for l in red_adds(r): A.e(l)
        t = treg(r, 0)
        for e in range(4): A.e(f"v_add_f32 {v(t+e)}, {v(t+e)}, {v(vSUM+4*r+e)}")
    for r in range(5):
        t = treg(r, 0)
        if r % 2 == 0: A.e(f"s_waitcnt vmcnt({2 - r // 2 + r})")
        for l in padd(2, r, t): A.e(l)
        A.e(f"v_cvt_pk_bf16_f32 {v(t)}, {v(t)}, {v(t+1)}")
        A.e(f"v_cvt_pk_bf16_f32 {v(t+1)}, {v(t+2)}, {v(t+3)}")
        A.e(f"buffer_store_dwordx2 {v(t,2)}, {v(vOUT+r)}, {s(sOUT,4)}, 0 offen{CFG.get('nt_out', '')}")
    A.label("L_fin")
    if CFG["stamps"]:
        A.e("s_waitcnt vmcnt(0)")
        stamp(A, "end")
        A.e(f"s_lshl_b32 {s(sT0)}, s2, 2")
        A.e(f"s_add_u32 {s(sT0)}, {s(sT0)}, {s(sW)}")
        A.e(f"s_lshl_b32 {s(sT0)}, {s(sT0)}, 8")
        A.e(f"s_cmp_eq_u32 {s(sT0)}, 0")
        A.e(f"s_cselect_b32 {s(sT1)}, 0, 256")
        A.e(f"s_add_u32 {s(sT0)}, {s(sT0)}, {WS_STAMP}")
        A.e(f"v_lshlrev_b32 v2, 2, {v(vLANE)}")
        A.e(f"buffer_store_dword v63, v2, {s(sWS,4)}, {s(sT0)} offen")
        A.e(f"s_add_u32 {s(sT0)}, {s(sT0)}, 0x40000")
        A.e(f"buffer_store_dword v62, v2, {s(sWS,4)}, {s(sT0)} offen")
        A.e("v_readlane_b32 s64, v63, 0")
        A.e(f"s_mov_b32 {s(sDBG+2)}, 64")
        A.e("s_nop 0")
        A.e("v_subrev_u32 v61, s64, v63")
        A.e(f"buffer_store_dword v61, v2, {s(sDBG,4)}, {s(sT1)} offen")
    if CFG.get("probe"):
        A.e(f"v_readlane_b32 s66, v63, {STAMPS.index(CFG['probe'])}")
        A.e(f"v_readlane_b32 s67, v63, {STAMPS.index(CFG.get('probe0', 'start'))}")
        A.e("v_readlane_b32 s68, v63, 0")
        A.e("s_nop 3")
        A.e("s_sub_u32 s66, s66, s67")
        A.e("s_min_u32 s66, s66, 6000")
        A.e("s_cmp_ge_u32 s2, 240")
        A.e("s_cselect_b32 s66, 0, s66")
        A.e("s_add_u32 s66, s66, 7000")
        A.label("L_pad")
        A.e("s_memrealtime s[64:65]")
        A.e("s_waitcnt lgkmcnt(0)")
        A.e("s_sub_u32 s64, s64, s68")
        A.e("s_cmp_lt_u32 s64, s66")
        A.e("s_cbranch_scc1 L_pad")
    A.label("L_end")
    A.e("s_endpgm")
    spin(A, "fo", ld_fo, cmp_f)
    spin(A, "fo2", ld_fo2, cmp_f)
    spin(A, "fa", ld_fa, cmp_f)
    spin(A, "fb", ld_fb, cmp_f)
    A.lines += LATE.lines

def kernel():
    A = Asm()
    A.raw(f".globl {KNAME}\n.p2align 8\n.type {KNAME},@function\n{KNAME}:")
    setup(A)
    out = A.text(); fb = ""
    for nq in (4, 3):
        A = Asm()
        A.label(f"L_role_q{nq}")
        qproj(A, nq)
        stamp(A, "qdone")
        fb += attention(A, nq)
        fb += epilogue(A, nq)
        out += A.text()
        F = Asm(); fallback(F, nq)
        if nq == 3: dq_slow(F, "p"); dq_slow(F, "l"); dq_slow(F, "m")
        fb += F.text()
    A = Asm(); phase2(A)
    return out + A.text() + "L_code_end:\n" + fb + f".fill {CFG.get('pad', 64)}, 4, 0xbf800000\nL_text_end:\n"

DOC = """; ---------------------------------------------------------------------------------------------
; One workgroup per (batch, head), 4 waves, 1 wave per SIMD, v_mfma_f32_16x16x32_bf16 throughout.
;  2. S^T = K Q^T - m (m enters as the C operand), P = exp2(S^T), O^T += V^T P^T, row sums by one more MFMA with a ones
;     fragment.  m = row max of the first 32 keys; a row sum that is not below 2^24 (or NaN) sends the workgroup through
;     L_fallback, which finds the true row max and repeats the loop.  Wave 3 owns 3 of the 15 q-tiles and issues the K/V ring.
;  3. O (bf16, fragment order) goes to d_ws with write-through stores; flags carry a per-launch tag published in d_debug.
;  4. out = O wo, K split four ways across workgroups (8 heads each) and four ways across waves; foreign partial sums are
;     exchanged through d_ws the same way.  All 256 workgroups are co-resident (one per CU); every poll loop is bounded.
; Generated by a script; workgroup -> data mapping assumes round-robin dies for L2 locality only.
; ---------------------------------------------------------------------------------------------
"""
hdr = open("standalone__mha_block_cached__near_ridge.s.ref").read().split("; Override launch")[0]
txt = hdr + "; @launch grid=(256,1,1) block=(256,1,1) lds=163840\n" \
          + DOC + '.amdgcn_target "amdgcn-amd-amdhsa--gfx950"\n.text\n' + kernel() \
          + '.section .rodata,"a"\n' + descriptor(KNAME)
open(sys.argv[1], "w").write(txt)
```
